```python
import torch

def _softmax(x, axis=-1):
    return torch.softmax(x, dim=axis)
def _gelu(x):
    return torch.nn.functional.gelu(x, approximate="tanh")
def _silu(x):
    return torch.nn.functional.silu(x)
def _sigmoid(x):
    return torch.sigmoid(x)
def _layernorm(x, axis=-1, eps=1e-5):
    m = x.mean(dim=axis, keepdim=True)
    v = x.var(dim=axis, keepdim=True, unbiased=False)
    return (x - m) / torch.sqrt(v + eps)
def _scatter_add(tgt, idx, src, axis=0):
    return tgt.clone().index_add_(axis, idx, src)
def _segment_sum(src, seg, n):
    out = torch.zeros((n,) + src.shape[1:], dtype=src.dtype)
    return out.index_add_(0, seg, src)
def _pad(x, pw):
    flat = tuple(v for pair in reversed(pw) for v in pair)
    return torch.nn.functional.pad(x, flat)

kernel_name = 'standalone__mha_block_cached__near_ridge'

def setup_inputs():

    _w = (lambda a: (lambda t: t.to(torch.bfloat16) if t.is_floating_point() else t)(torch.as_tensor(a)))
    B, Sq, D = 16, 192, 1024
    H, Sk, Dh = 32, 1024, 128
    return {
        "x": _w((lambda *s: torch.randn(*s, dtype=torch.bfloat16) * 0.8)(B, Sq, D)),
        "k_cache": _w((lambda *s: torch.randn(*s, dtype=torch.bfloat16) * 0.8)(B, H, Sk, Dh)),
        "v_cache": _w((lambda *s: torch.randn(*s, dtype=torch.bfloat16) * 0.05)(B, H, Sk, Dh)),
        "wq": _w((lambda *s: torch.randn(*s, dtype=torch.bfloat16) * 0.8)(D, H * Dh) * (D ** -0.5)),
        "wo": _w((lambda *s: torch.randn(*s, dtype=torch.bfloat16) * 0.05)(H * Dh, D) * ((H * Dh) ** -0.5)),
    }

def reference(x, k_cache, v_cache, wq, wo):
    B, Sq, D = x.shape
    H, Dh = 32, 128
    q = (lambda x, *d: x.permute(*d))((x @ wq).reshape(B, Sq, H, Dh), 0, 2, 1, 3)
    scores = torch.einsum("bhqd,bhkd->bhqk", q, k_cache) * (Dh ** -0.5)
    p = _softmax(scores, axis=-1)
    o = torch.einsum("bhqk,bhkd->bhqd", p, v_cache)
    return (lambda x, *d: x.permute(*d))(o, 0, 2, 1, 3).reshape(B, Sq, H * Dh) @ wo
```

```python
import re

class I:
    __slots__ = ("text", "kind", "rd", "wr", "tag", "needs_vm", "needs_lgkm", "cnt", "srd", "swr", "mf_c", "note", "lds_ops")
    def __init__(self, text, kind, rd=(), wr=(), tag=None, srd=(), swr=(), mf_c=None):
        self.text = text; self.kind = kind
        self.rd = frozenset(rd); self.wr = frozenset(wr)
        self.tag = tag
        self.needs_vm = None; self.needs_lgkm = None; self.cnt = None
        self.srd = frozenset(srd); self.swr = frozenset(swr)
        self.mf_c = mf_c
        self.note = None
    def __repr__(self): return self.text

def R(a, n=1): return range(a, a + n)
def vr(a, n): return f"v[{a}:{a+n-1}]" if n > 1 else f"v{a}"

def mfma(d, a, b, c=None):
    if c is None: c = d
    if c == 'z':
        return I(f"v_mfma_f32_16x16x32_bf16 {vr(d,4)}, {vr(a,4)}, {vr(b,4)}, 0", "mfma", rd=[*R(a,4), *R(b,4)], wr=R(d,4), mf_c=None)
    return I(f"v_mfma_f32_16x16x32_bf16 {vr(d,4)}, {vr(a,4)}, {vr(b,4)}, {vr(c,4)}", "mfma",
             rd=[*R(a,4), *R(b,4), *R(c,4)], wr=R(d,4), mf_c=c)

_VREG = re.compile(r"\bv(\d+)\b|\bv\[(\d+):(\d+)\]")
_SREG = re.compile(r"\bs(\d+)\b|\bs\[(\d+):(\d+)\]|\b(vcc|m0|exec|scc)\b")
def _regs(rx, s):
    out = []
    for m in rx.finditer(s):
        if m.group(1) is not None: out.append(int(m.group(1)))
        elif m.group(2) is not None: out.extend(range(int(m.group(2)), int(m.group(3)) + 1))
        else: out.append(m.group(4))
    return out

TRANS = ("v_exp_f32", "v_rcp_f32", "v_log_f32", "v_rsq_f32", "v_sqrt_f32")
def valu(text):
    op, rest = text.split(None, 1)
    ops = [o.strip() for o in rest.split(",")]
    kind = "trans" if op in TRANS else "valu"
    if op.startswith("v_permlane") or op.startswith("v_swap"):
        rs = _regs(_VREG, rest)
        return I(text, "perm" if op.startswith("v_permlane") else "valu", rd=rs, wr=rs)
    if op.startswith("v_cmp"):
        return I(text, kind, rd=_regs(_VREG, ",".join(ops[1:])), srd=_regs(_SREG, ",".join(ops[1:])), swr=_regs(_SREG, ops[0]))
    if op.startswith("v_readfirstlane") or op.startswith("v_readlane"):
        return I(text, "rdlane", rd=_regs(_VREG, ",".join(ops[1:])), swr=_regs(_SREG, ops[0]))
    wr = _regs(_VREG, ops[0]); rd = _regs(_VREG, ",".join(ops[1:]))
    if op.startswith("v_fmac"): rd = rd + wr
    return I(text, kind, rd=rd, wr=wr, srd=_regs(_SREG, ",".join(ops[1:])))

def salu(text):
    op, _, rest = text.partition(" ")
    ops = [o.strip() for o in rest.split(",")] if rest else []
    if op.startswith("s_cmp"):
        return I(text, "salu", srd=_regs(_SREG, rest), swr=["scc"])
    swr = _regs(_SREG, ops[0]) if ops else []
    srd = _regs(_SREG, ",".join(ops[1:]))
    return I(text, "salu", srd=srd, swr=swr)

def nop(n): return I(f"s_nop {n}", "nop")
def raw(text, kind="misc"): return I(text, kind)
def label(name): return I(f"{name}:", "label")
def barrier(): return I("s_barrier", "barrier")

def ds_read(op, d, n, addr, off, tag=None):
    assert 0 <= off < 65536, off
    return I(f"{op} {vr(d,n)}, v{addr} offset:{off}", "ds", rd=[addr], wr=R(d, n), tag=tag)
def ds_write(op, addr, s, n, off, tag=None):
    assert 0 <= off < 65536, off
    return I(f"{op} v{addr}, {vr(s,n)} offset:{off}", "ds", rd=[addr, *R(s, n)], tag=tag)
def buf_load(d, n, voff, srd, soff, off=0, tag=None, flags=""):
    assert 0 <= off < 4096
    sfx = {1: "dword", 2: "dwordx2", 4: "dwordx4"}[n]
    o = f" offset:{off}" if off else ""
    return I(f"buffer_load_{sfx} {vr(d,n)}, v{voff}, s[{srd}:{srd+3}], {soff} offen{o}{flags}", "vmem", rd=[voff], wr=R(d, n), tag=tag,
             srd=[*R(srd, 4), *_regs(_SREG, str(soff))])
def buf_dma(voff, srd, soff, off=0, tag=None, flags=""):
    assert 0 <= off < 4096
    o = f" offset:{off}" if off else ""
    return I(f"buffer_load_dwordx4 v{voff}, s[{srd}:{srd+3}], {soff} offen{o}{flags} lds", "dma", rd=[voff], tag=tag,
             srd=[*R(srd, 4), "m0", *_regs(_SREG, str(soff))])
def buf_store(s, n, voff, srd, soff, off=0, tag=None, flags=""):
    assert 0 <= off < 4096
    sfx = {1: "dword", 2: "dwordx2", 4: "dwordx4"}[n]
    o = f" offset:{off}" if off else ""
    return I(f"buffer_store_{sfx} {vr(s,n)}, v{voff}, s[{srd}:{srd+3}], {soff} offen{o}{flags}", "vstore", rd=[voff, *R(s, n)], tag=tag,
             srd=[*R(srd, 4), *_regs(_SREG, str(soff))])

def wait(vm=None, lgkm=None):
    w = I("s_waitcnt", "wait")
    w.needs_vm = vm; w.needs_lgkm = lgkm
    return w

def resolve_waits(stream, vmq=None, lgq=None):
    vmq = list(vmq or []); lgq = list(lgq or [])
    errs = []
    for idx, ins in enumerate(stream):
        if ins.kind == "wait":
            cnt = {}
            for name, q, needs, mx in (("vmcnt", vmq, ins.needs_vm, 63), ("lgkmcnt", lgq, ins.needs_lgkm, 15)):
                if needs is None: continue
                if needs == "all":
                    n = 0
                else:
                    last = -1
                    for k, (t, _) in enumerate(q):
                        if t in needs: last = k
                    n = len(q) - 1 - last
                    if last < 0: n = mx
                n = min(n, mx)
                cnt[name] = n
                if len(q) > n: del q[:len(q) - n]
            ins.cnt = cnt
            continue
        touched = ins.rd | ins.wr
        for q, nm in ((vmq, "vm"), (lgq, "lgkm")):
            for t, dst in q:
                if dst & touched:
                    errs.append(f"[{idx}] {ins.text}: touches in-flight {nm} load {t} regs {sorted(dst & touched)}")
        if ins.kind in ("vmem", "dma", "vstore"):
            vmq.append((ins.tag, ins.wr if ins.kind == "vmem" else frozenset()))
            if len(vmq) > 63: errs.append(f"[{idx}] vmcnt overflow {len(vmq)}")
        elif ins.kind == "ds":
            lgq.append((ins.tag, ins.wr))
            if len(lgq) > 15: errs.append(f"[{idx}] lgkmcnt overflow {len(lgq)} at {ins.text}")
    return errs, vmq, lgq

def wait_text(ins):
    parts = []
    for k, mx in (("vmcnt", 63), ("lgkmcnt", 15)):
        if k in ins.cnt and ins.cnt[k] < mx: parts.append(f"{k}({ins.cnt[k]})")
    return "s_waitcnt " + " ".join(parts) if parts else None

def states(ins):
    if ins.kind == "label": return 0
    if ins.kind == "nop": return int(ins.text.split()[1]) + 1
    if ins.kind == "wait" and ins.cnt is not None and wait_text(ins) is None: return 0
    return 1

def check_hazards(stream):
    errs = []
    n = len(stream)
    for i, a in enumerate(stream):
        if a.kind in ("label", "nop", "wait", "misc", "barrier"): continue
        dist = 0
        for j in range(i + 1, min(n, i + 40)):
            b = stream[j]
            need = 0; why = ""
            isv = lambda x: x.kind in ("valu", "trans", "perm", "rdlane")
            if isv(a) and a.wr:
                if b.kind == "mfma" and a.wr & b.rd: need, why = 2, "valu->mfma"
                if b.kind == "perm" and a.wr & b.rd: need, why = max(need, 2), "valu->permlane"
                if b.kind == "rdlane" and a.wr & b.rd: need, why = max(need, 1), "valu->readlane"
                if a.kind == "trans" and b.kind in ("valu", "perm", "rdlane", "mfma", "ds", "vmem", "vstore", "dma") and a.wr & (b.rd): need, why = max(need, 1), "trans->use"
            if isv(a) and a.swr:
                if isv(b) and a.swr & b.srd: need, why = max(need, 2), "valu sgpr->valu"
                if b.kind in ("vmem", "dma", "vstore") and a.swr & b.srd: need, why = max(need, 5), "valu sgpr->vmem"
            if a.kind == "salu" and "m0" in a.swr and b.kind == "dma": need, why = max(need, 1), "m0->dma"
            if a.kind == "mfma":
                D = a.wr
                if b.kind == "mfma":
                    cset = frozenset(R(b.mf_c, 4)) if b.mf_c is not None else frozenset()
                    ab = b.rd - cset if b.mf_c is not None else b.rd
                    txt = b.text.split(",")
                    abregs = frozenset(_regs(_VREG, txt[1] + "," + txt[2]))
                    if D & abregs: need, why = max(need, 8), "mfma D->mfma AB"
                    if D & cset and cset != D: need, why = max(need, 6), "mfma D->mfma C overlap"
                elif isv(b) and D & (b.rd | b.wr): need, why = max(need, 8), "mfma D->valu"
                elif b.kind in ("ds", "vmem", "vstore", "dma") and D & (b.rd | b.wr): need, why = max(need, 8), "mfma D->mem"
                if a.mf_c is not None and isv(b) and frozenset(R(a.mf_c, 4)) & b.wr: need, why = max(need, 3), "mfma C WAR"
            if a.kind == "vstore" and len(a.rd) >= 4 and isv(b) and (a.rd & b.wr): need, why = max(need, 2), "store data WAR"
            if a.kind == "salu" and "exec" in a.swr and b.kind in ("perm",): need, why = max(need, 1), "exec->perm"
            if need > dist:
                errs.append(f"hazard {why}: [{i}] {a.text} -> [{j}] {b.text}: dist {dist} < {need}")
            dist += states(b)
            if dist >= 12: break
    return errs

def text_of(ins):
    if ins.kind == "wait":
        return wait_text(ins)
    return ins.text

def emit(stream):
    out = []
    for ins in stream:
        t = text_of(ins)
        if t is None: continue
        out.append(t if ins.kind == "label" else "    " + t)
    return "\n".join(out)

def fold(groups):
    base = groups[0]
    for g in groups[1:]:
        assert len(g) == len(base), (len(g), len(base))
        for a, b in zip(base, g):
            if a.kind == "wait":
                assert b.kind == "wait"
                assert a.cnt.keys() == b.cnt.keys()
            else:
                assert a.text == b.text, (a.text, b.text)
    out = []
    for k, a in enumerate(base):
        if a.kind == "wait":
            w = wait(); w.cnt = {key: min(g[k].cnt[key] for g in groups) for key in a.cnt}
            out.append(w)
        else:
            out.append(a)
    return out

def interleave(mf, gaps, pre=None):
    out = []
    for m, x in enumerate(mf):
        if pre and m in pre: out += pre[m]
        if x is not None: out.append(x)
        out += gaps.get(m, [])
    return out
```

```python
import sys, math, struct
from asmlib import *

def f32(x): return struct.unpack("<I", struct.pack("<f", x))[0]

SLOT = 8704
KP, VP = 1088, 1056

L0, T0, TMP, TMP2 = 1, 4, 7, 8
VKR, VVR, VDK, VDV = 9, 10, 11, 12
VLANE = 13
TMP3, TMP4 = 14, 15
NM = 16
VDW0, VDW1, VX0, VWR0, VWR1 = 16, 17, 18, 21, 22
FR = 28
SP = 64
QR = 112
ACC = 160
def acc(j, dt): return ACC + (j * 8 + dt) * 4
def qf(j, u): return QR + (j * 4 + u) * 4
def sreg(par, j, t): return SP + par * 24 + j * 8 + t * 4
def negm(j): return NM + 4 * j
def fr(n): return FR + 4 * (n % 8)
def xb(buf, half, j): return SP + buf * 24 + (half * 3 + j) * 4

SX, SWQ, SK, SV, SO = 4, 8, 12, 16, 20
sW, sB, sH = 24, 25, 26
sXO, sWO0, sWO1, sKO, sVO, sCNT, sMK, sMV, sTH, sC = 27, 28, 29, 30, 31, 32, 33, 34, 35, 36
sT0, sT1 = 37, 38
sRET = 40
sEX = 42
sKS0, sKS1 = 44, 45

POS = {0: -12, 1: -11, 2: -10, 3: -9, 4: -8, 5: -6, 6: -3, 7: 3}
for n in range(8, 16): POS[n] = 3 * n - 18
BAR = 36
DMA_GAPS = [37, 40, 43, 46]

class Step:
    def __init__(self, name):
        self.name = name
        self.mf = [None] * 48
        self.gaps = {}
        self.pre = {}
        self.reads = None
        self.has_bar = True
    def gap(self, m, *ins): self.gaps.setdefault(m, []).extend(ins)
    def before(self, m, *ins): self.pre.setdefault(m, []).extend(ins)

def k_slot(i): return (2 * (i % 4)) * SLOT
def v_slot(i): return (2 * (i % 4) + 1) * SLOT
def w_slot(i): return (i % 8) * SLOT

def rd_w(tile, a, n, tagp):
    u, T = a >> 1, a & 1
    base = w_slot(tile) + u * 64
    va = VWR0 + T
    return [ds_read("ds_read_b64_tr_b16", fr(n), 2, va, base, tag=(tagp, n)),
            ds_read("ds_read_b64_tr_b16", fr(n) + 2, 2, va, base + 256, tag=(tagp, n))]
def rd_k(tile, a, n, tagp):
    t, u = a >> 2, a & 3
    return [ds_read("ds_read_b128", fr(n), 4, VKR, k_slot(tile) + t * 4 * KP + u * 64, tag=(tagp, n))]
def rd_v(tile, dt, n, tagp):
    base = v_slot(tile) + dt * 32
    return [ds_read("ds_read_b64_tr_b16", fr(n), 2, VVR, base, tag=(tagp, n)),
            ds_read("ds_read_b64_tr_b16", fr(n) + 2, 2, VVR, base + 512, tag=(tagp, n))]

KVFLAGS = ""
def dma_k(i):
    s = k_slot(i)
    return [(salu(f"s_add_u32 m0, s{sMK}, {s}"), buf_dma(VDK, SK, f"s{sKO}", 0, tag=("K", i), flags=KVFLAGS)),
            (salu(f"s_add_u32 m0, s{sMK}, {s + KP - 1024}"), buf_dma(VDK, SK, f"s{sKO}", 1024, tag=("K", i), flags=KVFLAGS))]
def dma_v(i):
    s = v_slot(i)
    return [(salu(f"s_add_u32 m0, s{sMV}, {s}"), buf_dma(VDV, SV, f"s{sVO}", 0, tag=("V", i), flags=KVFLAGS)),
            (salu(f"s_add_u32 m0, s{sMV}, {s + VP - 256}"), buf_dma(VDV, SV, f"s{sVO}", 256, tag=("V", i), flags=KVFLAGS))]
def dma_w(i):
    s = w_slot(i)
    so = f"s{sWO0 + (i & 1)}"
    return [(salu(f"s_add_u32 m0, s{sMV}, {s}"), buf_dma(VDW0, SWQ, so, 0, tag=("W", i))),
            (salu(f"s_add_u32 m0, s{sMV}, {s + VP}"), buf_dma(VDW1, SWQ, so, 0, tag=("W", i)))]

def place_dma(st, pairs):
    for (m0i, d), g in zip(pairs, DMA_GAPS):
        st.before(g, m0i)
        if st.mf[g] is None: st.before(g, nop(0))
        st.gap(g, d)

def sm_half(st, g0, par, j, t, first_l):
    a = sreg(par, j, t); p = sreg(par, j, 0) + 2 * t; tj = T0 + j; lj = L0 + j
    for r in range(4): st.gap(g0 + r, valu(f"v_exp_f32 v{a+r}, v{a+r}"))
    if t == 0:
        if first_l: st.gap(g0 + 4, valu(f"v_add_f32 v{lj}, v{lj}, v{tj}"))
        st.gap(g0 + 4, valu(f"v_add_f32 v{tj}, v{a}, v{a+1}"))
    else:
        st.gap(g0 + 4, valu(f"v_add_f32 v{tj}, v{tj}, v{a}"), valu(f"v_add_f32 v{tj}, v{tj}, v{a+1}"))
    st.gap(g0 + 5, valu(f"v_cvt_pk_bf16_f32 v{p}, v{a}, v{a+1}"), valu(f"v_add_f32 v{tj}, v{tj}, v{a+2}"))
    st.gap(g0 + 6, valu(f"v_add_f32 v{tj}, v{tj}, v{a+3}"), valu(f"v_cvt_pk_bf16_f32 v{p+1}, v{a+2}, v{a+3}"))

def link(steps):
    for i, st in enumerate(steps):
        for n in range(16):
            if st.reads is None: continue
            r = st.reads(n)
            if r is None: continue
            p = POS[n]
            if p < 0:
                if i == 0:
                    st.before(0, *r)
                else:
                    steps[i - 1].gap(48 + p, *r)
            else:
                st.gap(p, *r)
    out = []
    for st in steps:
        if st.reads is not None:
            for n in range(0, 16, 2):
                if st.reads(n) is None: continue
                st.pre.setdefault(3 * n, []).append(wait(lgkm=[(st.name, n), (st.name, n + 1)]))
        out.append(interleave(st.mf, st.gaps, st.pre))
    return out

def p_step(ps):
    st = Step(f"P{ps}")
    buf = ps % 4
    for half in range(2):
        for a in range(8):
            for j in range(3):
                m = half * 24 + a * 3 + j
                first = (ps == 0 and half == 0)
                st.mf[m] = mfma(acc(j, a), fr(half * 8 + a), xb(buf, half, j), 'z' if first else None)
    st.reads = lambda n: rd_w(2 * ps + (n >> 3), n & 7, n, st.name)
    st.before(0, wait(vm=[("X", ps, 0)]))
    st.before(24, wait(vm=[("X", ps, 1)]))
    if ps + 3 <= 15:
        r = ps % 4
        for half in range(2):
            for j in range(3):
                st.gap(2 + (half * 3 + j) * 5, buf_load(xb((ps + 3) % 4, half, j), 4, VX0 + j, SX, f"s{sXO}", (2 * r + 6 + half) * 64, tag=("X", ps + 3, half)))
    if ps % 4 == 3: st.gap(33, salu(f"s_add_u32 s{sXO}, s{sXO}, 512"))
    if ps < 15: need = [("W", 2 * ps + 2), ("W", 2 * ps + 3)]
    else: need = [("K", 0)]
    st.before(BAR, wait(vm=need, lgkm="all"), barrier())
    if ps < 12:
        place_dma(st, dma_w(2 * ps + 8) + dma_w(2 * ps + 9))
        st.gap(47, salu(f"s_add_u32 s{sWO0}, s{sWO0}, 0x80000"), salu(f"s_add_u32 s{sWO1}, s{sWO1}, 0x80000"))
    else:
        i = ps - 12
        place_dma(st, dma_k(i) + dma_v(i))
        st.gap(47, salu(f"s_add_u32 s{sKO}, s{sKO}, 0x2000"), salu(f"s_add_u32 s{sVO}, s{sVO}, 0x2000"))
    return st

def qk_mfmas(st, kt1, czero=False):
    par = kt1 & 1
    for t in range(2):
        for u in range(4):
            for j in range(3):
                m = t * 12 + u * 3 + j
                c = None
                if u == 0: c = 'z' if czero else negm(j)
                st.mf[m] = mfma(sreg(par, j, t), fr(t * 4 + u), qf(j, u), c)

def rowmax_code(par, j, dst, tmp):
    a = sreg(par, j, 0)
    return [valu(f"v_max3_f32 v{dst}, v{a}, v{a+1}, v{a+2}"),
            valu(f"v_max3_f32 v{dst}, v{dst}, v{a+3}, v{a+4}"),
            valu(f"v_max3_f32 v{dst}, v{dst}, v{a+5}, v{a+6}"),
            valu(f"v_max_f32 v{dst}, v{dst}, v{a+7}"),
            valu(f"v_mov_b32 v{tmp}, v{dst}"), nop(1),
            valu(f"v_permlane16_swap_b32 v{dst}, v{tmp}"), nop(1),
            valu(f"v_max_f32 v{dst}, v{dst}, v{tmp}"),
            valu(f"v_mov_b32 v{tmp}, v{dst}"), nop(1),
            valu(f"v_permlane32_swap_b32 v{dst}, v{tmp}"), nop(1),
            valu(f"v_max_f32 v{dst}, v{dst}, v{tmp}")]

def q_finalize():
    out = [nop(7), nop(1)]
    for j in range(3):
        for dt in range(8):
            for r in range(4):
                a = acc(j, dt) + r
                out.append(valu(f"v_mul_f32 v{a}, s{sC}, v{a}"))
    for j in range(3):
        for u in range(4):
            q = qf(j, u); a0 = acc(j, 2 * u); a1 = acc(j, 2 * u + 1)
            out += [valu(f"v_cvt_pk_bf16_f32 v{q}, v{a0}, v{a0+1}"), valu(f"v_cvt_pk_bf16_f32 v{q+1}, v{a0+2}, v{a0+3}"),
                    valu(f"v_cvt_pk_bf16_f32 v{q+2}, v{a1}, v{a1+1}"), valu(f"v_cvt_pk_bf16_f32 v{q+3}, v{a1+2}, v{a1+3}")]
    out += [salu("s_mov_b32 exec_lo, 0"), nop(0)]
    for j in range(3):
        for u in range(4):
            q = qf(j, u)
            out += [valu(f"v_swap_b32 v{q}, v{q+2}"), valu(f"v_swap_b32 v{q+1}, v{q+3}")]
    out += [salu("s_mov_b32 exec_lo, -1"), nop(1)]
    return out

def init_step():
    st = Step("A-1")
    qk_mfmas(st, 0, czero=True)
    st.reads = lambda n: rd_k(0, n, n, st.name) if n < 8 else None
    st.before(0, *q_finalize())
    z = [valu(f"v_mov_b32 v{ACC+i}, 0") for i in range(96)]
    for i, ins in enumerate(z): st.gap(i // 4, ins)
    post = [nop(7), nop(1)]
    for j in range(3):
        post += rowmax_code(0, j, TMP, TMP2)
        for r in range(4): post.append(valu(f"v_sub_f32 v{negm(j)+r}, 0, v{TMP}"))
        for r in range(8): post.append(valu(f"v_sub_f32 v{sreg(0,j,0)+r}, v{sreg(0,j,0)+r}, v{TMP}"))
        post.append(valu(f"v_mov_b32 v{L0+j}, 0"))
    st.gap(23, *post)
    for j in range(3): sm_half(st, 24 + 4 * j, 0, j, 0, False)
    st.before(BAR, wait(vm=[("K", 1), ("V", 0)], lgkm="all"), barrier())
    place_dma(st, dma_k(4))
    st.gap(47, salu(f"s_add_u32 s{sKO}, s{sKO}, 0x2000"))
    return st

def a_step(kt):
    st = Step(f"A{kt}")
    par = kt & 1
    qk_mfmas(st, kt + 1)
    for dt in range(8):
        for j in range(3):
            st.mf[24 + dt * 3 + j] = mfma(acc(j, dt), fr(8 + dt), sreg(par, j, 0))
    st.reads = lambda n: rd_k(kt + 1, n, n, st.name) if n < 8 else rd_v(kt, n - 8, n, st.name)
    for j in range(3): sm_half(st, 7 * j, par, j, 1, False)
    st.gap(21, valu(f"v_max3_f32 v{TMP}, v{T0}, v{T0+1}, v{T0+2}"))
    st.gap(22, valu(f"v_cmp_lt_f32 vcc, s{sTH}, v{TMP}"))
    st.gap(23, raw(f"s_cbranch_vccnz L_slow{kt%4}", "branch"), label(f"L_back{kt%4}"))
    for j in range(3): sm_half(st, 24 + 7 * j, 1 - par, j, 0, True)
    st.before(BAR, wait(vm=[("K", kt + 2), ("V", kt + 1)], lgkm="all"), barrier())
    place_dma(st, dma_k(kt + 5) + dma_v(kt + 4))
    st.gap(47, salu(f"s_add_u32 s{sKO}, s{sKO}, 0x2000"), salu(f"s_add_u32 s{sVO}, s{sVO}, 0x2000"))
    return st

def slow_stub(r):
    out = [label(f"L_slow{r}"),
           salu(f"s_sub_u32 s{sKS0}, s{sKO}, {5*8192}"),
           salu(f"s_add_u32 s{sKS1}, s{sKS0}, 4096"),
           raw(f"s_call_b64 s[{sRET}:{sRET+1}], L_rebase{r&1}", "branch")]
    for n in range(8, 16):
        if POS[n] <= 23: out += rd_v(r, n - 8, n, "slow")
    out += [raw("s_waitcnt lgkmcnt(0)"), raw(f"s_branch L_back{r}", "branch")]
    return out

def rebase(par):
    out = [label(f"L_rebase{par}"), raw("s_waitcnt lgkmcnt(0)"), nop(7), nop(7),
           valu(f"v_and_b32 v{TMP}, 15, v{VLANE}"), valu(f"v_lshlrev_b32 v{TMP}, 8, v{TMP}"),
           valu(f"v_lshrrev_b32 v{TMP2}, 4, v{VLANE}"), valu(f"v_lshl_add_u32 v{TMP}, v{TMP2}, 4, v{TMP}")]
    for t in range(2):
        for u in range(4):
            out.append(buf_load(fr(t * 4 + u), 4, TMP, SK, f"s{sKS0 + t}", u * 64, tag="sl"))
    out.append(raw("s_waitcnt vmcnt(0)"))
    for t in range(2):
        for u in range(4):
            for j in range(3):
                out.append(mfma(sreg(par, j, t), fr(t * 4 + u), qf(j, u), negm(j) if u == 0 else None))
    out += [nop(7), nop(7)]
    for j in range(3):
        out += rowmax_code(par, j, TMP, TMP2)
        out.append(valu(f"v_max_f32 v{TMP}, 0, v{TMP}"))
        out.append(valu(f"v_sub_f32 v{TMP2}, 0, v{TMP}"))
        out.append(valu(f"v_exp_f32 v{TMP2}, v{TMP2}"))
        for r in range(4): out.append(valu(f"v_sub_f32 v{negm(j)+r}, v{negm(j)+r}, v{TMP}"))
        for pp in range(2):
            for r in range(8): out.append(valu(f"v_sub_f32 v{sreg(pp,j,0)+r}, v{sreg(pp,j,0)+r}, v{TMP}"))
        out.append(valu(f"v_mul_f32 v{L0+j}, v{L0+j}, v{TMP2}"))
        for r in range(32): out.append(valu(f"v_mul_f32 v{acc(j,0)+r}, v{acc(j,0)+r}, v{TMP2}"))
        a = sreg(par, j, 0); tj = T0 + j
        for r in range(8): out.append(valu(f"v_exp_f32 v{a+r}, v{a+r}"))
        out.append(nop(0))
        out.append(valu(f"v_add_f32 v{tj}, v{a}, v{a+1}"))
        for r in range(2, 8): out.append(valu(f"v_add_f32 v{tj}, v{tj}, v{a+r}"))
        for r in range(4): out.append(valu(f"v_cvt_pk_bf16_f32 v{a+r}, v{a+2*r}, v{a+2*r+1}"))
    out += [nop(3), raw(f"s_setpc_b64 s[{sRET}:{sRET+1}]", "branch")]
    return out

def srd(s, lo, hi, nbytes):
    return [salu(f"s_mov_b32 s{s}, s{lo}"), salu(f"s_and_b32 s{s+1}, s{hi}, 0xffff"),
            salu(f"s_mov_b32 s{s+2}, {nbytes}"), salu(f"s_mov_b32 s{s+3}, 0x00020000")]

def k1_prologue():
    o = [raw("s_cmp_ge_u32 s2, 512", "salu"), raw("s_cbranch_scc1 L1_end", "branch"),
         raw("s_load_dwordx8 s[48:55], s[0:1], 0"),
         raw("s_load_dwordx2 s[56:57], s[0:1], 56"),
         valu(f"v_and_b32 v{VLANE}, 63, v0"), valu(f"v_lshrrev_b32 v{TMP}, 6, v0"), nop(0),
         valu(f"v_readfirstlane_b32 s{sW}, v{TMP}"),
         salu(f"s_and_b32 s{sT0}, s2, 1"), salu(f"s_lshl_b32 s{sT0}, s{sT0}, 3"),
         salu(f"s_lshr_b32 s{sT1}, s2, 3"), salu(f"s_and_b32 s{sB}, s{sT1}, 7"), salu(f"s_add_u32 s{sB}, s{sB}, s{sT0}"),
         salu(f"s_lshr_b32 s{sT0}, s2, 1"), salu(f"s_and_b32 s{sT0}, s{sT0}, 3"), salu(f"s_lshl_b32 s{sT0}, s{sT0}, 3"),
         salu(f"s_lshr_b32 s{sH}, s2, 6"), salu(f"s_add_u32 s{sH}, s{sH}, s{sT0}"),
         raw("s_waitcnt lgkmcnt(0)")]
    o += srd(SX, 48, 49, 16 * 192 * 1024 * 2)
    o += srd(SWQ, 54, 55, 1024 * 4096 * 2)
    o += [salu(f"s_lshl_b32 s{sT0}, s{sB}, 5"), salu(f"s_add_u32 s{sT0}, s{sT0}, s{sH}"), salu(f"s_lshl_b32 s{sT0}, s{sT0}, 18"),
          salu(f"s_add_u32 s50, s50, s{sT0}"), salu("s_addc_u32 s51, s51, 0"),
          salu(f"s_add_u32 s52, s52, s{sT0}"), salu("s_addc_u32 s53, s53, 0")]
    o += srd(SK, 50, 51, 262144) + srd(SV, 52, 53, 262144)
    o += srd(SO, 56, 57, 192 * 128 * 1024)
    A, B, C, D = 2, 3, 4, 5
    V = valu
    o += [salu(f"s_mul_i32 s{sMK}, s{sW}, {2*KP}"), salu(f"s_mul_i32 s{sMV}, s{sW}, {2*VP}"),
          salu(f"s_mov_b32 s{sTH}, {f32(1024.0)}"), salu(f"s_mov_b32 s{sC}, {f32(math.log2(math.e) / math.sqrt(128.0))}"),
          salu(f"s_mov_b32 s{sKO}, 0"), salu(f"s_mov_b32 s{sVO}, 0"),
          salu(f"s_mov_b32 s{sWO0}, 0"), salu(f"s_mov_b32 s{sWO1}, 0x40000"),
          salu(f"s_mul_i32 s{sXO}, s{sB}, 192"), salu(f"s_mul_i32 s{sT0}, s{sW}, 48"), salu(f"s_add_u32 s{sXO}, s{sXO}, s{sT0}"),
          salu(f"s_lshl_b32 s{sXO}, s{sXO}, 11"),
          V(f"v_and_b32 v{A}, 15, v{VLANE}"),
          V(f"v_lshrrev_b32 v{B}, 4, v{VLANE}"),
          V(f"v_lshlrev_b32 v{VX0}, 11, v{A}"), V(f"v_lshl_add_u32 v{VX0}, v{B}, 4, v{VX0}"),
          V(f"v_add_u32 v{VX0+1}, 0x8000, v{VX0}"), V(f"v_add_u32 v{VX0+2}, 0x10000, v{VX0}"),
          V(f"v_and_b32 v{C}, 1, v{B}"), V(f"v_lshlrev_b32 v{C}, 2, v{C}"),
          V(f"v_lshrrev_b32 v{D}, 1, v{B}"), V(f"v_lshl_add_u32 v{C}, v{D}, 4, v{C}"),
          salu(f"s_lshl_b32 s{sT0}, s{sW}, 1"), salu(f"s_and_b32 s{sT0}, s{sT0}, 3"),
          salu(f"s_lshr_b32 s{sT1}, s{sW}, 1"), salu(f"s_lshl_b32 s{sT1}, s{sT1}, 3"), salu(f"s_add_u32 s{sT0}, s{sT0}, s{sT1}"),
          V(f"v_add_u32 v{C}, s{sT0}, v{C}"), V(f"v_lshlrev_b32 v{C}, 13, v{C}"),
          V(f"v_lshl_add_u32 v{C}, v{A}, 4, v{C}"),
          salu(f"s_lshl_b32 s{sT0}, s{sH}, 8"),
          V(f"v_add_u32 v{VDW0}, s{sT0}, v{C}"), V(f"v_add_u32 v{VDW1}, 0x2000, v{VDW0}"),
          ]
    def wpair(i):
        r = []
        for m0i, d in dma_w(i) + dma_w(i + 1): r += [m0i, nop(0), d]
        r += [salu(f"s_add_u32 s{sWO0}, s{sWO0}, 0x80000"), salu(f"s_add_u32 s{sWO1}, s{sWO1}, 0x80000")]
        return r
    def xl(ps):
        return [buf_load(xb(ps, half, j), 4, VX0 + j, SX, f"s{sXO}", (2 * ps + half) * 64, tag=("X", ps, half)) for half in range(2) for j in range(3)]
    o += wpair(0) + xl(0) + wpair(2) + xl(1) + wpair(4) + xl(2) + wpair(6)
    o += [
          V(f"v_lshrrev_b32 v{C}, 2, v{A}"), V(f"v_mul_u32_u24 v{VKR}, {KP}, v{C}"),
          V(f"v_and_b32 v{C}, 3, v{A}"), V(f"v_lshl_add_u32 v{VKR}, v{C}, 8, v{VKR}"),
          V(f"v_xor_b32 v{C}, v{C}, v{B}"), V(f"v_lshl_add_u32 v{VKR}, v{C}, 4, v{VKR}"),
          V(f"v_and_b32 v{C}, 1, v{B}"), V(f"v_lshlrev_b32 v{C}, 2, v{C}"), V(f"v_lshrrev_b32 v{D}, 2, v{A}"), V(f"v_add_u32 v{C}, v{C}, v{D}"),
          V(f"v_mul_u32_u24 v{C}, {VP}, v{C}"),
          V(f"v_lshrrev_b32 v{D}, 1, v{B}"),
          V(f"v_lshl_add_u32 v{VVR}, v{D}, 8, v{C}"),
          V(f"v_lshl_add_u32 v{VWR0}, v{D}, 9, v{C}"),
          V(f"v_and_b32 v{D}, 3, v{A}"),
          V(f"v_lshl_add_u32 v{VVR}, v{D}, 3, v{VVR}"),
          V(f"v_lshl_add_u32 v{VWR0}, v{D}, 4, v{VWR0}"),
          V(f"v_lshrrev_b32 v{D}, 1, v{D}"),
          V(f"v_xor_b32 v{C}, 1, v{D}"),
          V(f"v_lshl_add_u32 v{VWR1}, v{C}, 3, v{VWR0}"),
          V(f"v_lshl_add_u32 v{VWR0}, v{D}, 3, v{VWR0}"),
          V(f"v_and_b32 v{C}, 3, v{A}"), V(f"v_xor_b32 v{C}, v{C}, v{B}"), V(f"v_and_b32 v{D}, 12, v{A}"), V(f"v_or_b32 v{C}, v{C}, v{D}"),
          V(f"v_lshlrev_b32 v{C}, 4, v{C}"), V(f"v_lshl_add_u32 v{C}, v{B}, 8, v{C}"),
          salu(f"s_lshl_b32 s{sT0}, s{sW}, 11"), V(f"v_add_u32 v{VDK}, s{sT0}, v{C}"),
          V(f"v_lshlrev_b32 v{C}, 4, v{A}"), V(f"v_lshl_add_u32 v{C}, v{B}, 11, v{C}"),
          salu(f"s_lshl_b32 s{sT0}, s{sW}, 9"), V(f"v_add_u32 v{VDV}, s{sT0}, v{C}"),
          wait(vm=[("W", 0), ("W", 1)]), barrier()]
    return o

def k1_epilogue():
    o = [nop(7), nop(1)]
    V = valu
    o += [salu(f"s_mul_i32 s{sT0}, s{sB}, 12"), salu(f"s_mul_i32 s{sT1}, s{sW}, 3"), salu(f"s_add_u32 s{sT0}, s{sT0}, s{sT1}"),
          salu(f"s_lshl_b32 s{sT0}, s{sT0}, 17"), salu(f"s_lshl_b32 s{sT1}, s{sH}, 12"), salu(f"s_add_u32 s{sT0}, s{sT0}, s{sT1}"),
          V(f"v_lshlrev_b32 v{TMP3}, 4, v{VLANE}")]
    for j in range(3):
        l = L0 + j
        o += [V(f"v_mov_b32 v{TMP}, v{l}"), nop(1), V(f"v_permlane16_swap_b32 v{l}, v{TMP}"), nop(1), V(f"v_add_f32 v{l}, v{l}, v{TMP}"),
              V(f"v_mov_b32 v{TMP}, v{l}"), nop(1), V(f"v_permlane32_swap_b32 v{l}, v{TMP}"), nop(1), V(f"v_add_f32 v{l}, v{l}, v{TMP}"),
              V(f"v_rcp_f32 v{l}, v{l}"), nop(0)]
        for u in range(4):
            a = acc(j, 2 * u)
            for r in range(8): o.append(V(f"v_mul_f32 v{a+r}, v{a+r}, v{l}"))
            q = qf(j, u)
            for r in range(4): o.append(V(f"v_cvt_pk_bf16_f32 v{q+r}, v{a+2*r}, v{a+2*r+1}"))
            o.append(buf_store(q, 4, TMP3, SO, f"s{sT0}", u * 1024, tag="st"))
        if j < 2: o.append(salu(f"s_add_u32 s{sT0}, s{sT0}, 0x20000"))
    return o

def gen_k1():
    pro = k1_prologue()
    steps = [p_step(ps) for ps in range(16)] + [init_step()] + [a_step(kt) for kt in range(33)]
    lin = link(steps)[:-1]
    epi = k1_epilogue()
    full = pro + [x for s in lin for x in s] + epi
    errs, _, _ = resolve_waits(full)
    errs += check_hazards(full)
    subs = []
    for r in range(4): subs += slow_stub(r)
    for par in range(2):
        rb = rebase(par)
        errs += check_hazards(rb)
        subs += rb
    if errs:
        print("\n".join(errs[:40]), file=sys.stderr); raise SystemExit("generation errors: %d" % len(errs))
    def grp(lo, n): return [x for s in lin[lo:lo + n] for x in s]
    out = list(pro)
    out += grp(0, 4)
    out += [salu(f"s_mov_b32 s{sCNT}, 2"), label("L1_ploop")]
    out += fold([grp(4, 4), grp(8, 4)])
    out += [salu(f"s_sub_u32 s{sCNT}, s{sCNT}, 1"), salu(f"s_cmp_lg_u32 s{sCNT}, 0"), raw("s_cbranch_scc1 L1_ploop", "branch")]
    out += grp(12, 5)
    out += [salu(f"s_mov_b32 s{sCNT}, 8"), label("L1_aloop")]
    out += fold([grp(17 + 4 * i, 4) for i in range(8)])
    out += [salu(f"s_sub_u32 s{sCNT}, s{sCNT}, 1"), salu(f"s_cmp_lg_u32 s{sCNT}, 0"), raw("s_cbranch_scc1 L1_aloop", "branch")]
    out += epi
    out += [label("L1_end"), raw("s_endpgm")]
    out += subs
    return out

if __name__ == "__main__":
    print(emit(gen_k1()))
```

```python
import sys
from asmlib import *
import gen1 as G
from gen1 import Step, link, acc, fr, xb, POS, BAR, VLANE, TMP, TMP2, TMP3, ACC, srd, VP

SLW = 8448
VDW = 16
VX0 = 20
VWR0 = 23
SOB, SWO, SOUT = 4, 8, 12
sW, sMG, sNB, sMH, sKH = 24, 25, 26, 27, 28
sXO, sWO0, sWO1, sCNT, sM0, sT0, sT1 = 29, 30, 31, 32, 33, 34, 35
DG = [37, 38, 40, 41, 43, 44, 46, 47]
NST = 32

def rd_w(tile, a, n, tagp):
    u, T = a >> 1, a & 1
    base = (tile % 8) * SLW + u * 64
    va = VWR0 + T
    return [ds_read("ds_read_b64_tr_b16", fr(n), 2, va, base, tag=(tagp, n)),
            ds_read("ds_read_b64_tr_b16", fr(n) + 2, 2, va, base + 512, tag=(tagp, n))]
def dma_w(i):
    s = (i % 8) * SLW
    so = f"s{sWO0 + (i & 1)}"
    return [(salu(f"s_add_u32 m0, s{sM0}, {s + e * VP}"), buf_dma(VDW + e, SWO, so, 0, tag=("W", i))) for e in range(4)]
def xl(ps, half, j):
    return buf_load(xb(ps % 4, half, j), 4, VX0 + j, SOB, f"s{sXO}", half * 1024, tag=("X", ps, half))

def o_step(ps):
    st = Step(f"O{ps}")
    buf = ps % 4
    for half in range(2):
        for a in range(8):
            for j in range(3):
                st.mf[half * 24 + a * 3 + j] = mfma(acc(j, a), fr(half * 8 + a), xb(buf, half, j))
    st.reads = lambda n: rd_w(2 * ps + (n >> 3), n & 7, n, st.name)
    st.before(0, wait(vm=[("X", ps, 0)]))
    st.before(24, wait(vm=[("X", ps, 1)]))
    if ps + 3 < NST:
        for half in range(2):
            for j in range(3):
                st.gap(2 + (half * 3 + j) * 5, xl(ps + 3, half, j))
        st.gap(33, salu(f"s_add_u32 s{sXO}, s{sXO}, 2048"))
    if ps < NST - 1:
        st.before(BAR, wait(vm=[("W", 2 * ps + 2), ("W", 2 * ps + 3)], lgkm="all"), barrier())
    if ps + 4 < NST:
        for (m0i, d), g in zip(dma_w(2 * ps + 8) + dma_w(2 * ps + 9), DG):
            st.before(g, m0i); st.gap(g, d)
        st.gap(47, salu(f"s_add_u32 s{sWO0}, s{sWO0}, 0x20000"), salu(f"s_add_u32 s{sWO1}, s{sWO1}, 0x20000"))
    return st

def prologue():
    V = valu
    A, B, C, D = 2, 3, 4, 5
    o = [raw("s_cmp_ge_u32 s2, 256", "salu"), raw("s_cbranch_scc1 L3_end", "branch"),
         raw("s_load_dwordx4 s[48:51], s[0:1], 32"),
         raw("s_load_dwordx2 s[56:57], s[0:1], 56"),
         V(f"v_and_b32 v{VLANE}, 63, v0"), V(f"v_lshrrev_b32 v{TMP}, 6, v0"), nop(0),
         V(f"v_readfirstlane_b32 s{sW}, v{TMP}"),
         salu(f"s_lshr_b32 s{sT0}, s2, 1"), salu(f"s_and_b32 s{sT0}, s{sT0}, 3"), salu(f"s_lshl_b32 s{sT0}, s{sT0}, 3"),
         salu(f"s_lshr_b32 s{sT1}, s2, 3"), salu(f"s_and_b32 s{sT1}, s{sT1}, 7"), salu(f"s_add_u32 s{sMG}, s{sT0}, s{sT1}"),
         salu(f"s_and_b32 s{sT0}, s2, 1"), salu(f"s_lshl_b32 s{sT0}, s{sT0}, 2"), salu(f"s_lshr_b32 s{sT1}, s2, 6"),
         salu(f"s_add_u32 s{sNB}, s{sT0}, s{sT1}"),
         salu(f"s_and_b32 s{sMH}, s{sW}, 1"), salu(f"s_lshr_b32 s{sKH}, s{sW}, 1"),
         raw("s_waitcnt lgkmcnt(0)")]
    o += srd(SOB, 56, 57, 192 * 128 * 1024) + srd(SWO, 48, 49, 4096 * 1024 * 2) + srd(SOUT, 50, 51, 3072 * 1024 * 2)
    o += [
          salu(f"s_mul_i32 s{sM0}, s{sKH}, {8*SLW}"), salu(f"s_mul_i32 s{sT0}, s{sMH}, {4*VP}"), salu(f"s_add_u32 s{sM0}, s{sM0}, s{sT0}"),
          salu(f"s_lshl_b32 s{sWO0}, s{sKH}, 22"), salu(f"s_add_u32 s{sWO1}, s{sWO0}, 0x10000"),
          salu(f"s_mul_i32 s{sXO}, s{sMG}, 6"), salu(f"s_mul_i32 s{sT0}, s{sMH}, 3"), salu(f"s_add_u32 s{sXO}, s{sXO}, s{sT0}"),
          salu(f"s_lshl_b32 s{sXO}, s{sXO}, 17"), salu(f"s_lshl_b32 s{sT0}, s{sKH}, 16"), salu(f"s_add_u32 s{sXO}, s{sXO}, s{sT0}"),
          V(f"v_and_b32 v{A}, 15, v{VLANE}"), V(f"v_lshrrev_b32 v{B}, 4, v{VLANE}"),
          V(f"v_lshlrev_b32 v{VX0}, 4, v{VLANE}"), V(f"v_add_u32 v{VX0+1}, 0x20000, v{VX0}"), V(f"v_add_u32 v{VX0+2}, 0x40000, v{VX0}"),
          V(f"v_lshlrev_b32 v{C}, 14, v{B}"), V(f"v_lshl_add_u32 v{C}, v{A}, 4, v{C}"),
          salu(f"s_lshl_b32 s{sT0}, s{sMH}, 13"), salu(f"s_lshl_b32 s{sT1}, s{sNB}, 8"), salu(f"s_add_u32 s{sT0}, s{sT0}, s{sT1}"),
          V(f"v_add_u32 v{VDW}, s{sT0}, v{C}"), V(f"v_add_u32 v{VDW+1}, 0x800, v{VDW}"),
          V(f"v_add_u32 v{VDW+2}, 0x1000, v{VDW}"), V(f"v_add_u32 v{VDW+3}, 0x1800, v{VDW}")]
    def wpair(i):
        r = []
        for m0i, d in dma_w(i) + dma_w(i + 1): r += [m0i, nop(0), d]
        r += [salu(f"s_add_u32 s{sWO0}, s{sWO0}, 0x20000"), salu(f"s_add_u32 s{sWO1}, s{sWO1}, 0x20000")]
        return r
    def xs(ps):
        return [xl(ps, half, j) for half in range(2) for j in range(3)] + [salu(f"s_add_u32 s{sXO}, s{sXO}, 2048")]
    o += wpair(0) + xs(0) + wpair(2) + xs(1) + wpair(4) + xs(2) + wpair(6)
    o += [
          V(f"v_and_b32 v{C}, 1, v{B}"), V(f"v_lshlrev_b32 v{C}, 2, v{C}"), V(f"v_lshrrev_b32 v{D}, 2, v{A}"), V(f"v_add_u32 v{C}, v{C}, v{D}"),
          V(f"v_mul_u32_u24 v{C}, {VP}, v{C}"),
          V(f"v_lshrrev_b32 v{D}, 1, v{B}"), V(f"v_lshl_add_u32 v{C}, v{D}, 8, v{C}"),
          V(f"v_and_b32 v{D}, 3, v{A}"), V(f"v_lshl_add_u32 v{C}, v{D}, 4, v{C}"),
          salu(f"s_mul_i32 s{sT0}, s{sKH}, {8*SLW}"), V(f"v_add_u32 v{C}, s{sT0}, v{C}"),
          V(f"v_lshrrev_b32 v{D}, 1, v{D}"), V(f"v_lshl_add_u32 v{VWR0}, v{D}, 3, v{C}"),
          V(f"v_xor_b32 v{D}, 1, v{D}"), V(f"v_lshl_add_u32 v{VWR0+1}, v{D}, 3, v{C}")]
    o += [V(f"v_mov_b32 v{ACC+i}, 0") for i in range(96)]
    o += [wait(vm=[("W", 0), ("W", 1)]), barrier()]
    return o

def epi_path(kh):
    V = valu
    keep = [2 * kh, 2 * kh + 1]; send = [2 - 2 * kh, 3 - 2 * kh]
    o = []
    idx = 0
    for j in range(3):
        for u in send:
            for T in range(2):
                o.append(ds_write("ds_write_b128", TMP, acc(j, 2 * u + T), 4, idx * 1024, tag="w")); idx += 1
    o += [wait(lgkm="all"), barrier()]
    idx = 0
    RB = G.SP
    for j in range(3):
        for u in keep:
            for T in range(2):
                o.append(ds_read("ds_read_b128", RB + idx * 4, 4, TMP2, idx * 1024, tag=("r", idx))); idx += 1
    idx = 0
    QB = G.QR
    for j in range(3):
        for ui, u in enumerate(keep):
            o.append(wait(lgkm=[("r", idx), ("r", idx + 1)]))
            a = acc(j, 2 * u)
            for r in range(8): o.append(V(f"v_add_f32 v{a+r}, v{a+r}, v{RB+idx*4+r}"))
            q = QB + (j * 2 + ui) * 4
            for r in range(4): o.append(V(f"v_cvt_pk_bf16_f32 v{q+r}, v{a+2*r}, v{a+2*r+1}"))
            idx += 2
    o += [salu("s_mov_b32 exec_lo, 0"), nop(0)]
    for k in range(6):
        q = QB + k * 4
        o += [V(f"v_swap_b32 v{q}, v{q+2}"), V(f"v_swap_b32 v{q+1}, v{q+3}")]
    o += [salu("s_mov_b32 exec_lo, -1"), nop(1)]
    for j in range(3):
        for ui, u in enumerate(keep):
            o.append(buf_store(QB + (j * 2 + ui) * 4, 4, TMP3, SOUT, f"s{sT0}", u * 64, tag="st"))
        if j < 2: o.append(salu(f"s_add_u32 s{sT0}, s{sT0}, 0x8000"))
    return o

def gen_k3():
    V = valu
    pro = prologue()
    steps = [o_step(ps) for ps in range(NST)]
    lin = link(steps)
    mid = [nop(7), nop(1), barrier(),
           salu(f"s_mul_i32 s{sT0}, s{sW}, 12288"), V(f"v_lshlrev_b32 v{TMP2}, 4, v{VLANE}"), V(f"v_add_u32 v{TMP}, s{sT0}, v{TMP2}"),
           salu(f"s_xor_b32 s{sT1}, s{sW}, 2"), salu(f"s_mul_i32 s{sT1}, s{sT1}, 12288"), V(f"v_add_u32 v{TMP2}, s{sT1}, v{TMP2}"),
           V(f"v_and_b32 v{TMP3}, 15, v{VLANE}"), V(f"v_lshlrev_b32 v{TMP3}, 11, v{TMP3}"), V(f"v_lshrrev_b32 v2, 4, v{VLANE}"),
           V(f"v_lshl_add_u32 v{TMP3}, v2, 4, v{TMP3}"),
           salu(f"s_mul_i32 s{sT0}, s{sMG}, 96"), salu(f"s_mul_i32 s{sT1}, s{sMH}, 48"), salu(f"s_add_u32 s{sT0}, s{sT0}, s{sT1}"),
           salu(f"s_lshl_b32 s{sT0}, s{sT0}, 11"), salu(f"s_lshl_b32 s{sT1}, s{sNB}, 8"), salu(f"s_add_u32 s{sT0}, s{sT0}, s{sT1}"),
           salu(f"s_cmp_lg_u32 s{sKH}, 0"), raw("s_cbranch_scc1 L3_epi1", "branch")]
    e0 = epi_path(0); e1 = epi_path(1)
    body = pro + [x for s in lin for x in s] + mid
    errs = []
    for e in (e0, e1):
        full = body + e
        er, _, _ = resolve_waits(full)
        errs += er + check_hazards(full)
    if errs:
        print("\n".join(errs[:40]), file=sys.stderr); raise SystemExit("generation errors: %d" % len(errs))
    def grp(lo, n): return [x for s in lin[lo:lo + n] for x in s]
    out = list(pro)
    out += grp(0, 4)
    out += [salu(f"s_mov_b32 s{sCNT}, 6"), label("L3_loop")]
    out += fold([grp(4 * i, 4) for i in range(1, 7)])
    out += [salu(f"s_sub_u32 s{sCNT}, s{sCNT}, 1"), salu(f"s_cmp_lg_u32 s{sCNT}, 0"), raw("s_cbranch_scc1 L3_loop", "branch")]
    out += grp(28, 4)
    out += mid + e0 + [raw("s_endpgm"), label("L3_epi1")] + e1
    out += [label("L3_end"), raw("s_endpgm")]
    return out

if __name__ == "__main__":
    print(emit(gen_k3()))
```

```python
import sys
from asmlib import emit
import gen1, gen3
HDR = open("standalone__mha_block_cached__near_ridge.s.ref").read().split("; Override")[0]
def kd(name, vgpr, sgpr):
    return f""".amdhsa_kernel {name}
  .amdhsa_next_free_vgpr {vgpr}
  .amdhsa_next_free_sgpr {sgpr}
  .amdhsa_accum_offset {min(256,(vgpr+3)//4*4)}
  .amdhsa_group_segment_fixed_size 0
  .amdhsa_kernarg_size 64
  .amdhsa_user_sgpr_count 2
  .amdhsa_user_sgpr_kernarg_segment_ptr 1
  .amdhsa_system_sgpr_workgroup_id_x 1
.end_amdhsa_kernel
"""
def main(path):
    k1 = emit(gen1.gen_k1()); k3 = emit(gen3.gen_k3())
    s = HDR
    s += f"; @launch kernel=mha_attn_kernel grid=(512,1,1) block=(256,1,1) lds={8*gen1.SLOT}\n"
    s += f"; @launch kernel=mha_oproj_kernel grid=(256,1,1) block=(256,1,1) lds={16*gen3.SLW}\n"
    s += '.amdgcn_target "amdgcn-amd-amdhsa--gfx950"\n.text\n'
    for name, body in (("mha_attn_kernel", k1), ("mha_oproj_kernel", k3)):
        s += f".globl {name}\n.p2align 8\n.type {name},@function\n{name}:\n{body}\n"
    s += '.section .rodata,"a"\n'
    s += ".p2align 6\n" + kd("mha_attn_kernel", 256, 64) + ".p2align 6\n" + kd("mha_oproj_kernel", 256, 64)
    open(path, "w").write(s)
main(sys.argv[1] if len(sys.argv) > 1 else "standalone__mha_block_cached__near_ridge.s")
```

```python
import sys, math, struct
from asmlib import *

def f32(x): return struct.unpack("<I", struct.pack("<f", x))[0]

SLOT = 8704
KP, VP = 1088, 1056

L0, T0, TMP, TMP2 = 1, 4, 7, 8
VKR, VVR, VDK, VDV = 9, 10, 11, 12
VLANE = 13
TMP3, TMP4 = 14, 15
NM = 16
VDW0, VDW1, VX0, VWR0, VWR1 = 16, 17, 18, 21, 22
FR = 28
SP = 64
QR = 112
ACC = 160
def acc(j, dt): return ACC + (j * 8 + dt) * 4
def qf(j, u): return QR + (j * 4 + u) * 4
def sreg(par, j, t): return SP + par * 24 + j * 8 + t * 4
def negm(j): return NM + 4 * j
def fr(n): return FR + 4 * (n % 8)
def xb(buf, half, j): return SP + buf * 24 + (half * 3 + j) * 4

SX, SWQ, SK, SV, SO = 4, 8, 12, 16, 20
sW, sB, sH = 24, 25, 26
sXO, sWO0, sWO1, sKO, sVO, sCNT, sMK, sMV, sTH, sC = 27, 28, 29, 30, 31, 32, 33, 34, 35, 36
sT0, sT1 = 37, 38
sRET = 40
sEX = 42
sKS0, sKS1 = 44, 45

POS = {0: -12, 1: -11, 2: -10, 3: -9, 4: -8, 5: -6, 6: -3, 7: 3}
for n in range(8, 16): POS[n] = 3 * n - 18
BAR = 36
DMA_GAPS = [37, 40, 43, 46]

class Step:
    def __init__(self, name):
        self.name = name
        self.mf = [None] * 48
        self.gaps = {}
        self.pre = {}
        self.reads = None
        self.has_bar = True
    def gap(self, m, *ins): self.gaps.setdefault(m, []).extend(ins)
    def before(self, m, *ins): self.pre.setdefault(m, []).extend(ins)

def k_slot(i): return (2 * (i % 4)) * SLOT
def v_slot(i): return (2 * (i % 4) + 1) * SLOT
def w_slot(i): return (i % 8) * SLOT

def rd_w(tile, a, n, tagp):
    u, T = a >> 1, a & 1
    base = w_slot(tile) + u * 64
    va = VWR0 + T
    return [ds_read("ds_read_b64_tr_b16", fr(n), 2, va, base, tag=(tagp, n)),
            ds_read("ds_read_b64_tr_b16", fr(n) + 2, 2, va, base + 256, tag=(tagp, n))]
def rd_k(tile, a, n, tagp):
    t, u = a >> 2, a & 3
    return [ds_read("ds_read_b128", fr(n), 4, VKR, k_slot(tile) + t * 4 * KP + u * 64, tag=(tagp, n))]
def rd_v(tile, dt, n, tagp):
    base = v_slot(tile) + dt * 32
    return [ds_read("ds_read_b64_tr_b16", fr(n), 2, VVR, base, tag=(tagp, n)),
            ds_read("ds_read_b64_tr_b16", fr(n) + 2, 2, VVR, base + 512, tag=(tagp, n))]

import os
KVFLAGS = os.environ.get("KVF", " nt")
XFLAGS = os.environ.get("XF", "")
WQFLAGS = os.environ.get("WQF", "")
OSTFLAGS = os.environ.get("OSF", "")
def dma_k(i):
    s = k_slot(i)
    return [(salu(f"s_add_u32 m0, s{sMK}, {s}"), buf_dma(VDK, SK, f"s{sKO}", 0, tag=("K", i), flags=KVFLAGS)),
            (salu(f"s_add_u32 m0, s{sMK}, {s + KP - 1024}"), buf_dma(VDK, SK, f"s{sKO}", 1024, tag=("K", i), flags=KVFLAGS))]
def dma_v(i):
    s = v_slot(i)
    return [(salu(f"s_add_u32 m0, s{sMV}, {s}"), buf_dma(VDV, SV, f"s{sVO}", 0, tag=("V", i), flags=KVFLAGS)),
            (salu(f"s_add_u32 m0, s{sMV}, {s + VP - 256}"), buf_dma(VDV, SV, f"s{sVO}", 256, tag=("V", i), flags=KVFLAGS))]
def dma_w(i):
    s = w_slot(i)
    so = f"s{sWO0 + (i & 1)}"
    return [(salu(f"s_add_u32 m0, s{sMV}, {s}"), buf_dma(VDW0, SWQ, so, 0, tag=("W", i), flags=WQFLAGS)),
            (salu(f"s_add_u32 m0, s{sMV}, {s + VP}"), buf_dma(VDW1, SWQ, so, 0, tag=("W", i), flags=WQFLAGS))]

def place_dma(st, pairs):
    for (m0i, d), g in zip(pairs, DMA_GAPS):
        st.before(g, m0i)
        if st.mf[g] is None: st.before(g, nop(0))
        st.gap(g, d)

def sm_half(st, g0, par, j, t, first_l):
    a = sreg(par, j, t); p = sreg(par, j, 0) + 2 * t; tj = T0 + j; lj = L0 + j
    for r in range(4): st.gap(g0 + r, valu(f"v_exp_f32 v{a+r}, v{a+r}"))
    if t == 0:
        if first_l: st.gap(g0 + 4, valu(f"v_add_f32 v{lj}, v{lj}, v{tj}"))
        st.gap(g0 + 4, valu(f"v_add_f32 v{tj}, v{a}, v{a+1}"))
    else:
        st.gap(g0 + 4, valu(f"v_add_f32 v{tj}, v{tj}, v{a}"), valu(f"v_add_f32 v{tj}, v{tj}, v{a+1}"))
    st.gap(g0 + 5, valu(f"v_cvt_pk_bf16_f32 v{p}, v{a}, v{a+1}"), valu(f"v_add_f32 v{tj}, v{tj}, v{a+2}"))
    st.gap(g0 + 6, valu(f"v_add_f32 v{tj}, v{tj}, v{a+3}"), valu(f"v_cvt_pk_bf16_f32 v{p+1}, v{a+2}, v{a+3}"))

def link(steps):
    for i, st in enumerate(steps):
        for n in range(16):
            if st.reads is None: continue
            r = st.reads(n)
            if r is None: continue
            p = POS[n]
            if p < 0:
                if i == 0:
                    st.before(0, *r)
                else:
                    steps[i - 1].gap(48 + p, *r)
            else:
                st.gap(p, *r)
    out = []
    for st in steps:
        if st.reads is not None:
            for n in range(0, 16, 2):
                if st.reads(n) is None: continue
                st.pre.setdefault(3 * n, []).append(wait(lgkm=[(st.name, n), (st.name, n + 1)]))
        out.append(interleave(st.mf, st.gaps, st.pre))
    return out

def p_step(ps):
    st = Step(f"P{ps}")
    buf = ps % 4
    for half in range(2):
        for a in range(8):
            for j in range(3):
                m = half * 24 + a * 3 + j
                first = (ps == 0 and half == 0)
                st.mf[m] = mfma(acc(j, a), fr(half * 8 + a), xb(buf, half, j), 'z' if first else None)
    st.reads = lambda n: rd_w(2 * ps + (n >> 3), n & 7, n, st.name)
    st.before(0, wait(vm=[("X", ps, 0)]))
    st.before(24, wait(vm=[("X", ps, 1)]))
    if ps + 3 <= 15:
        r = ps % 4
        for half in range(2):
            for j in range(3):
                st.gap(2 + (half * 3 + j) * 5, buf_load(xb((ps + 3) % 4, half, j), 4, VX0 + j, SX, f"s{sXO}", (2 * r + 6 + half) * 64, tag=("X", ps + 3, half), flags=XFLAGS))
    if ps % 4 == 3: st.gap(33, salu(f"s_add_u32 s{sXO}, s{sXO}, 512"))
    if ps < 15: need = [("W", 2 * ps + 2), ("W", 2 * ps + 3)]
    else: need = [("K", 0)]
    st.before(BAR, wait(vm=need, lgkm="all"), barrier())
    if ps < 12:
        place_dma(st, dma_w(2 * ps + 8) + dma_w(2 * ps + 9))
        st.gap(47, salu(f"s_add_u32 s{sWO0}, s{sWO0}, 0x80000"), salu(f"s_add_u32 s{sWO1}, s{sWO1}, 0x80000"))
    else:
        i = ps - 12
        place_dma(st, dma_k(i) + dma_v(i))
        st.gap(47, salu(f"s_add_u32 s{sKO}, s{sKO}, 0x2000"), salu(f"s_add_u32 s{sVO}, s{sVO}, 0x2000"))
    return st

def qk_mfmas(st, kt1, czero=False):
    par = kt1 & 1
    for t in range(2):
        for u in range(4):
            for j in range(3):
                m = t * 12 + u * 3 + j
                c = None
                if u == 0: c = 'z' if czero else negm(j)
                st.mf[m] = mfma(sreg(par, j, t), fr(t * 4 + u), qf(j, u), c)

def rowmax_code(par, j, dst, tmp):
    a = sreg(par, j, 0)
    return [valu(f"v_max3_f32 v{dst}, v{a}, v{a+1}, v{a+2}"),
            valu(f"v_max3_f32 v{dst}, v{dst}, v{a+3}, v{a+4}"),
            valu(f"v_max3_f32 v{dst}, v{dst}, v{a+5}, v{a+6}"),
            valu(f"v_max_f32 v{dst}, v{dst}, v{a+7}"),
            valu(f"v_mov_b32 v{tmp}, v{dst}"), nop(1),
            valu(f"v_permlane16_swap_b32 v{dst}, v{tmp}"), nop(1),
            valu(f"v_max_f32 v{dst}, v{dst}, v{tmp}"),
            valu(f"v_mov_b32 v{tmp}, v{dst}"), nop(1),
            valu(f"v_permlane32_swap_b32 v{dst}, v{tmp}"), nop(1),
            valu(f"v_max_f32 v{dst}, v{dst}, v{tmp}")]

def q_finalize():
    out = [nop(7), nop(1)]
    for j in range(3):
        for dt in range(8):
            for r in range(4):
                a = acc(j, dt) + r
                out.append(valu(f"v_mul_f32 v{a}, s{sC}, v{a}"))
    for j in range(3):
        for u in range(4):
            q = qf(j, u); a0 = acc(j, 2 * u); a1 = acc(j, 2 * u + 1)
            out += [valu(f"v_cvt_pk_bf16_f32 v{q}, v{a0}, v{a0+1}"), valu(f"v_cvt_pk_bf16_f32 v{q+1}, v{a0+2}, v{a0+3}"),
                    valu(f"v_cvt_pk_bf16_f32 v{q+2}, v{a1}, v{a1+1}"), valu(f"v_cvt_pk_bf16_f32 v{q+3}, v{a1+2}, v{a1+3}")]
    out += [salu("s_mov_b32 exec_lo, 0"), nop(0)]
    for j in range(3):
        for u in range(4):
            q = qf(j, u)
            out += [valu(f"v_swap_b32 v{q}, v{q+2}"), valu(f"v_swap_b32 v{q+1}, v{q+3}")]
    out += [salu("s_mov_b32 exec_lo, -1"), nop(1)]
    return out

def init_step():
    st = Step("A-1")
    qk_mfmas(st, 0, czero=True)
    st.reads = lambda n: rd_k(0, n, n, st.name) if n < 8 else None
    st.before(0, *q_finalize())
    z = [valu(f"v_mov_b32 v{ACC+i}, 0") for i in range(96)]
    for i, ins in enumerate(z): st.gap(i // 4, ins)
    post = [nop(7), nop(1)]
    for j in range(3):
        post += rowmax_code(0, j, TMP, TMP2)
        for r in range(4): post.append(valu(f"v_sub_f32 v{negm(j)+r}, 0, v{TMP}"))
        for r in range(8): post.append(valu(f"v_sub_f32 v{sreg(0,j,0)+r}, v{sreg(0,j,0)+r}, v{TMP}"))
        post.append(valu(f"v_mov_b32 v{L0+j}, 0"))
    st.gap(23, *post)
    for j in range(3): sm_half(st, 24 + 4 * j, 0, j, 0, False)
    st.before(BAR, wait(vm=[("K", 1), ("V", 0)], lgkm="all"), barrier())
    place_dma(st, dma_k(4))
    st.gap(47, salu(f"s_add_u32 s{sKO}, s{sKO}, 0x2000"))
    return st

def a_step(kt):
    st = Step(f"A{kt}")
    par = kt & 1
    qk_mfmas(st, kt + 1)
    for dt in range(8):
        for j in range(3):
            st.mf[24 + dt * 3 + j] = mfma(acc(j, dt), fr(8 + dt), sreg(par, j, 0))
    st.reads = lambda n: rd_k(kt + 1, n, n, st.name) if n < 8 else rd_v(kt, n - 8, n, st.name)
    for j in range(3): sm_half(st, 7 * j, par, j, 1, False)
    st.gap(21, valu(f"v_max3_f32 v{TMP}, v{T0}, v{T0+1}, v{T0+2}"))
    st.gap(22, valu(f"v_cmp_lt_f32 vcc, s{sTH}, v{TMP}"))
    st.gap(23, raw(f"s_cbranch_vccnz L_slow{kt%4}", "branch"), label(f"L_back{kt%4}"))
    for j in range(3): sm_half(st, 24 + 7 * j, 1 - par, j, 0, True)
    st.before(BAR, wait(vm=[("K", kt + 2), ("V", kt + 1)], lgkm="all"), barrier())
    place_dma(st, dma_k(kt + 5) + dma_v(kt + 4))
    st.gap(47, salu(f"s_add_u32 s{sKO}, s{sKO}, 0x2000"), salu(f"s_add_u32 s{sVO}, s{sVO}, 0x2000"))
    return st

def slow_stub(r):
    out = [label(f"L_slow{r}"),
           salu(f"s_sub_u32 s{sKS0}, s{sKO}, {5*8192}"),
           salu(f"s_add_u32 s{sKS1}, s{sKS0}, 4096"),
           raw(f"s_call_b64 s[{sRET}:{sRET+1}], L_rebase{r&1}", "branch")]
    for n in range(8, 16):
        if POS[n] <= 23: out += rd_v(r, n - 8, n, "slow")
    out += [raw("s_waitcnt lgkmcnt(0)"), raw(f"s_branch L_back{r}", "branch")]
    return out

def rebase(par):
    out = [label(f"L_rebase{par}"), raw("s_waitcnt lgkmcnt(0)"), nop(7), nop(7),
           valu(f"v_and_b32 v{TMP}, 15, v{VLANE}"), valu(f"v_lshlrev_b32 v{TMP}, 8, v{TMP}"),
           valu(f"v_lshrrev_b32 v{TMP2}, 4, v{VLANE}"), valu(f"v_lshl_add_u32 v{TMP}, v{TMP2}, 4, v{TMP}")]
    for t in range(2):
        for u in range(4):
            out.append(buf_load(fr(t * 4 + u), 4, TMP, SK, f"s{sKS0 + t}", u * 64, tag="sl"))
    out.append(raw("s_waitcnt vmcnt(0)"))
    for t in range(2):
        for u in range(4):
            for j in range(3):
                out.append(mfma(sreg(par, j, t), fr(t * 4 + u), qf(j, u), negm(j) if u == 0 else None))
    out += [nop(7), nop(7)]
    for j in range(3):
        out += rowmax_code(par, j, TMP, TMP2)
        out.append(valu(f"v_max_f32 v{TMP}, 0, v{TMP}"))
        out.append(valu(f"v_sub_f32 v{TMP2}, 0, v{TMP}"))
        out.append(valu(f"v_exp_f32 v{TMP2}, v{TMP2}"))
        for r in range(4): out.append(valu(f"v_sub_f32 v{negm(j)+r}, v{negm(j)+r}, v{TMP}"))
        for pp in range(2):
            for r in range(8): out.append(valu(f"v_sub_f32 v{sreg(pp,j,0)+r}, v{sreg(pp,j,0)+r}, v{TMP}"))
        out.append(valu(f"v_mul_f32 v{L0+j}, v{L0+j}, v{TMP2}"))
        for r in range(32): out.append(valu(f"v_mul_f32 v{acc(j,0)+r}, v{acc(j,0)+r}, v{TMP2}"))
        a = sreg(par, j, 0); tj = T0 + j
        for r in range(8): out.append(valu(f"v_exp_f32 v{a+r}, v{a+r}"))
        out.append(nop(0))
        out.append(valu(f"v_add_f32 v{tj}, v{a}, v{a+1}"))
        for r in range(2, 8): out.append(valu(f"v_add_f32 v{tj}, v{tj}, v{a+r}"))
        for r in range(4): out.append(valu(f"v_cvt_pk_bf16_f32 v{a+r}, v{a+2*r}, v{a+2*r+1}"))
    out += [nop(3), raw(f"s_setpc_b64 s[{sRET}:{sRET+1}]", "branch")]
    return out

def srd(s, lo, hi, nbytes):
    return [salu(f"s_mov_b32 s{s}, s{lo}"), salu(f"s_and_b32 s{s+1}, s{hi}, 0xffff"),
            salu(f"s_mov_b32 s{s+2}, {nbytes}"), salu(f"s_mov_b32 s{s+3}, 0x00020000")]

def k1_prologue():
    o = [raw("s_cmp_ge_u32 s2, 512", "salu"), raw("s_cbranch_scc1 L1_end", "branch"),
         raw("s_load_dwordx8 s[48:55], s[0:1], 0"),
         raw("s_load_dwordx2 s[56:57], s[0:1], 56"),
         valu(f"v_and_b32 v{VLANE}, 63, v0"), valu(f"v_lshrrev_b32 v{TMP}, 6, v0"), nop(0),
         valu(f"v_readfirstlane_b32 s{sW}, v{TMP}"),
         salu(f"s_and_b32 s{sT0}, s2, 1"), salu(f"s_lshl_b32 s{sT0}, s{sT0}, 3"),
         salu(f"s_lshr_b32 s{sT1}, s2, 3"), salu(f"s_and_b32 s{sB}, s{sT1}, 7"), salu(f"s_add_u32 s{sB}, s{sB}, s{sT0}"),
         salu(f"s_lshr_b32 s{sT0}, s2, 1"), salu(f"s_and_b32 s{sT0}, s{sT0}, 3"), salu(f"s_lshl_b32 s{sT0}, s{sT0}, 3"),
         salu(f"s_lshr_b32 s{sH}, s2, 6"), salu(f"s_add_u32 s{sH}, s{sH}, s{sT0}"),
         raw("s_waitcnt lgkmcnt(0)")]
    o += srd(SX, 48, 49, 16 * 192 * 1024 * 2)
    o += srd(SWQ, 54, 55, 1024 * 4096 * 2)
    o += [salu(f"s_lshl_b32 s{sT0}, s{sB}, 5"), salu(f"s_add_u32 s{sT0}, s{sT0}, s{sH}"), salu(f"s_lshl_b32 s{sT0}, s{sT0}, 18"),
          salu(f"s_add_u32 s50, s50, s{sT0}"), salu("s_addc_u32 s51, s51, 0"),
          salu(f"s_add_u32 s52, s52, s{sT0}"), salu("s_addc_u32 s53, s53, 0")]
    o += srd(SK, 50, 51, 262144) + srd(SV, 52, 53, 262144)
    o += srd(SO, 56, 57, 192 * 128 * 1024)
    A, B, C, D = 2, 3, 4, 5
    V = valu
    o += [salu(f"s_mul_i32 s{sMK}, s{sW}, {2*KP}"), salu(f"s_mul_i32 s{sMV}, s{sW}, {2*VP}"),
          salu(f"s_mov_b32 s{sTH}, {f32(1024.0)}"), salu(f"s_mov_b32 s{sC}, {f32(math.log2(math.e) / math.sqrt(128.0))}"),
          salu(f"s_mov_b32 s{sKO}, 0"), salu(f"s_mov_b32 s{sVO}, 0"),
          salu(f"s_mov_b32 s{sWO0}, 0"), salu(f"s_mov_b32 s{sWO1}, 0x40000"),
          salu(f"s_mul_i32 s{sXO}, s{sB}, 192"), salu(f"s_mul_i32 s{sT0}, s{sW}, 48"), salu(f"s_add_u32 s{sXO}, s{sXO}, s{sT0}"),
          salu(f"s_lshl_b32 s{sXO}, s{sXO}, 11"),
          V(f"v_and_b32 v{A}, 15, v{VLANE}"),
          V(f"v_lshrrev_b32 v{B}, 4, v{VLANE}"),
          V(f"v_lshlrev_b32 v{VX0}, 11, v{A}"), V(f"v_lshl_add_u32 v{VX0}, v{B}, 4, v{VX0}"),
          V(f"v_add_u32 v{VX0+1}, 0x8000, v{VX0}"), V(f"v_add_u32 v{VX0+2}, 0x10000, v{VX0}"),
          V(f"v_and_b32 v{C}, 1, v{B}"), V(f"v_lshlrev_b32 v{C}, 2, v{C}"),
          V(f"v_lshrrev_b32 v{D}, 1, v{B}"), V(f"v_lshl_add_u32 v{C}, v{D}, 4, v{C}"),
          salu(f"s_lshl_b32 s{sT0}, s{sW}, 1"), salu(f"s_and_b32 s{sT0}, s{sT0}, 3"),
          salu(f"s_lshr_b32 s{sT1}, s{sW}, 1"), salu(f"s_lshl_b32 s{sT1}, s{sT1}, 3"), salu(f"s_add_u32 s{sT0}, s{sT0}, s{sT1}"),
          V(f"v_add_u32 v{C}, s{sT0}, v{C}"), V(f"v_lshlrev_b32 v{C}, 13, v{C}"),
          V(f"v_lshl_add_u32 v{C}, v{A}, 4, v{C}"),
          salu(f"s_lshl_b32 s{sT0}, s{sH}, 8"),
          V(f"v_add_u32 v{VDW0}, s{sT0}, v{C}"), V(f"v_add_u32 v{VDW1}, 0x2000, v{VDW0}"),
          ]
    def wpair(i):
        r = []
        for m0i, d in dma_w(i) + dma_w(i + 1): r += [m0i, nop(0), d]
        r += [salu(f"s_add_u32 s{sWO0}, s{sWO0}, 0x80000"), salu(f"s_add_u32 s{sWO1}, s{sWO1}, 0x80000")]
        return r
    def xl(ps):
        return [buf_load(xb(ps, half, j), 4, VX0 + j, SX, f"s{sXO}", (2 * ps + half) * 64, tag=("X", ps, half), flags=XFLAGS) for half in range(2) for j in range(3)]
    o += wpair(0) + xl(0) + wpair(2) + xl(1) + wpair(4) + xl(2) + wpair(6)
    o += [
          V(f"v_lshrrev_b32 v{C}, 2, v{A}"), V(f"v_mul_u32_u24 v{VKR}, {KP}, v{C}"),
          V(f"v_and_b32 v{C}, 3, v{A}"), V(f"v_lshl_add_u32 v{VKR}, v{C}, 8, v{VKR}"),
          V(f"v_xor_b32 v{C}, v{C}, v{B}"), V(f"v_lshl_add_u32 v{VKR}, v{C}, 4, v{VKR}"),
          V(f"v_and_b32 v{C}, 1, v{B}"), V(f"v_lshlrev_b32 v{C}, 2, v{C}"), V(f"v_lshrrev_b32 v{D}, 2, v{A}"), V(f"v_add_u32 v{C}, v{C}, v{D}"),
          V(f"v_mul_u32_u24 v{C}, {VP}, v{C}"),
          V(f"v_lshrrev_b32 v{D}, 1, v{B}"),
          V(f"v_lshl_add_u32 v{VVR}, v{D}, 8, v{C}"),
          V(f"v_lshl_add_u32 v{VWR0}, v{D}, 9, v{C}"),
          V(f"v_and_b32 v{D}, 3, v{A}"),
          V(f"v_lshl_add_u32 v{VVR}, v{D}, 3, v{VVR}"),
          V(f"v_lshl_add_u32 v{VWR0}, v{D}, 4, v{VWR0}"),
          V(f"v_lshrrev_b32 v{D}, 1, v{D}"),
          V(f"v_xor_b32 v{C}, 1, v{D}"),
          V(f"v_lshl_add_u32 v{VWR1}, v{C}, 3, v{VWR0}"),
          V(f"v_lshl_add_u32 v{VWR0}, v{D}, 3, v{VWR0}"),
          V(f"v_and_b32 v{C}, 3, v{A}"), V(f"v_xor_b32 v{C}, v{C}, v{B}"), V(f"v_and_b32 v{D}, 12, v{A}"), V(f"v_or_b32 v{C}, v{C}, v{D}"),
          V(f"v_lshlrev_b32 v{C}, 4, v{C}"), V(f"v_lshl_add_u32 v{C}, v{B}, 8, v{C}"),
          salu(f"s_lshl_b32 s{sT0}, s{sW}, 11"), V(f"v_add_u32 v{VDK}, s{sT0}, v{C}"),
          V(f"v_lshlrev_b32 v{C}, 4, v{A}"), V(f"v_lshl_add_u32 v{C}, v{B}, 11, v{C}"),
          salu(f"s_lshl_b32 s{sT0}, s{sW}, 9"), V(f"v_add_u32 v{VDV}, s{sT0}, v{C}"),
          wait(vm=[("W", 0), ("W", 1)]), barrier()]
    return o

def k1_epilogue():
    o = [nop(7), nop(1)]
    V = valu
    o += [salu(f"s_mul_i32 s{sT0}, s{sB}, 12"), salu(f"s_mul_i32 s{sT1}, s{sW}, 3"), salu(f"s_add_u32 s{sT0}, s{sT0}, s{sT1}"),
          salu(f"s_lshl_b32 s{sT0}, s{sT0}, 17"), salu(f"s_lshl_b32 s{sT1}, s{sH}, 12"), salu(f"s_add_u32 s{sT0}, s{sT0}, s{sT1}"),
          V(f"v_lshlrev_b32 v{TMP3}, 4, v{VLANE}")]
    for j in range(3):
        l = L0 + j
        o += [V(f"v_mov_b32 v{TMP}, v{l}"), nop(1), V(f"v_permlane16_swap_b32 v{l}, v{TMP}"), nop(1), V(f"v_add_f32 v{l}, v{l}, v{TMP}"),
              V(f"v_mov_b32 v{TMP}, v{l}"), nop(1), V(f"v_permlane32_swap_b32 v{l}, v{TMP}"), nop(1), V(f"v_add_f32 v{l}, v{l}, v{TMP}"),
              V(f"v_rcp_f32 v{l}, v{l}"), nop(0)]
        for u in range(4):
            a = acc(j, 2 * u)
            for r in range(8): o.append(V(f"v_mul_f32 v{a+r}, v{a+r}, v{l}"))
            q = qf(j, u)
            for r in range(4): o.append(V(f"v_cvt_pk_bf16_f32 v{q+r}, v{a+2*r}, v{a+2*r+1}"))
            o.append(buf_store(q, 4, TMP3, SO, f"s{sT0}", u * 1024, tag="st", flags=OSTFLAGS))
        if j < 2: o.append(salu(f"s_add_u32 s{sT0}, s{sT0}, 0x20000"))
    return o

STAMP = False
def stamp(i):
    if not STAMP: return []
    return [raw(f"s_memrealtime s[{64+4*i}:{65+4*i}]"), raw(f"s_memtime s[{66+4*i}:{67+4*i}]")]
def stamp_store(n, wsoff, srdreg, nwg_stride=4):
    if not STAMP: return []
    o = [raw("s_waitcnt lgkmcnt(0)"), salu(f"s_mov_b32 s{srdreg+2}, 0x20000000"),
         salu(f"s_lshl_b32 s60, s2, 2"), salu(f"s_add_u32 s60, s60, s24"), salu("s_lshl_b32 s60, s60, 6"), salu(f"s_add_u32 s60, s60, {wsoff}"),
         valu(f"v_mov_b32 v2, 0"), salu("s_mov_b64 exec, 1")]
    for i in range(n):
        o += [valu(f"v_mov_b32 v4, s{64+4*i}"), valu(f"v_mov_b32 v5, s{66+4*i}"), buf_store(4, 2, 2, srdreg, "s60", 8 * i, tag="dbg"), nop(1)]
    return o

def gen_k1():
    pro = k1_prologue()
    steps = [p_step(ps) for ps in range(16)] + [init_step()] + [a_step(kt) for kt in range(33)]
    lin = link(steps)[:-1]
    epi = k1_epilogue()
    full = pro + [x for s in lin for x in s] + epi
    errs, _, _ = resolve_waits(full)
    errs += check_hazards(full)
    subs = []
    for r in range(4): subs += slow_stub(r)
    for par in range(2):
        rb = rebase(par)
        errs += check_hazards(rb)
        subs += rb
    if errs:
        print("\n".join(errs[:40]), file=sys.stderr); raise SystemExit("generation errors: %d" % len(errs))
    def grp(lo, n): return [x for s in lin[lo:lo + n] for x in s]
    out = pro[:2] + stamp(0) + pro[2:]
    out += grp(0, 4)
    out += [salu(f"s_mov_b32 s{sCNT}, 2"), label("L1_ploop")]
    out += fold([grp(4, 4), grp(8, 4)])
    out += [salu(f"s_sub_u32 s{sCNT}, s{sCNT}, 1"), salu(f"s_cmp_lg_u32 s{sCNT}, 0"), raw("s_cbranch_scc1 L1_ploop", "branch")]
    out += grp(12, 4) + stamp(1) + grp(16, 1) + stamp(2)
    out += [salu(f"s_mov_b32 s{sCNT}, 8"), label("L1_aloop")]
    out += fold([grp(17 + 4 * i, 4) for i in range(8)])
    out += [salu(f"s_sub_u32 s{sCNT}, s{sCNT}, 1"), salu(f"s_cmp_lg_u32 s{sCNT}, 0"), raw("s_cbranch_scc1 L1_aloop", "branch")]
    out += stamp(3) + epi + stamp(4) + stamp_store(5, 64 << 20, SO)
    out += [label("L1_end"), raw("s_endpgm")]
    out += subs
    return out

if __name__ == "__main__":
    print(emit(gen_k1()))
```

```python
import sys
from asmlib import *
import gen1 as G
from gen1 import Step, link, acc, fr, xb, POS, BAR, VLANE, TMP, TMP2, TMP3, ACC, srd, VP

SLW = 8448
VDW = 16
VX0 = 20
VWR0 = 23
SOB, SWO, SOUT = 4, 8, 12
sW, sMG, sNB, sMH, sKH = 24, 25, 26, 27, 28
sXO, sWO0, sWO1, sCNT, sM0, sT0, sT1 = 29, 30, 31, 32, 33, 34, 35
DG = [37, 38, 40, 41, 43, 44, 46, 47]
NST = 32
import os
WOFLAGS = os.environ.get("WOF", "")
OLFLAGS = os.environ.get("OLF", "")
OUTFLAGS = os.environ.get("OUTF", "")

def rd_w(tile, a, n, tagp):
    u, T = a >> 1, a & 1
    base = (tile % 8) * SLW + u * 64
    va = VWR0 + T
    return [ds_read("ds_read_b64_tr_b16", fr(n), 2, va, base, tag=(tagp, n)),
            ds_read("ds_read_b64_tr_b16", fr(n) + 2, 2, va, base + 512, tag=(tagp, n))]
def dma_w(i):
    s = (i % 8) * SLW
    so = f"s{sWO0 + (i & 1)}"
    return [(salu(f"s_add_u32 m0, s{sM0}, {s + e * VP}"), buf_dma(VDW + e, SWO, so, 0, tag=("W", i), flags=WOFLAGS)) for e in range(4)]
def xl(ps, half, j):
    return buf_load(xb(ps % 4, half, j), 4, VX0 + j, SOB, f"s{sXO}", half * 1024, tag=("X", ps, half), flags=OLFLAGS)

def o_step(ps):
    st = Step(f"O{ps}")
    buf = ps % 4
    for half in range(2):
        for a in range(8):
            for j in range(3):
                st.mf[half * 24 + a * 3 + j] = mfma(acc(j, a), fr(half * 8 + a), xb(buf, half, j))
    st.reads = lambda n: rd_w(2 * ps + (n >> 3), n & 7, n, st.name)
    st.before(0, wait(vm=[("X", ps, 0)]))
    st.before(24, wait(vm=[("X", ps, 1)]))
    if ps + 3 < NST:
        for half in range(2):
            for j in range(3):
                st.gap(2 + (half * 3 + j) * 5, xl(ps + 3, half, j))
        st.gap(33, salu(f"s_add_u32 s{sXO}, s{sXO}, 2048"))
    if ps < NST - 1:
        st.before(BAR, wait(vm=[("W", 2 * ps + 2), ("W", 2 * ps + 3)], lgkm="all"), barrier())
    if ps + 4 < NST:
        for (m0i, d), g in zip(dma_w(2 * ps + 8) + dma_w(2 * ps + 9), DG):
            st.before(g, m0i); st.gap(g, d)
        st.gap(47, salu(f"s_add_u32 s{sWO0}, s{sWO0}, 0x20000"), salu(f"s_add_u32 s{sWO1}, s{sWO1}, 0x20000"))
    return st

def prologue():
    V = valu
    A, B, C, D = 2, 3, 4, 5
    o = [raw("s_cmp_ge_u32 s2, 256", "salu"), raw("s_cbranch_scc1 L3_end", "branch"),
         raw("s_load_dwordx4 s[48:51], s[0:1], 32"),
         raw("s_load_dwordx2 s[56:57], s[0:1], 56"),
         V(f"v_and_b32 v{VLANE}, 63, v0"), V(f"v_lshrrev_b32 v{TMP}, 6, v0"), nop(0),
         V(f"v_readfirstlane_b32 s{sW}, v{TMP}"),
         salu(f"s_lshr_b32 s{sT0}, s2, 1"), salu(f"s_and_b32 s{sT0}, s{sT0}, 3"), salu(f"s_lshl_b32 s{sT0}, s{sT0}, 3"),
         salu(f"s_lshr_b32 s{sT1}, s2, 3"), salu(f"s_and_b32 s{sT1}, s{sT1}, 7"), salu(f"s_add_u32 s{sMG}, s{sT0}, s{sT1}"),
         salu(f"s_and_b32 s{sT0}, s2, 1"), salu(f"s_lshl_b32 s{sT0}, s{sT0}, 2"), salu(f"s_lshr_b32 s{sT1}, s2, 6"),
         salu(f"s_add_u32 s{sNB}, s{sT0}, s{sT1}"),
         salu(f"s_and_b32 s{sMH}, s{sW}, 1"), salu(f"s_lshr_b32 s{sKH}, s{sW}, 1"),
         raw("s_waitcnt lgkmcnt(0)")]
    o += srd(SOB, 56, 57, 192 * 128 * 1024) + srd(SWO, 48, 49, 4096 * 1024 * 2) + srd(SOUT, 50, 51, 3072 * 1024 * 2)
    o += [
          salu(f"s_mul_i32 s{sM0}, s{sKH}, {8*SLW}"), salu(f"s_mul_i32 s{sT0}, s{sMH}, {4*VP}"), salu(f"s_add_u32 s{sM0}, s{sM0}, s{sT0}"),
          salu(f"s_lshl_b32 s{sWO0}, s{sKH}, 22"), salu(f"s_add_u32 s{sWO1}, s{sWO0}, 0x10000"),
          salu(f"s_mul_i32 s{sXO}, s{sMG}, 6"), salu(f"s_mul_i32 s{sT0}, s{sMH}, 3"), salu(f"s_add_u32 s{sXO}, s{sXO}, s{sT0}"),
          salu(f"s_lshl_b32 s{sXO}, s{sXO}, 17"), salu(f"s_lshl_b32 s{sT0}, s{sKH}, 16"), salu(f"s_add_u32 s{sXO}, s{sXO}, s{sT0}"),
          V(f"v_and_b32 v{A}, 15, v{VLANE}"), V(f"v_lshrrev_b32 v{B}, 4, v{VLANE}"),
          V(f"v_lshlrev_b32 v{VX0}, 4, v{VLANE}"), V(f"v_add_u32 v{VX0+1}, 0x20000, v{VX0}"), V(f"v_add_u32 v{VX0+2}, 0x40000, v{VX0}"),
          V(f"v_lshlrev_b32 v{C}, 14, v{B}"), V(f"v_lshl_add_u32 v{C}, v{A}, 4, v{C}"),
          salu(f"s_lshl_b32 s{sT0}, s{sMH}, 13"), salu(f"s_lshl_b32 s{sT1}, s{sNB}, 8"), salu(f"s_add_u32 s{sT0}, s{sT0}, s{sT1}"),
          V(f"v_add_u32 v{VDW}, s{sT0}, v{C}"), V(f"v_add_u32 v{VDW+1}, 0x800, v{VDW}"),
          V(f"v_add_u32 v{VDW+2}, 0x1000, v{VDW}"), V(f"v_add_u32 v{VDW+3}, 0x1800, v{VDW}")]
    def wpair(i):
        r = []
        for m0i, d in dma_w(i) + dma_w(i + 1): r += [m0i, nop(0), d]
        r += [salu(f"s_add_u32 s{sWO0}, s{sWO0}, 0x20000"), salu(f"s_add_u32 s{sWO1}, s{sWO1}, 0x20000")]
        return r
    def xs(ps):
        return [xl(ps, half, j) for half in range(2) for j in range(3)] + [salu(f"s_add_u32 s{sXO}, s{sXO}, 2048")]
    o += wpair(0) + xs(0) + wpair(2) + xs(1) + wpair(4) + xs(2) + wpair(6)
    o += [
          V(f"v_and_b32 v{C}, 1, v{B}"), V(f"v_lshlrev_b32 v{C}, 2, v{C}"), V(f"v_lshrrev_b32 v{D}, 2, v{A}"), V(f"v_add_u32 v{C}, v{C}, v{D}"),
          V(f"v_mul_u32_u24 v{C}, {VP}, v{C}"),
          V(f"v_lshrrev_b32 v{D}, 1, v{B}"), V(f"v_lshl_add_u32 v{C}, v{D}, 8, v{C}"),
          V(f"v_and_b32 v{D}, 3, v{A}"), V(f"v_lshl_add_u32 v{C}, v{D}, 4, v{C}"),
          salu(f"s_mul_i32 s{sT0}, s{sKH}, {8*SLW}"), V(f"v_add_u32 v{C}, s{sT0}, v{C}"),
          V(f"v_lshrrev_b32 v{D}, 1, v{D}"), V(f"v_lshl_add_u32 v{VWR0}, v{D}, 3, v{C}"),
          V(f"v_xor_b32 v{D}, 1, v{D}"), V(f"v_lshl_add_u32 v{VWR0+1}, v{D}, 3, v{C}")]
    o += [V(f"v_mov_b32 v{ACC+i}, 0") for i in range(96)]
    o += [wait(vm=[("W", 0), ("W", 1)]), barrier()]
    return o

def epi_path(kh):
    V = valu
    keep = [2 * kh, 2 * kh + 1]; send = [2 - 2 * kh, 3 - 2 * kh]
    o = []
    idx = 0
    for j in range(3):
        for u in send:
            for T in range(2):
                o.append(ds_write("ds_write_b128", TMP, acc(j, 2 * u + T), 4, idx * 1024, tag="w")); idx += 1
    o += [wait(lgkm="all"), barrier()]
    idx = 0
    RB = G.SP
    for j in range(3):
        for u in keep:
            for T in range(2):
                o.append(ds_read("ds_read_b128", RB + idx * 4, 4, TMP2, idx * 1024, tag=("r", idx))); idx += 1
    idx = 0
    QB = G.QR
    for j in range(3):
        for ui, u in enumerate(keep):
            o.append(wait(lgkm=[("r", idx), ("r", idx + 1)]))
            a = acc(j, 2 * u)
            for r in range(8): o.append(V(f"v_add_f32 v{a+r}, v{a+r}, v{RB+idx*4+r}"))
            q = QB + (j * 2 + ui) * 4
            for r in range(4): o.append(V(f"v_cvt_pk_bf16_f32 v{q+r}, v{a+2*r}, v{a+2*r+1}"))
            idx += 2
    o += [salu("s_mov_b32 exec_lo, 0"), nop(0)]
    for k in range(6):
        q = QB + k * 4
        o += [V(f"v_swap_b32 v{q}, v{q+2}"), V(f"v_swap_b32 v{q+1}, v{q+3}")]
    o += [salu("s_mov_b32 exec_lo, -1"), nop(1)]
    for j in range(3):
        for ui, u in enumerate(keep):
            o.append(buf_store(QB + (j * 2 + ui) * 4, 4, TMP3, SOUT, f"s{sT0}", u * 64, tag="st", flags=OUTFLAGS))
        if j < 2: o.append(salu(f"s_add_u32 s{sT0}, s{sT0}, 0x8000"))
    return o

def gen_k3():
    V = valu
    pro = prologue()
    steps = [o_step(ps) for ps in range(NST)]
    lin = link(steps)
    mid = [nop(7), nop(1), barrier(),
           salu(f"s_mul_i32 s{sT0}, s{sW}, 12288"), V(f"v_lshlrev_b32 v{TMP2}, 4, v{VLANE}"), V(f"v_add_u32 v{TMP}, s{sT0}, v{TMP2}"),
           salu(f"s_xor_b32 s{sT1}, s{sW}, 2"), salu(f"s_mul_i32 s{sT1}, s{sT1}, 12288"), V(f"v_add_u32 v{TMP2}, s{sT1}, v{TMP2}"),
           V(f"v_and_b32 v{TMP3}, 15, v{VLANE}"), V(f"v_lshlrev_b32 v{TMP3}, 11, v{TMP3}"), V(f"v_lshrrev_b32 v2, 4, v{VLANE}"),
           V(f"v_lshl_add_u32 v{TMP3}, v2, 4, v{TMP3}"),
           salu(f"s_mul_i32 s{sT0}, s{sMG}, 96"), salu(f"s_mul_i32 s{sT1}, s{sMH}, 48"), salu(f"s_add_u32 s{sT0}, s{sT0}, s{sT1}"),
           salu(f"s_lshl_b32 s{sT0}, s{sT0}, 11"), salu(f"s_lshl_b32 s{sT1}, s{sNB}, 8"), salu(f"s_add_u32 s{sT0}, s{sT0}, s{sT1}"),
           salu(f"s_cmp_lg_u32 s{sKH}, 0"), raw("s_cbranch_scc1 L3_epi1", "branch")]
    e0 = epi_path(0); e1 = epi_path(1)
    body = pro + [x for s in lin for x in s] + mid
    errs = []
    for e in (e0, e1):
        full = body + e
        er, _, _ = resolve_waits(full)
        errs += er + check_hazards(full)
    if errs:
        print("\n".join(errs[:40]), file=sys.stderr); raise SystemExit("generation errors: %d" % len(errs))
    def grp(lo, n): return [x for s in lin[lo:lo + n] for x in s]
    out = pro[:2] + G.stamp(0) + pro[2:] + G.stamp(1)
    out += grp(0, 4)
    out += [salu(f"s_mov_b32 s{sCNT}, 6"), label("L3_loop")]
    out += fold([grp(4 * i, 4) for i in range(1, 7)])
    out += [salu(f"s_sub_u32 s{sCNT}, s{sCNT}, 1"), salu(f"s_cmp_lg_u32 s{sCNT}, 0"), raw("s_cbranch_scc1 L3_loop", "branch")]
    out += grp(28, 4)
    fin = G.stamp(3) + G.stamp_store(4, 65 << 20, SOB)
    out += G.stamp(2) + mid + e0 + fin + [raw("s_endpgm"), label("L3_epi1")] + e1 + fin
    out += [label("L3_end"), raw("s_endpgm")]
    return out

if __name__ == "__main__":
    print(emit(gen_k3()))
```

```python
import sys
from asmlib import emit
import gen1, gen3
HDR = open("standalone__mha_block_cached__near_ridge.s.ref").read().split("; Override")[0]
def kd(name, vgpr, sgpr):
    return f""".amdhsa_kernel {name}
  .amdhsa_next_free_vgpr {vgpr}
  .amdhsa_next_free_sgpr {sgpr}
  .amdhsa_accum_offset {min(256,(vgpr+3)//4*4)}
  .amdhsa_group_segment_fixed_size 0
  .amdhsa_kernarg_size 64
  .amdhsa_user_sgpr_count 2
  .amdhsa_user_sgpr_kernarg_segment_ptr 1
  .amdhsa_system_sgpr_workgroup_id_x 1
.end_amdhsa_kernel
"""
import os
G1 = os.environ.get("G1", "512")
def main(path, stampit=False):
    gen1.STAMP = stampit
    k1 = emit(gen1.gen_k1()); k3 = emit(gen3.gen_k3())
    s = HDR
    s += f"; @launch kernel=mha_attn_kernel grid=({G1},1,1) block=(256,1,1) lds={gen1.LDS_BYTES}\n"
    s += f"; @launch kernel=mha_oproj_kernel grid=(256,1,1) block=(256,1,1) lds={16*gen3.SLW}\n"
    s += '.amdgcn_target "amdgcn-amd-amdhsa--gfx950"\n.text\n'
    for name, body in (("mha_attn_kernel", k1), ("mha_oproj_kernel", k3)):
        s += f".globl {name}\n.p2align 8\n.type {name},@function\n{name}:\n{body}\n"
    s += '.section .rodata,"a"\n'
    s += ".p2align 6\n" + kd("mha_attn_kernel", 256, 96) + ".p2align 6\n" + kd("mha_oproj_kernel", 256, 96)
    open(path, "w").write(s)
args = [a for a in sys.argv[1:] if not a.startswith("--")]
main(args[0] if args else "standalone__mha_block_cached__near_ridge.s", "--stamp" in sys.argv)
```

```python
import sys, math, struct
from asmlib import *

def f32(x): return struct.unpack("<I", struct.pack("<f", x))[0]

SLOT = 8704
KP, VP = 1088, 1056

L0, T0, TMP, TMP2 = 1, 4, 7, 8
VKR, VVR, VDK, VDV = 9, 10, 11, 12
VLANE = 13
TMP3, TMP4 = 14, 15
NM = 16
VDW0, VDW1, VXD, VXR, VWR0, VWR1 = 16, 17, 18, 19, 21, 22
FR = 28
SP = 64
QR = 112
ACC = 160
def acc(j, dt): return ACC + (j * 8 + dt) * 4
def qf(j, u): return QR + (j * 4 + u) * 4
def sreg(par, j, t): return SP + par * 24 + j * 8 + t * 4
def negm(j): return NM + 4 * j
def fr(n): return FR + 4 * (n % 8)
def xb(buf, half, j): return SP + buf * 24 + (half * 3 + j) * 4
def xf(t, j): return SP + (t % 2) * 12 + j * 4

SX, SWQ, SK, SV, SO = 4, 8, 12, 16, 20
sW, sB, sH = 24, 25, 26
sXO, sWO0, sWO1, sKO, sVO, sCNT, sMK, sMV, sTH, sC = 27, 28, 29, 30, 31, 32, 33, 34, 35, 36
sT0, sT1 = 37, 38
sRET = 40
sEX = 42
sKS0, sKS1 = 44, 45
sX0 = 58
sMX = 61

POS = {0: -12, 1: -11, 2: -10, 3: -9, 4: -8, 5: -6, 6: -3, 7: 3}
for n in range(8, 16): POS[n] = 3 * n - 18
BAR = 36
DMA_GAPS = [37, 40, 43, 46]

class Step:
    def __init__(self, name):
        self.name = name
        self.mf = [None] * 48
        self.gaps = {}
        self.pre = {}
        self.reads = None
        self.has_bar = True
        self.pos = POS
    def gap(self, m, *ins): self.gaps.setdefault(m, []).extend(ins)
    def before(self, m, *ins): self.pre.setdefault(m, []).extend(ins)

XBASE = 5 * SLOT
XSL = 12288
LDS_BYTES = XBASE + 3 * XSL
def w_slot(i): return (i % 5) * SLOT
def x_slot(i): return XBASE + (i % 3) * XSL
KS = [2 * SLOT, 3 * SLOT, 4 * SLOT, 0]
VS = [XBASE + 2 * XSL, XBASE, XBASE + XSL, SLOT]
VBIAS = SLOT
def k_slot(i): return KS[i % 4]
def v_slot(i): return VS[i % 4]

def rd_w(tile, a, n, tagp):
    u, T = a >> 1, a & 1
    base = w_slot(tile) + u * 64
    va = VWR0 + T
    return [ds_read("ds_read_b64_tr_b16", fr(n), 2, va, base, tag=(tagp, n)),
            ds_read("ds_read_b64_tr_b16", fr(n) + 2, 2, va, base + 256, tag=(tagp, n))]
def rd_k(tile, a, n, tagp):
    t, u = a >> 2, a & 3
    return [ds_read("ds_read_b128", fr(n), 4, VKR, k_slot(tile) + t * 4 * KP + u * 64, tag=(tagp, n))]
def rd_v(tile, dt, n, tagp):
    base = v_slot(tile) - VBIAS + dt * 32
    return [ds_read("ds_read_b64_tr_b16", fr(n), 2, VVR, base, tag=(tagp, n)),
            ds_read("ds_read_b64_tr_b16", fr(n) + 2, 2, VVR, base + 512, tag=(tagp, n))]

import os
KVADV = os.environ.get("KVADV", "0x2000")
XADV = int(os.environ.get("XADV", "64"))
WADV = os.environ.get("WADV", "0x40000")
TICK = int(os.environ.get("TICK", "0"))
sTK = 62
TOUCH = int(os.environ.get("TOUCH", "1"))
TFLAGS = os.environ.get("TF", "")
KVFLAGS = os.environ.get("KVF", " nt")
XFLAGS = os.environ.get("XF", "")
WQFLAGS = os.environ.get("WQF", "")
OSTFLAGS = os.environ.get("OSF", "")
def tick_pre():
    return [raw("s_memtime s[84:85]"), raw("s_memrealtime s[86:87]")] if TICK else []
def tick_post():
    return [raw(f"s_mov_b32 m0, s{sTK}"), nop(0), raw(f"v_writelane_b32 v0, s84, m0"), raw(f"v_writelane_b32 v15, s86, m0"), raw(f"s_add_u32 s{sTK}, s{sTK}, 1")] if TICK else []
def dma_k(i):
    s = k_slot(i)
    return [(salu(f"s_add_u32 m0, s{sMK}, {s}"), buf_dma(VDK, SK, f"s{sKO}", 0, tag=("K", i), flags=KVFLAGS)),
            (salu(f"s_add_u32 m0, s{sMK}, {s + KP - 1024}"), buf_dma(VDK, SK, f"s{sKO}", 1024, tag=("K", i), flags=KVFLAGS))]
def dma_v(i):
    s = v_slot(i)
    return [(salu(f"s_add_u32 m0, s{sMV}, {s}"), buf_dma(VDV, SV, f"s{sVO}", 0, tag=("V", i), flags=KVFLAGS)),
            (salu(f"s_add_u32 m0, s{sMV}, {s + VP - 256}"), buf_dma(VDV, SV, f"s{sVO}", 256, tag=("V", i), flags=KVFLAGS))]
def dma_w(i):
    s = w_slot(i)
    so = f"s{sWO0}"
    return [(salu(f"s_add_u32 m0, s{sMV}, {s}"), buf_dma(VDW0, SWQ, so, 0, tag=("W", i), flags=WQFLAGS)),
            (salu(f"s_add_u32 m0, s{sMV}, {s + VP}"), buf_dma(VDW1, SWQ, so, 0, tag=("W", i), flags=WQFLAGS))]

def dma_x(t):
    s = x_slot(t)
    return [(salu(f"s_add_u32 m0, s{sMX}, {s + j * 1024 - t * XADV}"), buf_dma(VXD, SX, f"s{sX0 + j}", t * XADV, tag=("X", t), flags=XFLAGS)) for j in range(3)]
def rd_x(t):
    return [ds_read("ds_read_b128", xf(t, j), 4, VXR, x_slot(t) - XBASE + j * 1024, tag=("x", t)) for j in range(3)]

def place_dma(st, pairs, gaps=None):
    assert len(pairs) <= len(gaps or DMA_GAPS)
    for (m0i, d), g in zip(pairs, gaps or DMA_GAPS):
        st.before(g, m0i)
        if st.mf[g] is None: st.before(g, nop(0))
        st.gap(g, d)

def sm_half(st, g0, par, j, t, first_l):
    a = sreg(par, j, t); p = sreg(par, j, 0) + 2 * t; tj = T0 + j; lj = L0 + j
    for r in range(4): st.gap(g0 + r, valu(f"v_exp_f32 v{a+r}, v{a+r}"))
    if t == 0:
        if first_l: st.gap(g0 + 4, valu(f"v_add_f32 v{lj}, v{lj}, v{tj}"))
        st.gap(g0 + 4, valu(f"v_add_f32 v{tj}, v{a}, v{a+1}"))
    else:
        st.gap(g0 + 4, valu(f"v_add_f32 v{tj}, v{tj}, v{a}"), valu(f"v_add_f32 v{tj}, v{tj}, v{a+1}"))
    st.gap(g0 + 5, valu(f"v_cvt_pk_bf16_f32 v{p}, v{a}, v{a+1}"), valu(f"v_add_f32 v{tj}, v{tj}, v{a+2}"))
    st.gap(g0 + 6, valu(f"v_add_f32 v{tj}, v{tj}, v{a+3}"), valu(f"v_cvt_pk_bf16_f32 v{p+1}, v{a+2}, v{a+3}"))

def link(steps):
    for i, st in enumerate(steps):
        for n in range(16):
            if st.reads is None: continue
            r = st.reads(n)
            if r is None: continue
            p = st.pos[n]
            if p < 0:
                if i == 0:
                    st.before(0, *r)
                else:
                    steps[i - 1].gap(48 + p, *r)
            else:
                st.gap(p, *r)
    out = []
    for st in steps:
        if st.reads is not None:
            for n in range(0, 16, 2):
                if st.reads(n) is None: continue
                st.pre.setdefault(3 * n, []).append(wait(lgkm=[(st.name, n), (st.name, n + 1)]))
        out.append(interleave(st.mf, st.gaps, st.pre))
    return out

POSP = dict(POS)
for n in range(8, 16): POSP[n] = 24 + POS[n - 8]
def p_step(ps):
    st = Step(f"P{ps}")
    st.pos = POSP
    for half in range(2):
        t = 2 * ps + half
        o = 24 * half
        for a in range(8):
            for j in range(3):
                st.mf[o + a * 3 + j] = mfma(acc(j, a), fr(half * 8 + a), xf(t, j), 'z' if t == 0 else None)
        if t + 1 <= 31:
            st.gap(o + 3, wait(vm=[("X", t + 1)]))
            for j, r in enumerate(rd_x(t + 1)): st.gap(o + 4 + j, r)
        need = [("W", t + 1)] if t < 31 else [("K", 0)]
        if half == 1: st.before(o + 12, *tick_pre(), wait(vm=need, lgkm="all"), barrier(), *tick_post())
        else: st.before(o + 12, wait(vm=need, lgkm="all"), barrier())
        d = []
        if t + 4 <= 31: d += dma_x(t + 4)
        post = []
        if t + 5 <= 31:
            d += dma_w(t + 5); post.append(salu(f"s_add_u32 s{sWO0}, s{sWO0}, {WADV}"))
        if 27 <= t <= 30:
            d += dma_k(t - 27); post.append(salu(f"s_add_u32 s{sKO}, s{sKO}, {KVADV}"))
        if 28 <= t <= 31:
            d += dma_v(t - 28); post.append(salu(f"s_add_u32 s{sVO}, s{sVO}, {KVADV}"))
        place_dma(st, d, [o + 13, o + 15, o + 17, o + 19, o + 21])
        st.gap(o + 22, *post)
    st.reads = lambda n: rd_w(2 * ps + (n >> 3), n & 7, n, st.name)
    if ps == 0:
        place_dma(st, dma_x(3), [0, 1, 2])
    return st

def qk_mfmas(st, kt1, czero=False):
    par = kt1 & 1
    for t in range(2):
        for u in range(4):
            for j in range(3):
                m = t * 12 + u * 3 + j
                c = None
                if u == 0: c = 'z' if czero else negm(j)
                st.mf[m] = mfma(sreg(par, j, t), fr(t * 4 + u), qf(j, u), c)

def rowmax_code(par, j, dst, tmp):
    a = sreg(par, j, 0)
    return [valu(f"v_max3_f32 v{dst}, v{a}, v{a+1}, v{a+2}"),
            valu(f"v_max3_f32 v{dst}, v{dst}, v{a+3}, v{a+4}"),
            valu(f"v_max3_f32 v{dst}, v{dst}, v{a+5}, v{a+6}"),
            valu(f"v_max_f32 v{dst}, v{dst}, v{a+7}"),
            valu(f"v_mov_b32 v{tmp}, v{dst}"), nop(1),
            valu(f"v_permlane16_swap_b32 v{dst}, v{tmp}"), nop(1),
            valu(f"v_max_f32 v{dst}, v{dst}, v{tmp}"),
            valu(f"v_mov_b32 v{tmp}, v{dst}"), nop(1),
            valu(f"v_permlane32_swap_b32 v{dst}, v{tmp}"), nop(1),
            valu(f"v_max_f32 v{dst}, v{dst}, v{tmp}")]

def q_finalize():
    out = [nop(7), nop(1)]
    for j in range(3):
        for dt in range(8):
            for r in range(4):
                a = acc(j, dt) + r
                out.append(valu(f"v_mul_f32 v{a}, s{sC}, v{a}"))
    for j in range(3):
        for u in range(4):
            q = qf(j, u); a0 = acc(j, 2 * u); a1 = acc(j, 2 * u + 1)
            out += [valu(f"v_cvt_pk_bf16_f32 v{q}, v{a0}, v{a0+1}"), valu(f"v_cvt_pk_bf16_f32 v{q+1}, v{a0+2}, v{a0+3}"),
                    valu(f"v_cvt_pk_bf16_f32 v{q+2}, v{a1}, v{a1+1}"), valu(f"v_cvt_pk_bf16_f32 v{q+3}, v{a1+2}, v{a1+3}")]
    out += [salu("s_mov_b32 exec_lo, 0"), nop(0)]
    for j in range(3):
        for u in range(4):
            q = qf(j, u)
            out += [valu(f"v_swap_b32 v{q}, v{q+2}"), valu(f"v_swap_b32 v{q+1}, v{q+3}")]
    out += [salu("s_mov_b32 exec_lo, -1"), nop(1)]
    return out

def init_step():
    st = Step("A-1")
    qk_mfmas(st, 0, czero=True)
    st.reads = lambda n: rd_k(0, n, n, st.name) if n < 8 else None
    st.before(0, *q_finalize())
    z = [valu(f"v_mov_b32 v{ACC+i}, 0") for i in range(96)]
    for i, ins in enumerate(z): st.gap(i // 4, ins)
    post = [nop(7), nop(1)]
    for j in range(3):
        post += rowmax_code(0, j, TMP, TMP2)
        for r in range(4): post.append(valu(f"v_sub_f32 v{negm(j)+r}, 0, v{TMP}"))
        for r in range(8): post.append(valu(f"v_sub_f32 v{sreg(0,j,0)+r}, v{sreg(0,j,0)+r}, v{TMP}"))
        post.append(valu(f"v_mov_b32 v{L0+j}, 0"))
    st.gap(23, *post)
    for j in range(3): sm_half(st, 24 + 4 * j, 0, j, 0, False)
    st.before(BAR, *tick_pre(), wait(vm=[("K", 1), ("V", 0)], lgkm="all"), barrier(), *tick_post())
    place_dma(st, dma_k(4))
    st.gap(47, salu(f"s_add_u32 s{sKO}, s{sKO}, {KVADV}"))
    return st

def a_step(kt):
    st = Step(f"A{kt}")
    par = kt & 1
    qk_mfmas(st, kt + 1)
    for dt in range(8):
        for j in range(3):
            st.mf[24 + dt * 3 + j] = mfma(acc(j, dt), fr(8 + dt), sreg(par, j, 0))
    st.reads = lambda n: rd_k(kt + 1, n, n, st.name) if n < 8 else rd_v(kt, n - 8, n, st.name)
    for j in range(3): sm_half(st, 7 * j, par, j, 1, False)
    st.gap(21, valu(f"v_max3_f32 v{TMP}, v{T0}, v{T0+1}, v{T0+2}"))
    st.gap(22, valu(f"v_cmp_lt_f32 vcc, s{sTH}, v{TMP}"))
    st.gap(23, raw(f"s_cbranch_vccnz L_slow{kt%4}", "branch"), label(f"L_back{kt%4}"))
    for j in range(3): sm_half(st, 24 + 7 * j, 1 - par, j, 0, True)
    st.before(BAR, *tick_pre(), wait(vm=[("K", kt + 2), ("V", kt + 1)], lgkm="all"), barrier(), *tick_post())
    place_dma(st, dma_k(kt + 5) + dma_v(kt + 4))
    st.gap(47, salu(f"s_add_u32 s{sKO}, s{sKO}, {KVADV}"), salu(f"s_add_u32 s{sVO}, s{sVO}, {KVADV}"))
    return st

def slow_stub(r):
    out = [label(f"L_slow{r}"),
           salu(f"s_sub_u32 s{sKS0}, s{sKO}, {5*8192}"),
           salu(f"s_add_u32 s{sKS1}, s{sKS0}, 4096"),
           raw(f"s_call_b64 s[{sRET}:{sRET+1}], L_rebase{r&1}", "branch")]
    for n in range(8, 16):
        if POS[n] <= 23: out += rd_v(r, n - 8, n, "slow")
    out += [raw("s_waitcnt lgkmcnt(0)"), raw(f"s_branch L_back{r}", "branch")]
    return out

def rebase(par):
    out = [label(f"L_rebase{par}"), raw("s_waitcnt lgkmcnt(0)"), nop(7), nop(7),
           valu(f"v_and_b32 v{TMP}, 15, v{VLANE}"), valu(f"v_lshlrev_b32 v{TMP}, 8, v{TMP}"),
           valu(f"v_lshrrev_b32 v{TMP2}, 4, v{VLANE}"), valu(f"v_lshl_add_u32 v{TMP}, v{TMP2}, 4, v{TMP}")]
    for t in range(2):
        for u in range(4):
            out.append(buf_load(fr(t * 4 + u), 4, TMP, SK, f"s{sKS0 + t}", u * 64, tag="sl"))
    out.append(raw("s_waitcnt vmcnt(0)"))
    for t in range(2):
        for u in range(4):
            for j in range(3):
                out.append(mfma(sreg(par, j, t), fr(t * 4 + u), qf(j, u), negm(j) if u == 0 else None))
    out += [nop(7), nop(7)]
    for j in range(3):
        out += rowmax_code(par, j, TMP, TMP2)
        out.append(valu(f"v_max_f32 v{TMP}, 0, v{TMP}"))
        out.append(valu(f"v_sub_f32 v{TMP2}, 0, v{TMP}"))
        out.append(valu(f"v_exp_f32 v{TMP2}, v{TMP2}"))
        for r in range(4): out.append(valu(f"v_sub_f32 v{negm(j)+r}, v{negm(j)+r}, v{TMP}"))
        for pp in range(2):
            for r in range(8): out.append(valu(f"v_sub_f32 v{sreg(pp,j,0)+r}, v{sreg(pp,j,0)+r}, v{TMP}"))
        out.append(valu(f"v_mul_f32 v{L0+j}, v{L0+j}, v{TMP2}"))
        for r in range(32): out.append(valu(f"v_mul_f32 v{acc(j,0)+r}, v{acc(j,0)+r}, v{TMP2}"))
        a = sreg(par, j, 0); tj = T0 + j
        for r in range(8): out.append(valu(f"v_exp_f32 v{a+r}, v{a+r}"))
        out.append(nop(0))
        out.append(valu(f"v_add_f32 v{tj}, v{a}, v{a+1}"))
        for r in range(2, 8): out.append(valu(f"v_add_f32 v{tj}, v{tj}, v{a+r}"))
        for r in range(4): out.append(valu(f"v_cvt_pk_bf16_f32 v{a+r}, v{a+2*r}, v{a+2*r+1}"))
    out += [nop(3), raw(f"s_setpc_b64 s[{sRET}:{sRET+1}]", "branch")]
    return out

def srd(s, lo, hi, nbytes):
    return [salu(f"s_mov_b32 s{s}, s{lo}"), salu(f"s_and_b32 s{s+1}, s{hi}, 0xffff"),
            salu(f"s_mov_b32 s{s+2}, {nbytes}"), salu(f"s_mov_b32 s{s+3}, 0x00020000")]

def k1_prologue():
    o = [raw("s_cmp_ge_u32 s2, 512", "salu"), raw("s_cbranch_scc1 L1_end", "branch"),
         raw("s_load_dwordx8 s[48:55], s[0:1], 0"),
         raw("s_load_dwordx2 s[56:57], s[0:1], 56"),
         valu(f"v_and_b32 v{VLANE}, 63, v0"), valu(f"v_lshrrev_b32 v{TMP}, 6, v0"), nop(0),
         valu(f"v_readfirstlane_b32 s{sW}, v{TMP}"),
         salu(f"s_and_b32 s{sT0}, s2, 1"), salu(f"s_lshl_b32 s{sT0}, s{sT0}, 3"),
         salu(f"s_lshr_b32 s{sT1}, s2, 3"), salu(f"s_and_b32 s{sB}, s{sT1}, 3"), salu(f"s_add_u32 s{sB}, s{sB}, s{sT0}"),
         salu(f"s_lshr_b32 s{sT0}, s2, 8"), salu(f"s_lshl_b32 s{sT0}, s{sT0}, 2"), salu(f"s_add_u32 s{sB}, s{sB}, s{sT0}"),
         salu(f"s_lshr_b32 s{sT0}, s2, 1"), salu(f"s_and_b32 s{sT0}, s{sT0}, 3"), salu(f"s_lshl_b32 s{sT0}, s{sT0}, 3"),
         salu(f"s_lshr_b32 s{sH}, s2, 5"), salu(f"s_and_b32 s{sH}, s{sH}, 7"), salu(f"s_add_u32 s{sH}, s{sH}, s{sT0}"),
         raw("s_waitcnt lgkmcnt(0)")]
    o += srd(SX, 48, 49, 16 * 192 * 1024 * 2)
    o += srd(SWQ, 54, 55, 1024 * 4096 * 2)
    o += [salu(f"s_lshl_b32 s{sT0}, s{sB}, 5"), salu(f"s_add_u32 s{sT0}, s{sT0}, s{sH}"), salu(f"s_lshl_b32 s{sT0}, s{sT0}, 18"),
          salu(f"s_add_u32 s50, s50, s{sT0}"), salu("s_addc_u32 s51, s51, 0"),
          salu(f"s_add_u32 s52, s52, s{sT0}"), salu("s_addc_u32 s53, s53, 0")]
    o += srd(SK, 50, 51, 262144) + srd(SV, 52, 53, 262144)
    o += srd(SO, 56, 57, 192 * 128 * 1024)
    A, B, C, D = 2, 3, 4, 5
    V = valu
    o += [salu(f"s_mov_b32 s{sTK}, 0")]
    o += [salu(f"s_mul_i32 s{sMK}, s{sW}, {2*KP}"), salu(f"s_mul_i32 s{sMV}, s{sW}, {2*VP}"),
          salu(f"s_mov_b32 s{sTH}, {f32(1024.0)}"), salu(f"s_mov_b32 s{sC}, {f32(math.log2(math.e) / math.sqrt(128.0))}"),
          salu(f"s_mov_b32 s{sKO}, 0"), salu(f"s_mov_b32 s{sVO}, 0"),
          salu(f"s_mov_b32 s{sWO0}, 0"), salu(f"s_mul_i32 s{sMX}, s{sW}, 3072"),
          salu(f"s_mul_i32 s{sXO}, s{sB}, 192"), salu(f"s_mul_i32 s{sT0}, s{sW}, 48"), salu(f"s_add_u32 s{sXO}, s{sXO}, s{sT0}"),
          salu(f"s_lshl_b32 s{sX0}, s{sXO}, 11"), salu(f"s_add_u32 s{sX0+1}, s{sX0}, 0x8000"), salu(f"s_add_u32 s{sX0+2}, s{sX0}, 0x10000"),
          V(f"v_and_b32 v{A}, 15, v{VLANE}"),
          V(f"v_lshrrev_b32 v{B}, 4, v{VLANE}"),
          V(f"v_sub_u32 v{C}, 0, v{B}"), V(f"v_xor_b32 v{C}, v{C}, v{VLANE}"), V(f"v_and_b32 v{C}, 3, v{C}"),
          V(f"v_lshrrev_b32 v{D}, 2, v{VLANE}"), V(f"v_lshlrev_b32 v{D}, 11, v{D}"),
          V(f"v_lshl_add_u32 v{VXD}, v{C}, 4, v{D}"),
          V(f"v_and_b32 v{C}, 1, v{B}"), V(f"v_lshlrev_b32 v{C}, 2, v{C}"),
          V(f"v_lshrrev_b32 v{D}, 1, v{B}"), V(f"v_lshl_add_u32 v{C}, v{D}, 4, v{C}"),
          salu(f"s_lshl_b32 s{sT0}, s{sW}, 1"), salu(f"s_and_b32 s{sT0}, s{sT0}, 3"),
          salu(f"s_lshr_b32 s{sT1}, s{sW}, 1"), salu(f"s_lshl_b32 s{sT1}, s{sT1}, 3"), salu(f"s_add_u32 s{sT0}, s{sT0}, s{sT1}"),
          V(f"v_add_u32 v{C}, s{sT0}, v{C}"), V(f"v_lshlrev_b32 v{C}, 13, v{C}"),
          V(f"v_lshl_add_u32 v{C}, v{A}, 4, v{C}"),
          salu(f"s_lshl_b32 s{sT0}, s{sH}, 8"),
          V(f"v_add_u32 v{VDW0}, s{sT0}, v{C}"), V(f"v_add_u32 v{VDW1}, 0x2000, v{VDW0}"),
          ]
    def em(pairs):
        r = []
        for m0i, d in pairs: r += [m0i, nop(0), d]
        return r
    def wl(i): return em(dma_w(i)) + [salu(f"s_add_u32 s{sWO0}, s{sWO0}, {WADV}")]
    mark = len(o)
    o += em(dma_x(0)) + wl(0) + em(dma_x(1)) + wl(1) + em(dma_x(2)) + wl(2) + wl(3) + wl(4)
    if TOUCH:
        T1, T2 = 60, 61
        tch = [salu(f"s_lshr_b32 s{sT0}, s2, 3"), salu(f"s_lshl_b32 s{sT0}, s{sT0}, 2"), salu(f"s_add_u32 s{sT0}, s{sT0}, s{sW}"),
              V(f"v_lshlrev_b32 v{C}, 7, v{A}"),
              V(f"v_lshl_add_u32 v{T1}, v{B}, 13, v{C}"),
              V(f"v_lshl_add_u32 v{T2}, v{B}, 11, v{C}"),
              V(f"v_and_b32 v{D}, 0xfff, v{T2}"),
              salu(f"s_lshl_b32 s{sT1}, s{sT0}, 15"),
              salu(f"s_lshr_b32 s{sXO}, s2, 1"), salu(f"s_and_b32 s{sXO}, s{sXO}, 3"), salu(f"s_lshl_b32 s{sXO}, s{sXO}, 11"),
              salu(f"s_add_u32 s{sT1}, s{sT1}, s{sXO}"),
              buf_load(62, 1, T1, SWQ, f"s{sT1}", 0, tag="T", flags=TFLAGS),
              salu(f"s_mul_i32 s{sT0}, s{sT0}, {6*2048}"), salu(f"s_and_b32 s{sT1}, s2, 1"), salu(f"s_mul_i32 s{sT1}, s{sT1}, {8*192*2048}"),
              salu(f"s_add_u32 s{sT0}, s{sT0}, s{sT1}"), salu(f"s_add_u32 s{sT1}, s{sT0}, 8192"),
              buf_load(63, 1, T2, SX, f"s{sT0}", 0, tag="T", flags=TFLAGS),
              buf_load(T1, 1, D, SX, f"s{sT1}", 0, tag="T", flags=TFLAGS), nop(0)]
        if TOUCH == 1: o += tch
        else: o = o[:mark] + tch + o[mark:]
    o += [
          V(f"v_lshrrev_b32 v{C}, 2, v{A}"), V(f"v_sub_u32 v{C}, 0, v{C}"), V(f"v_xor_b32 v{C}, v{C}, v{B}"), V(f"v_and_b32 v{C}, 3, v{C}"),
          V(f"v_lshlrev_b32 v{C}, 4, v{C}"), V(f"v_lshl_add_u32 v{C}, v{A}, 6, v{C}"),
          salu(f"s_add_u32 s{sT0}, s{sMX}, {XBASE}"), V(f"v_add_u32 v{VXR}, s{sT0}, v{C}")]
    o += [
          V(f"v_lshrrev_b32 v{C}, 2, v{A}"), V(f"v_mul_u32_u24 v{VKR}, {KP}, v{C}"),
          V(f"v_and_b32 v{C}, 3, v{A}"), V(f"v_lshl_add_u32 v{VKR}, v{C}, 8, v{VKR}"),
          V(f"v_xor_b32 v{C}, v{C}, v{B}"), V(f"v_lshl_add_u32 v{VKR}, v{C}, 4, v{VKR}"),
          V(f"v_and_b32 v{C}, 1, v{B}"), V(f"v_lshlrev_b32 v{C}, 2, v{C}"), V(f"v_lshrrev_b32 v{D}, 2, v{A}"), V(f"v_add_u32 v{C}, v{C}, v{D}"),
          V(f"v_mul_u32_u24 v{C}, {VP}, v{C}"),
          V(f"v_lshrrev_b32 v{D}, 1, v{B}"),
          V(f"v_lshl_add_u32 v{VVR}, v{D}, 8, v{C}"),
          V(f"v_lshl_add_u32 v{VWR0}, v{D}, 9, v{C}"),
          V(f"v_and_b32 v{D}, 3, v{A}"),
          V(f"v_lshl_add_u32 v{VVR}, v{D}, 3, v{VVR}"), V(f"v_add_u32 v{VVR}, {VBIAS}, v{VVR}"),
          V(f"v_lshl_add_u32 v{VWR0}, v{D}, 4, v{VWR0}"),
          V(f"v_lshrrev_b32 v{D}, 1, v{D}"),
          V(f"v_xor_b32 v{C}, 1, v{D}"),
          V(f"v_lshl_add_u32 v{VWR1}, v{C}, 3, v{VWR0}"),
          V(f"v_lshl_add_u32 v{VWR0}, v{D}, 3, v{VWR0}"),
          V(f"v_and_b32 v{C}, 3, v{A}"), V(f"v_xor_b32 v{C}, v{C}, v{B}"), V(f"v_and_b32 v{D}, 12, v{A}"), V(f"v_or_b32 v{C}, v{C}, v{D}"),
          V(f"v_lshlrev_b32 v{C}, 4, v{C}"), V(f"v_lshl_add_u32 v{C}, v{B}, 8, v{C}"),
          salu(f"s_lshl_b32 s{sT0}, s{sW}, 11"), V(f"v_add_u32 v{VDK}, s{sT0}, v{C}"),
          V(f"v_lshlrev_b32 v{C}, 4, v{A}"), V(f"v_lshl_add_u32 v{C}, v{B}, 11, v{C}"),
          salu(f"s_lshl_b32 s{sT0}, s{sW}, 9"), V(f"v_add_u32 v{VDV}, s{sT0}, v{C}"),
          wait(vm=[("X", 0)]), *rd_x(0), wait(vm=[("W", 0)], lgkm="all"), barrier()]
    return o

def k1_epilogue():
    o = [nop(7), nop(1)]
    V = valu
    o += [salu(f"s_mul_i32 s{sT0}, s{sB}, 12"), salu(f"s_mul_i32 s{sT1}, s{sW}, 3"), salu(f"s_add_u32 s{sT0}, s{sT0}, s{sT1}"),
          salu(f"s_lshl_b32 s{sT0}, s{sT0}, 17"), salu(f"s_lshl_b32 s{sT1}, s{sH}, 12"), salu(f"s_add_u32 s{sT0}, s{sT0}, s{sT1}"),
          V(f"v_lshlrev_b32 v{TMP3}, 4, v{VLANE}")]
    for j in range(3):
        l = L0 + j
        o += [V(f"v_mov_b32 v{TMP}, v{l}"), nop(1), V(f"v_permlane16_swap_b32 v{l}, v{TMP}"), nop(1), V(f"v_add_f32 v{l}, v{l}, v{TMP}"),
              V(f"v_mov_b32 v{TMP}, v{l}"), nop(1), V(f"v_permlane32_swap_b32 v{l}, v{TMP}"), nop(1), V(f"v_add_f32 v{l}, v{l}, v{TMP}"),
              V(f"v_rcp_f32 v{l}, v{l}"), nop(0)]
        for u in range(4):
            a = acc(j, 2 * u)
            for r in range(8): o.append(V(f"v_mul_f32 v{a+r}, v{a+r}, v{l}"))
            q = qf(j, u)
            for r in range(4): o.append(V(f"v_cvt_pk_bf16_f32 v{q+r}, v{a+2*r}, v{a+2*r+1}"))
            o.append(buf_store(q, 4, TMP3, SO, f"s{sT0}", u * 1024, tag="st", flags=OSTFLAGS))
        if j < 2: o.append(salu(f"s_add_u32 s{sT0}, s{sT0}, 0x20000"))
    return o

STAMP = False
def stamp(i):
    if not STAMP: return []
    return [raw(f"s_memrealtime s[{64+4*i}:{65+4*i}]"), raw(f"s_memtime s[{66+4*i}:{67+4*i}]")]
def stamp_store(n, wsoff, srdreg, nwg_stride=4):
    if not STAMP: return []
    o = [raw("s_waitcnt lgkmcnt(0)"), salu(f"s_mov_b32 s{srdreg+2}, 0x20000000"),
         salu(f"s_lshl_b32 s60, s2, 2"), salu(f"s_add_u32 s60, s60, s24"), salu("s_lshl_b32 s60, s60, 6"), salu(f"s_add_u32 s60, s60, {wsoff}"),
         valu(f"v_mov_b32 v2, 0"), salu("s_mov_b64 exec, 1")]
    for i in range(n):
        o += [valu(f"v_mov_b32 v4, s{64+4*i}"), valu(f"v_mov_b32 v5, s{66+4*i}"), buf_store(4, 2, 2, srdreg, "s60", 8 * i, tag="dbg"), nop(1)]
    return o

def gen_k1():
    pro = k1_prologue()
    steps = [p_step(ps) for ps in range(16)] + [init_step()] + [a_step(kt) for kt in range(33)]
    lin = link(steps)[:-1]
    epi = k1_epilogue()
    full = pro + [x for s in lin for x in s] + epi
    errs, _, _ = resolve_waits(full)
    errs += check_hazards(full)
    subs = []
    for r in range(4): subs += slow_stub(r)
    for par in range(2):
        rb = rebase(par)
        errs += check_hazards(rb)
        subs += rb
    if errs:
        print("\n".join(errs[:40]), file=sys.stderr); raise SystemExit("generation errors: %d" % len(errs))
    def grp(lo, n): return [x for s in lin[lo:lo + n] for x in s]
    out = pro[:2] + stamp(0) + pro[2:]
    out += grp(0, 16) + stamp(1) + grp(16, 1) + stamp(2)
    out += [salu(f"s_mov_b32 s{sCNT}, 8"), label("L1_aloop")]
    out += fold([grp(17 + 4 * i, 4) for i in range(8)])
    out += [salu(f"s_sub_u32 s{sCNT}, s{sCNT}, 1"), salu(f"s_cmp_lg_u32 s{sCNT}, 0"), raw("s_cbranch_scc1 L1_aloop", "branch")]
    tk = []
    if TICK:
        tk = [salu(f"s_mov_b32 s{SO+2}, 0x20000000"), salu(f"s_lshl_b32 s60, s2, 2"), salu(f"s_add_u32 s60, s60, s24"), salu("s_lshl_b32 s60, s60, 9"),
              salu(f"s_add_u32 s60, s60, {66 << 20}"), valu(f"v_lshlrev_b32 v2, 2, v{VLANE}"), nop(4),
              buf_store(0, 1, 2, SO, "s60", 0, tag="dbg"), buf_store(15, 1, 2, SO, "s60", 256, tag="dbg"), nop(1)]
    out += stamp(3) + epi + stamp(4) + tk + stamp_store(5, 64 << 20, SO)
    out += [label("L1_end"), raw("s_endpgm")]
    out += subs
    return out

if __name__ == "__main__":
    print(emit(gen_k1()))
```

```python
import sys
from asmlib import *
import gen1 as G
from gen1 import Step, link, acc, fr, xb, POS, BAR, VLANE, TMP, TMP2, TMP3, ACC, srd, VP

SLW = 8448
VDW = 16
VX0 = 20
VWR0 = 23
SOB, SWO, SOUT = 4, 8, 12
sW, sMG, sNB, sMH, sKH = 24, 25, 26, 27, 28
sXO, sWO0, sWO1, sCNT, sM0, sT0, sT1 = 29, 30, 31, 32, 33, 34, 35
DG = [37, 38, 40, 41, 43, 44, 46, 47]
NST = 32
import os
A3X = os.environ.get("A3X", "2048")
A3W = os.environ.get("A3W", "0x20000")
WOFLAGS = os.environ.get("WOF", "")
OLFLAGS = os.environ.get("OLF", "")
OUTFLAGS = os.environ.get("OUTF", "")

def rd_w(tile, a, n, tagp):
    u, T = a >> 1, a & 1
    base = (tile % 8) * SLW + u * 64
    va = VWR0 + T
    return [ds_read("ds_read_b64_tr_b16", fr(n), 2, va, base, tag=(tagp, n)),
            ds_read("ds_read_b64_tr_b16", fr(n) + 2, 2, va, base + 512, tag=(tagp, n))]
def dma_w(i):
    s = (i % 8) * SLW
    so = f"s{sWO0 + (i & 1)}"
    return [(salu(f"s_add_u32 m0, s{sM0}, {s + e * VP}"), buf_dma(VDW + e, SWO, so, 0, tag=("W", i), flags=WOFLAGS)) for e in range(4)]
def xl(ps, half, j):
    return buf_load(xb(ps % 4, half, j), 4, VX0 + j, SOB, f"s{sXO}", half * 1024, tag=("X", ps, half), flags=OLFLAGS)

def o_step(ps):
    st = Step(f"O{ps}")
    buf = ps % 4
    for half in range(2):
        for a in range(8):
            for j in range(3):
                st.mf[half * 24 + a * 3 + j] = mfma(acc(j, a), fr(half * 8 + a), xb(buf, half, j))
    st.reads = lambda n: rd_w(2 * ps + (n >> 3), n & 7, n, st.name)
    st.before(0, wait(vm=[("X", ps, 0)]))
    st.before(24, wait(vm=[("X", ps, 1)]))
    if ps + 3 < NST:
        for half in range(2):
            for j in range(3):
                st.gap(2 + (half * 3 + j) * 5, xl(ps + 3, half, j))
        st.gap(33, salu(f"s_add_u32 s{sXO}, s{sXO}, {A3X}"))
    if ps < NST - 1:
        st.before(BAR, wait(vm=[("W", 2 * ps + 2), ("W", 2 * ps + 3)], lgkm="all"), barrier())
    if ps + 4 < NST:
        for (m0i, d), g in zip(dma_w(2 * ps + 8) + dma_w(2 * ps + 9), DG):
            st.before(g, m0i); st.gap(g, d)
        st.gap(47, salu(f"s_add_u32 s{sWO0}, s{sWO0}, {A3W}"), salu(f"s_add_u32 s{sWO1}, s{sWO1}, {A3W}"))
    return st

def prologue():
    V = valu
    A, B, C, D = 2, 3, 4, 5
    o = [raw("s_cmp_ge_u32 s2, 256", "salu"), raw("s_cbranch_scc1 L3_end", "branch"),
         raw("s_load_dwordx4 s[48:51], s[0:1], 32"),
         raw("s_load_dwordx2 s[56:57], s[0:1], 56"),
         V(f"v_and_b32 v{VLANE}, 63, v0"), V(f"v_lshrrev_b32 v{TMP}, 6, v0"), nop(0),
         V(f"v_readfirstlane_b32 s{sW}, v{TMP}"),
         salu(f"s_lshr_b32 s{sT0}, s2, 1"), salu(f"s_and_b32 s{sT0}, s{sT0}, 3"), salu(f"s_lshl_b32 s{sT0}, s{sT0}, 3"),
         salu(f"s_lshr_b32 s{sT1}, s2, 3"), salu(f"s_and_b32 s{sT1}, s{sT1}, 7"), salu(f"s_add_u32 s{sMG}, s{sT0}, s{sT1}"),
         salu(f"s_and_b32 s{sT0}, s2, 1"), salu(f"s_lshl_b32 s{sT0}, s{sT0}, 2"), salu(f"s_lshr_b32 s{sT1}, s2, 6"),
         salu(f"s_add_u32 s{sNB}, s{sT0}, s{sT1}"),
         salu(f"s_and_b32 s{sMH}, s{sW}, 1"), salu(f"s_lshr_b32 s{sKH}, s{sW}, 1"),
         raw("s_waitcnt lgkmcnt(0)")]
    o += srd(SOB, 56, 57, 192 * 128 * 1024) + srd(SWO, 48, 49, 4096 * 1024 * 2) + srd(SOUT, 50, 51, 3072 * 1024 * 2)
    o += [
          salu(f"s_mul_i32 s{sM0}, s{sKH}, {8*SLW}"), salu(f"s_mul_i32 s{sT0}, s{sMH}, {4*VP}"), salu(f"s_add_u32 s{sM0}, s{sM0}, s{sT0}"),
          salu(f"s_lshl_b32 s{sWO0}, s{sKH}, 22"), salu(f"s_add_u32 s{sWO1}, s{sWO0}, 0x10000"),
          salu(f"s_mul_i32 s{sXO}, s{sMG}, 6"), salu(f"s_mul_i32 s{sT0}, s{sMH}, 3"), salu(f"s_add_u32 s{sXO}, s{sXO}, s{sT0}"),
          salu(f"s_lshl_b32 s{sXO}, s{sXO}, 17"), salu(f"s_lshl_b32 s{sT0}, s{sKH}, 16"), salu(f"s_add_u32 s{sXO}, s{sXO}, s{sT0}"),
          V(f"v_and_b32 v{A}, 15, v{VLANE}"), V(f"v_lshrrev_b32 v{B}, 4, v{VLANE}"),
          V(f"v_lshlrev_b32 v{VX0}, 4, v{VLANE}"), V(f"v_add_u32 v{VX0+1}, 0x20000, v{VX0}"), V(f"v_add_u32 v{VX0+2}, 0x40000, v{VX0}"),
          V(f"v_lshlrev_b32 v{C}, 14, v{B}"), V(f"v_lshl_add_u32 v{C}, v{A}, 4, v{C}"),
          salu(f"s_lshl_b32 s{sT0}, s{sMH}, 13"), salu(f"s_lshl_b32 s{sT1}, s{sNB}, 8"), salu(f"s_add_u32 s{sT0}, s{sT0}, s{sT1}"),
          V(f"v_add_u32 v{VDW}, s{sT0}, v{C}"), V(f"v_add_u32 v{VDW+1}, 0x800, v{VDW}"),
          V(f"v_add_u32 v{VDW+2}, 0x1000, v{VDW}"), V(f"v_add_u32 v{VDW+3}, 0x1800, v{VDW}")]
    def wpair(i):
        r = []
        for m0i, d in dma_w(i) + dma_w(i + 1): r += [m0i, nop(0), d]
        r += [salu(f"s_add_u32 s{sWO0}, s{sWO0}, {A3W}"), salu(f"s_add_u32 s{sWO1}, s{sWO1}, {A3W}")]
        return r
    def xs(ps):
        return [xl(ps, half, j) for half in range(2) for j in range(3)] + [salu(f"s_add_u32 s{sXO}, s{sXO}, {A3X}")]
    o += wpair(0) + xs(0) + wpair(2) + xs(1) + wpair(4) + xs(2) + wpair(6)
    o += [
          V(f"v_and_b32 v{C}, 1, v{B}"), V(f"v_lshlrev_b32 v{C}, 2, v{C}"), V(f"v_lshrrev_b32 v{D}, 2, v{A}"), V(f"v_add_u32 v{C}, v{C}, v{D}"),
          V(f"v_mul_u32_u24 v{C}, {VP}, v{C}"),
          V(f"v_lshrrev_b32 v{D}, 1, v{B}"), V(f"v_lshl_add_u32 v{C}, v{D}, 8, v{C}"),
          V(f"v_and_b32 v{D}, 3, v{A}"), V(f"v_lshl_add_u32 v{C}, v{D}, 4, v{C}"),
          salu(f"s_mul_i32 s{sT0}, s{sKH}, {8*SLW}"), V(f"v_add_u32 v{C}, s{sT0}, v{C}"),
          V(f"v_lshrrev_b32 v{D}, 1, v{D}"), V(f"v_lshl_add_u32 v{VWR0}, v{D}, 3, v{C}"),
          V(f"v_xor_b32 v{D}, 1, v{D}"), V(f"v_lshl_add_u32 v{VWR0+1}, v{D}, 3, v{C}")]
    o += [V(f"v_mov_b32 v{ACC+i}, 0") for i in range(96)]
    o += [wait(vm=[("W", 0), ("W", 1)]), barrier()]
    return o

def epi_path(kh):
    V = valu
    keep = [2 * kh, 2 * kh + 1]; send = [2 - 2 * kh, 3 - 2 * kh]
    o = []
    idx = 0
    for j in range(3):
        for u in send:
            for T in range(2):
                o.append(ds_write("ds_write_b128", TMP, acc(j, 2 * u + T), 4, idx * 1024, tag="w")); idx += 1
    o += [wait(lgkm="all"), barrier()]
    idx = 0
    RB = G.SP
    for j in range(3):
        for u in keep:
            for T in range(2):
                o.append(ds_read("ds_read_b128", RB + idx * 4, 4, TMP2, idx * 1024, tag=("r", idx))); idx += 1
    idx = 0
    QB = G.QR
    for j in range(3):
        for ui, u in enumerate(keep):
            o.append(wait(lgkm=[("r", idx), ("r", idx + 1)]))
            a = acc(j, 2 * u)
            for r in range(8): o.append(V(f"v_add_f32 v{a+r}, v{a+r}, v{RB+idx*4+r}"))
            q = QB + (j * 2 + ui) * 4
            for r in range(4): o.append(V(f"v_cvt_pk_bf16_f32 v{q+r}, v{a+2*r}, v{a+2*r+1}"))
            idx += 2
    o += [salu("s_mov_b32 exec_lo, 0"), nop(0)]
    for k in range(6):
        q = QB + k * 4
        o += [V(f"v_swap_b32 v{q}, v{q+2}"), V(f"v_swap_b32 v{q+1}, v{q+3}")]
    o += [salu("s_mov_b32 exec_lo, -1"), nop(1)]
    for j in range(3):
        for ui, u in enumerate(keep):
            o.append(buf_store(QB + (j * 2 + ui) * 4, 4, TMP3, SOUT, f"s{sT0}", u * 64, tag="st", flags=OUTFLAGS))
        if j < 2: o.append(salu(f"s_add_u32 s{sT0}, s{sT0}, 0x8000"))
    return o

def gen_k3():
    V = valu
    pro = prologue()
    steps = [o_step(ps) for ps in range(NST)]
    lin = link(steps)
    mid = [nop(7), nop(1), barrier(),
           salu(f"s_mul_i32 s{sT0}, s{sW}, 12288"), V(f"v_lshlrev_b32 v{TMP2}, 4, v{VLANE}"), V(f"v_add_u32 v{TMP}, s{sT0}, v{TMP2}"),
           salu(f"s_xor_b32 s{sT1}, s{sW}, 2"), salu(f"s_mul_i32 s{sT1}, s{sT1}, 12288"), V(f"v_add_u32 v{TMP2}, s{sT1}, v{TMP2}"),
           V(f"v_and_b32 v{TMP3}, 15, v{VLANE}"), V(f"v_lshlrev_b32 v{TMP3}, 11, v{TMP3}"), V(f"v_lshrrev_b32 v2, 4, v{VLANE}"),
           V(f"v_lshl_add_u32 v{TMP3}, v2, 4, v{TMP3}"),
           salu(f"s_mul_i32 s{sT0}, s{sMG}, 96"), salu(f"s_mul_i32 s{sT1}, s{sMH}, 48"), salu(f"s_add_u32 s{sT0}, s{sT0}, s{sT1}"),
           salu(f"s_lshl_b32 s{sT0}, s{sT0}, 11"), salu(f"s_lshl_b32 s{sT1}, s{sNB}, 8"), salu(f"s_add_u32 s{sT0}, s{sT0}, s{sT1}"),
           salu(f"s_cmp_lg_u32 s{sKH}, 0"), raw("s_cbranch_scc1 L3_epi1", "branch")]
    e0 = epi_path(0); e1 = epi_path(1)
    body = pro + [x for s in lin for x in s] + mid
    errs = []
    for e in (e0, e1):
        full = body + e
        er, _, _ = resolve_waits(full)
        errs += er + check_hazards(full)
    if errs:
        print("\n".join(errs[:40]), file=sys.stderr); raise SystemExit("generation errors: %d" % len(errs))
    def grp(lo, n): return [x for s in lin[lo:lo + n] for x in s]
    out = pro[:2] + G.stamp(0) + pro[2:] + G.stamp(1)
    out += grp(0, 4)
    out += [salu(f"s_mov_b32 s{sCNT}, 6"), label("L3_loop")]
    out += fold([grp(4 * i, 4) for i in range(1, 7)])
    out += [salu(f"s_sub_u32 s{sCNT}, s{sCNT}, 1"), salu(f"s_cmp_lg_u32 s{sCNT}, 0"), raw("s_cbranch_scc1 L3_loop", "branch")]
    out += grp(28, 4)
    fin = G.stamp(3) + G.stamp_store(4, 65 << 20, SOB)
    out += G.stamp(2) + mid + e0 + fin + [raw("s_endpgm"), label("L3_epi1")] + e1 + fin
    out += [label("L3_end"), raw("s_endpgm")]
    return out

if __name__ == "__main__":
    print(emit(gen_k3()))
```

```python
import sys, math, struct
from asmlib import *

def f32(x): return struct.unpack("<I", struct.pack("<f", x))[0]

SLOT = 8704
KP, VP = 1088, 1056

L0, T0, TMP, TMP2 = 1, 4, 7, 8
VKR, VVR, VDK, VDV = 9, 10, 11, 12
VLANE = 13
TMP3, TMP4 = 14, 15
NM = 16
VDW0, VDW1, VXD, VXR, VWR0, VWR1 = 16, 17, 18, 19, 21, 22
FR = 28
SP = 64
QR = 112
ACC = 160
def acc(j, dt): return ACC + (j * 8 + dt) * 4
def qf(j, u): return QR + (j * 4 + u) * 4
def sreg(par, j, t): return SP + par * 24 + j * 8 + t * 4
def negm(j): return NM + 4 * j
def fr(n): return FR + 4 * (n % 8)
def xb(buf, half, j): return SP + buf * 24 + (half * 3 + j) * 4
def xf(t, j): return SP + (t % 2) * 12 + j * 4

SX, SWQ, SK, SV, SO = 4, 8, 12, 16, 20
sW, sB, sH = 24, 25, 26
sXO, sWO0, sWO1, sKO, sVO, sCNT, sMK, sMV, sTH, sC = 27, 28, 29, 30, 31, 32, 33, 34, 35, 36
sT0, sT1 = 37, 38
sRET = 40
sEX = 42
sKS0, sKS1 = 44, 45
sX0 = 58
sMX = 61

POS = {0: -12, 1: -11, 2: -10, 3: -9, 4: -8, 5: -6, 6: -3, 7: 3}
for n in range(8, 16): POS[n] = 3 * n - 18
BAR = 36
DMA_GAPS = [37, 40, 43, 46]

class Step:
    def __init__(self, name):
        self.name = name
        self.mf = [None] * 48
        self.gaps = {}
        self.pre = {}
        self.reads = None
        self.has_bar = True
        self.pos = POS
    def gap(self, m, *ins): self.gaps.setdefault(m, []).extend(ins)
    def before(self, m, *ins): self.pre.setdefault(m, []).extend(ins)

XBASE = 5 * SLOT
XSL = 12288
LDS_BYTES = XBASE + 3 * XSL
def w_slot(i): return (i % 5) * SLOT
def x_slot(i): return XBASE + (i % 3) * XSL
KS = [2 * SLOT, 3 * SLOT, 4 * SLOT, 0]
VS = [XBASE + 2 * XSL, XBASE, XBASE + XSL, SLOT]
VBIAS = SLOT
def k_slot(i): return KS[i % 4]
def v_slot(i): return VS[i % 4]

def rd_w(tile, a, n, tagp):
    u, T = a >> 1, a & 1
    base = w_slot(tile) + u * 64
    va = VWR0 + T
    return [ds_read("ds_read_b64_tr_b16", fr(n), 2, va, base, tag=(tagp, n)),
            ds_read("ds_read_b64_tr_b16", fr(n) + 2, 2, va, base + 256, tag=(tagp, n))]
def rd_k(tile, a, n, tagp):
    t, u = a >> 2, a & 3
    return [ds_read("ds_read_b128", fr(n), 4, VKR, k_slot(tile) + t * 4 * KP + u * 64, tag=(tagp, n))]
def rd_v(tile, dt, n, tagp):
    base = v_slot(tile) - VBIAS + dt * 32
    return [ds_read("ds_read_b64_tr_b16", fr(n), 2, VVR, base, tag=(tagp, n)),
            ds_read("ds_read_b64_tr_b16", fr(n) + 2, 2, VVR, base + 512, tag=(tagp, n))]

import os
KVADV = os.environ.get("KVADV", "0x2000")
XADV = int(os.environ.get("XADV", "64"))
WADV = os.environ.get("WADV", "0x40000")
TICK = int(os.environ.get("TICK", "0"))
sTK = 62
TOUCH = int(os.environ.get("TOUCH", "1"))
TFLAGS = os.environ.get("TF", "")
SW = int(os.environ.get("SW", "3"))
PSW = int(os.environ.get("PSW", "-1"))
KVFLAGS = os.environ.get("KVF", " nt")
XFLAGS = os.environ.get("XF", "")
WQFLAGS = os.environ.get("WQF", "")
OSTFLAGS = os.environ.get("OSF", "")
def tick_pre():
    return [raw("s_memtime s[84:85]"), raw("s_memrealtime s[86:87]")] if TICK else []
def tick_post():
    return [raw(f"s_mov_b32 m0, s{sTK}"), nop(0), raw(f"v_writelane_b32 v0, s84, m0"), raw(f"v_writelane_b32 v15, s86, m0"), raw(f"s_add_u32 s{sTK}, s{sTK}, 1")] if TICK else []
def dma_k(i):
    s = k_slot(i)
    return [(salu(f"s_add_u32 m0, s{sMK}, {s}"), buf_dma(VDK, SK, f"s{sKO}", 0, tag=("K", i), flags=KVFLAGS)),
            (salu(f"s_add_u32 m0, s{sMK}, {s + KP - 1024}"), buf_dma(VDK, SK, f"s{sKO}", 1024, tag=("K", i), flags=KVFLAGS))]
def dma_v(i):
    s = v_slot(i)
    return [(salu(f"s_add_u32 m0, s{sMV}, {s}"), buf_dma(VDV, SV, f"s{sVO}", 0, tag=("V", i), flags=KVFLAGS)),
            (salu(f"s_add_u32 m0, s{sMV}, {s + VP - 256}"), buf_dma(VDV, SV, f"s{sVO}", 256, tag=("V", i), flags=KVFLAGS))]
def dma_w(i):
    s = w_slot(i)
    so = f"s{sWO0}"
    return [(salu(f"s_add_u32 m0, s{sMV}, {s}"), buf_dma(VDW0, SWQ, so, 0, tag=("W", i), flags=WQFLAGS)),
            (salu(f"s_add_u32 m0, s{sMV}, {s + VP}"), buf_dma(VDW1, SWQ, so, 0, tag=("W", i), flags=WQFLAGS))]

def dma_x(t):
    s = x_slot(t)
    return [(salu(f"s_add_u32 m0, s{sMX}, {s + j * 1024 - t * XADV}"), buf_dma(VXD, SX, f"s{sX0 + j}", t * XADV, tag=("X", t), flags=XFLAGS)) for j in range(3)]
def rd_x(t):
    return [ds_read("ds_read_b128", xf(t, j), 4, VXR, x_slot(t) - XBASE + j * 1024, tag=("x", t)) for j in range(3)]

def place_dma(st, pairs, gaps=None):
    assert len(pairs) <= len(gaps or DMA_GAPS)
    for (m0i, d), g in zip(pairs, gaps or DMA_GAPS):
        st.before(g, m0i)
        if st.mf[g] is None: st.before(g, nop(0))
        st.gap(g, d)

def sm_half(st, g0, par, j, t, first_l):
    a = sreg(par, j, t); p = sreg(par, j, 0) + 2 * t; tj = T0 + j; lj = L0 + j
    for r in range(4): st.gap(g0 + r, valu(f"v_exp_f32 v{a+r}, v{a+r}"))
    if t == 0:
        if first_l: st.gap(g0 + 4, valu(f"v_add_f32 v{lj}, v{lj}, v{tj}"))
        st.gap(g0 + 4, valu(f"v_add_f32 v{tj}, v{a}, v{a+1}"))
    else:
        st.gap(g0 + 4, valu(f"v_add_f32 v{tj}, v{tj}, v{a}"), valu(f"v_add_f32 v{tj}, v{tj}, v{a+1}"))
    st.gap(g0 + 5, valu(f"v_cvt_pk_bf16_f32 v{p}, v{a}, v{a+1}"), valu(f"v_add_f32 v{tj}, v{tj}, v{a+2}"))
    st.gap(g0 + 6, valu(f"v_add_f32 v{tj}, v{tj}, v{a+3}"), valu(f"v_cvt_pk_bf16_f32 v{p+1}, v{a+2}, v{a+3}"))

def link(steps):
    for i, st in enumerate(steps):
        for n in range(16):
            if st.reads is None: continue
            r = st.reads(n)
            if r is None: continue
            p = st.pos[n]
            if p < 0:
                if i == 0:
                    st.before(0, *r)
                else:
                    steps[i - 1].gap(48 + p, *r)
            else:
                st.gap(p, *r)
    out = []
    for st in steps:
        if st.reads is not None:
            for n in range(0, 16, 2):
                if st.reads(n) is None: continue
                st.pre.setdefault(3 * n, []).append(wait(lgkm=[(st.name, n), (st.name, n + 1)]))
        out.append(interleave(st.mf, st.gaps, st.pre))
    return out

POSP = dict(POS)
for n in range(8, 16): POSP[n] = 24 + POS[n - 8]
def p_step(ps):
    st = Step(f"P{ps}")
    st.pos = POSP
    for half in range(2):
        t = 2 * ps + half
        o = 24 * half
        for a in range(8):
            for j in range(3):
                st.mf[o + a * 3 + j] = mfma(acc(j, a), fr(half * 8 + a), xf(t, j), 'z' if t == 0 else None)
        if t + 1 <= 31:
            st.gap(o + 3, wait(vm=[("X", t + 1)]))
            for j, r in enumerate(rd_x(t + 1)): st.gap(o + 4 + j, r)
        need = [("W", t + 1)] if t < 31 else [("K", 0)]
        if half == 1: st.before(o + 12, *tick_pre(), wait(vm=need, lgkm="all"), barrier(), *tick_post())
        else: st.before(o + 12, wait(vm=need, lgkm="all"), barrier())
        d = []
        if t + 4 <= 31: d += dma_x(t + 4)
        post = []
        if t + 5 <= 31:
            d += dma_w(t + 5); post.append(salu(f"s_add_u32 s{sWO0}, s{sWO0}, {WADV}"))
        if 27 <= t <= 30:
            d += dma_k(t - 27); post.append(salu(f"s_add_u32 s{sKO}, s{sKO}, {KVADV}"))
        if 28 <= t <= 31:
            d += dma_v(t - 28); post.append(salu(f"s_add_u32 s{sVO}, s{sVO}, {KVADV}"))
        place_dma(st, d, [o + 13, o + 15, o + 17, o + 19, o + 21])
        st.gap(o + 22, *post)
    st.reads = lambda n: rd_w(2 * ps + (n >> 3), n & 7, n, st.name)
    if ps == 0:
        place_dma(st, dma_x(3), [0, 1, 2])
    return st

def qk_mfmas(st, kt1, czero=False):
    par = kt1 & 1
    for t in range(2):
        for u in range(4):
            for j in range(3):
                m = t * 12 + u * 3 + j
                c = None
                if u == 0: c = 'z' if czero else negm(j)
                st.mf[m] = mfma(sreg(par, j, t), fr(t * 4 + u), qf(j, u), c)

def rowmax_code(par, j, dst, tmp):
    a = sreg(par, j, 0)
    return [valu(f"v_max3_f32 v{dst}, v{a}, v{a+1}, v{a+2}"),
            valu(f"v_max3_f32 v{dst}, v{dst}, v{a+3}, v{a+4}"),
            valu(f"v_max3_f32 v{dst}, v{dst}, v{a+5}, v{a+6}"),
            valu(f"v_max_f32 v{dst}, v{dst}, v{a+7}"),
            valu(f"v_mov_b32 v{tmp}, v{dst}"), nop(1),
            valu(f"v_permlane16_swap_b32 v{dst}, v{tmp}"), nop(1),
            valu(f"v_max_f32 v{dst}, v{dst}, v{tmp}"),
            valu(f"v_mov_b32 v{tmp}, v{dst}"), nop(1),
            valu(f"v_permlane32_swap_b32 v{dst}, v{tmp}"), nop(1),
            valu(f"v_max_f32 v{dst}, v{dst}, v{tmp}")]

def q_finalize():
    out = [nop(7), nop(1)]
    for j in range(3):
        for dt in range(8):
            for r in range(4):
                a = acc(j, dt) + r
                out.append(valu(f"v_mul_f32 v{a}, s{sC}, v{a}"))
    for j in range(3):
        for u in range(4):
            q = qf(j, u); a0 = acc(j, 2 * u); a1 = acc(j, 2 * u + 1)
            out += [valu(f"v_cvt_pk_bf16_f32 v{q}, v{a0}, v{a0+1}"), valu(f"v_cvt_pk_bf16_f32 v{q+1}, v{a0+2}, v{a0+3}"),
                    valu(f"v_cvt_pk_bf16_f32 v{q+2}, v{a1}, v{a1+1}"), valu(f"v_cvt_pk_bf16_f32 v{q+3}, v{a1+2}, v{a1+3}")]
    out += [salu("s_mov_b32 exec_lo, 0"), nop(0)]
    for j in range(3):
        for u in range(4):
            q = qf(j, u)
            out += [valu(f"v_swap_b32 v{q}, v{q+2}"), valu(f"v_swap_b32 v{q+1}, v{q+3}")]
    out += [salu("s_mov_b32 exec_lo, -1"), nop(1)]
    return out

def init_step():
    st = Step("A-1")
    qk_mfmas(st, 0, czero=True)
    st.reads = lambda n: rd_k(0, n, n, st.name) if n < 8 else None
    st.before(0, *q_finalize())
    z = [valu(f"v_mov_b32 v{ACC+i}, 0") for i in range(96)]
    for i, ins in enumerate(z): st.gap(i // 4, ins)
    post = [nop(7), nop(1)]
    for j in range(3):
        post += rowmax_code(0, j, TMP, TMP2)
        for r in range(4): post.append(valu(f"v_sub_f32 v{negm(j)+r}, 0, v{TMP}"))
        for r in range(8): post.append(valu(f"v_sub_f32 v{sreg(0,j,0)+r}, v{sreg(0,j,0)+r}, v{TMP}"))
        post.append(valu(f"v_mov_b32 v{L0+j}, 0"))
    st.gap(23, *post)
    for j in range(3): sm_half(st, 24 + 4 * j, 0, j, 0, False)
    st.before(BAR, *tick_pre(), wait(vm=[("K", 1), ("V", 0)], lgkm="all"), barrier(), *tick_post())
    place_dma(st, dma_k(4))
    st.gap(47, salu(f"s_add_u32 s{sKO}, s{sKO}, {KVADV}"))
    return st

def a_step(kt):
    st = Step(f"A{kt}")
    par = kt & 1
    qk_mfmas(st, kt + 1)
    for dt in range(8):
        for j in range(3):
            st.mf[24 + dt * 3 + j] = mfma(acc(j, dt), fr(8 + dt), sreg(par, j, 0))
    st.reads = lambda n: rd_k(kt + 1, n, n, st.name) if n < 8 else rd_v(kt, n - 8, n, st.name)
    for j in range(3): sm_half(st, 7 * j, par, j, 1, False)
    st.gap(21, valu(f"v_max3_f32 v{TMP}, v{T0}, v{T0+1}, v{T0+2}"))
    st.gap(22, valu(f"v_cmp_lt_f32 vcc, s{sTH}, v{TMP}"))
    st.gap(23, raw(f"s_cbranch_vccnz L_slow{kt%4}", "branch"), label(f"L_back{kt%4}"))
    for j in range(3): sm_half(st, 24 + 7 * j, 1 - par, j, 0, True)
    st.before(BAR, *tick_pre(), wait(vm=[("K", kt + 2), ("V", kt + 1)], lgkm="all"), barrier(), *tick_post())
    place_dma(st, dma_k(kt + 5) + dma_v(kt + 4))
    st.gap(47, salu(f"s_add_u32 s{sKO}, s{sKO}, {KVADV}"), salu(f"s_add_u32 s{sVO}, s{sVO}, {KVADV}"))
    return st

def slow_stub(r):
    out = [label(f"L_slow{r}"),
           salu(f"s_sub_u32 s{sKS0}, s{sKO}, {5*8192}"),
           salu(f"s_add_u32 s{sKS1}, s{sKS0}, 4096"),
           raw(f"s_call_b64 s[{sRET}:{sRET+1}], L_rebase{r&1}", "branch")]
    for n in range(8, 16):
        if POS[n] <= 23: out += rd_v(r, n - 8, n, "slow")
    out += [raw("s_waitcnt lgkmcnt(0)"), raw(f"s_branch L_back{r}", "branch")]
    return out

def rebase(par):
    out = [label(f"L_rebase{par}"), raw("s_waitcnt lgkmcnt(0)"), nop(7), nop(7),
           valu(f"v_and_b32 v{TMP}, 15, v{VLANE}"), valu(f"v_lshlrev_b32 v{TMP}, 8, v{TMP}"),
           valu(f"v_lshrrev_b32 v{TMP2}, 4, v{VLANE}"), valu(f"v_lshl_add_u32 v{TMP}, v{TMP2}, 4, v{TMP}")]
    for t in range(2):
        for u in range(4):
            out.append(buf_load(fr(t * 4 + u), 4, TMP, SK, f"s{sKS0 + t}", u * 64, tag="sl"))
    out.append(raw("s_waitcnt vmcnt(0)"))
    for t in range(2):
        for u in range(4):
            for j in range(3):
                out.append(mfma(sreg(par, j, t), fr(t * 4 + u), qf(j, u), negm(j) if u == 0 else None))
    out += [nop(7), nop(7)]
    for j in range(3):
        out += rowmax_code(par, j, TMP, TMP2)
        out.append(valu(f"v_max_f32 v{TMP}, 0, v{TMP}"))
        out.append(valu(f"v_sub_f32 v{TMP2}, 0, v{TMP}"))
        out.append(valu(f"v_exp_f32 v{TMP2}, v{TMP2}"))
        for r in range(4): out.append(valu(f"v_sub_f32 v{negm(j)+r}, v{negm(j)+r}, v{TMP}"))
        for pp in range(2):
            for r in range(8): out.append(valu(f"v_sub_f32 v{sreg(pp,j,0)+r}, v{sreg(pp,j,0)+r}, v{TMP}"))
        out.append(valu(f"v_mul_f32 v{L0+j}, v{L0+j}, v{TMP2}"))
        for r in range(32): out.append(valu(f"v_mul_f32 v{acc(j,0)+r}, v{acc(j,0)+r}, v{TMP2}"))
        a = sreg(par, j, 0); tj = T0 + j
        for r in range(8): out.append(valu(f"v_exp_f32 v{a+r}, v{a+r}"))
        out.append(nop(0))
        out.append(valu(f"v_add_f32 v{tj}, v{a}, v{a+1}"))
        for r in range(2, 8): out.append(valu(f"v_add_f32 v{tj}, v{tj}, v{a+r}"))
        for r in range(4): out.append(valu(f"v_cvt_pk_bf16_f32 v{a+r}, v{a+2*r}, v{a+2*r+1}"))
    out += [nop(3), raw(f"s_setpc_b64 s[{sRET}:{sRET+1}]", "branch")]
    return out

def srd(s, lo, hi, nbytes):
    return [salu(f"s_mov_b32 s{s}, s{lo}"), salu(f"s_and_b32 s{s+1}, s{hi}, 0xffff"),
            salu(f"s_mov_b32 s{s+2}, {nbytes}"), salu(f"s_mov_b32 s{s+3}, 0x00020000")]

def k1_prologue():
    o = [raw("s_cmp_ge_u32 s2, 512", "salu"), raw("s_cbranch_scc1 L1_end", "branch"),
         raw("s_load_dwordx8 s[48:55], s[0:1], 0"),
         raw("s_load_dwordx2 s[56:57], s[0:1], 56"),
         valu(f"v_and_b32 v{VLANE}, 63, v0"), valu(f"v_lshrrev_b32 v{TMP}, 6, v0"), nop(0),
         valu(f"v_readfirstlane_b32 s{sW}, v{TMP}"),
         salu(f"s_and_b32 s{sT0}, s2, 1"), salu(f"s_lshl_b32 s{sT0}, s{sT0}, 3"),
         salu(f"s_lshr_b32 s{sT1}, s2, 3"), salu(f"s_and_b32 s{sB}, s{sT1}, 3"), salu(f"s_add_u32 s{sB}, s{sB}, s{sT0}"),
         salu(f"s_lshr_b32 s{sT0}, s2, 8"), salu(f"s_lshl_b32 s{sT0}, s{sT0}, 2"), salu(f"s_add_u32 s{sB}, s{sB}, s{sT0}"),
         salu(f"s_lshr_b32 s{sT0}, s2, 1"), salu(f"s_and_b32 s{sT0}, s{sT0}, 3"), salu(f"s_lshl_b32 s{sT0}, s{sT0}, 3"),
         salu(f"s_lshr_b32 s{sH}, s2, 5"), salu(f"s_and_b32 s{sH}, s{sH}, 7"), salu(f"s_add_u32 s{sH}, s{sH}, s{sT0}"),
         raw("s_waitcnt lgkmcnt(0)")]
    o += srd(SX, 48, 49, 16 * 192 * 1024 * 2)
    o += srd(SWQ, 54, 55, 1024 * 4096 * 2)
    o += [salu(f"s_lshl_b32 s{sT0}, s{sB}, 5"), salu(f"s_add_u32 s{sT0}, s{sT0}, s{sH}"), salu(f"s_lshl_b32 s{sT0}, s{sT0}, 18"),
          salu(f"s_add_u32 s50, s50, s{sT0}"), salu("s_addc_u32 s51, s51, 0"),
          salu(f"s_add_u32 s52, s52, s{sT0}"), salu("s_addc_u32 s53, s53, 0")]
    o += srd(SK, 50, 51, 262144) + srd(SV, 52, 53, 262144)
    o += srd(SO, 56, 57, 192 * 128 * 1024)
    A, B, C, D = 2, 3, 4, 5
    V = valu
    o += [salu(f"s_mov_b32 s{sTK}, 0")]
    o += [salu(f"s_mul_i32 s{sMK}, s{sW}, {2*KP}"), salu(f"s_mul_i32 s{sMV}, s{sW}, {2*VP}"),
          salu(f"s_mov_b32 s{sTH}, {f32(1024.0)}"), salu(f"s_mov_b32 s{sC}, {f32(math.log2(math.e) / math.sqrt(128.0))}"),
          salu(f"s_mov_b32 s{sKO}, 0"), salu(f"s_mov_b32 s{sVO}, 0"),
          salu(f"s_mov_b32 s{sWO0}, 0"), salu(f"s_mul_i32 s{sMX}, s{sW}, 3072"),
          salu(f"s_mul_i32 s{sXO}, s{sB}, 192"), salu(f"s_mul_i32 s{sT0}, s{sW}, 48"), salu(f"s_add_u32 s{sXO}, s{sXO}, s{sT0}"),
          salu(f"s_lshl_b32 s{sX0}, s{sXO}, 11"), salu(f"s_add_u32 s{sX0+1}, s{sX0}, 0x8000"), salu(f"s_add_u32 s{sX0+2}, s{sX0}, 0x10000"),
          V(f"v_and_b32 v{A}, 15, v{VLANE}"),
          V(f"v_lshrrev_b32 v{B}, 4, v{VLANE}"),
          V(f"v_sub_u32 v{C}, 0, v{B}"), V(f"v_xor_b32 v{C}, v{C}, v{VLANE}"), V(f"v_and_b32 v{C}, 3, v{C}"),
          V(f"v_lshrrev_b32 v{D}, 2, v{VLANE}"), V(f"v_lshlrev_b32 v{D}, 11, v{D}"),
          V(f"v_lshl_add_u32 v{VXD}, v{C}, 4, v{D}"),
          V(f"v_and_b32 v{C}, 1, v{B}"), V(f"v_lshlrev_b32 v{C}, 2, v{C}"),
          V(f"v_lshrrev_b32 v{D}, 1, v{B}"), V(f"v_lshl_add_u32 v{C}, v{D}, 4, v{C}"),
          salu(f"s_lshl_b32 s{sT0}, s{sW}, 1"), salu(f"s_and_b32 s{sT0}, s{sT0}, 3"),
          salu(f"s_lshr_b32 s{sT1}, s{sW}, 1"), salu(f"s_lshl_b32 s{sT1}, s{sT1}, 3"), salu(f"s_add_u32 s{sT0}, s{sT0}, s{sT1}"),
          V(f"v_add_u32 v{C}, s{sT0}, v{C}"), V(f"v_lshlrev_b32 v{C}, 13, v{C}"),
          V(f"v_lshl_add_u32 v{C}, v{A}, 4, v{C}"),
          salu(f"s_lshl_b32 s{sT0}, s{sH}, 8"),
          V(f"v_add_u32 v{VDW0}, s{sT0}, v{C}"), V(f"v_add_u32 v{VDW1}, 0x2000, v{VDW0}"),
          ]
    def em(pairs):
        r = []
        for m0i, d in pairs: r += [m0i, nop(0), d]
        return r
    def wl(i): return em(dma_w(i)) + [salu(f"s_add_u32 s{sWO0}, s{sWO0}, {WADV}")]
    mark = len(o)
    o += em(dma_x(0)) + wl(0) + em(dma_x(1)) + wl(1) + em(dma_x(2)) + wl(2) + wl(3) + wl(4)
    if TOUCH:
        T1, T2, T3 = 60, 61, 62
        tch = [raw("s_cmp_lt_u32 s2, 256", "salu"), raw("s_cbranch_scc1 L1_notouch", "branch"),
              salu(f"s_lshr_b32 s{sT0}, s2, 3"), salu(f"s_and_b32 s{sT0}, s{sT0}, 31"), salu(f"s_lshl_b32 s{sT0}, s{sT0}, 2"), salu(f"s_add_u32 s{sT0}, s{sT0}, s{sW}"),
              V(f"v_lshlrev_b32 v{C}, 7, v{A}"), V(f"v_and_b32 v{D}, 1, v{B}"),
              V(f"v_lshl_add_u32 v{T1}, v{D}, 13, v{C}"),
              salu(f"s_lshl_b32 s{sT1}, s{sT0}, 14"),
              salu(f"s_lshr_b32 s{sXO}, s2, 1"), salu(f"s_and_b32 s{sXO}, s{sXO}, 3"), salu(f"s_lshl_b32 s{sXO}, s{sXO}, 11"),
              salu(f"s_add_u32 s{sT1}, s{sT1}, s{sXO}"),
              V(f"v_lshrrev_b32 v{C}, 2, v{VLANE}"), V(f"v_and_b32 v{C}, 7, v{C}"), V(f"v_min_u32 v{C}, 5, v{C}"),
              V(f"v_and_b32 v{D}, 3, v{VLANE}"), V(f"v_lshlrev_b32 v{D}, 7, v{D}"), V(f"v_lshl_add_u32 v{T2}, v{C}, 11, v{D}"),
              V(f"v_lshrrev_b32 v{C}, 3, v{VLANE}"), V(f"v_min_u32 v{C}, 5, v{C}"),
              V(f"v_and_b32 v{D}, 7, v{VLANE}"), V(f"v_lshlrev_b32 v{D}, 7, v{D}"), V(f"v_lshl_add_u32 v{T3}, v{C}, 11, v{D}"),
              salu(f"s_mul_i32 s{sT0}, s{sT0}, {6*2048}"), salu(f"s_and_b32 s{sXO}, s2, 1"), salu(f"s_mul_i32 s{sXO}, s{sXO}, {8*192*2048}"),
              salu(f"s_add_u32 s{sT0}, s{sT0}, s{sXO}"), salu(f"s_add_u32 s{sXO}, s{sT0}, {4*192*2048}"),
              salu("s_mov_b32 exec_hi, 0")]
        for a in range(4):
            tch += [raw(f"buffer_load_dword v63, v{T1}, s[{SWQ}:{SWQ+3}], s{sT1} offen{TFLAGS}"),
                    raw(f"buffer_load_dword v63, v{T2}, s[{SX}:{SX+3}], s{sT0} offen offset:{512*a}{TFLAGS}"),
                    salu(f"s_add_u32 s{sT1}, s{sT1}, {256*8192}")]
        tch += [salu("s_mov_b32 exec_hi, -1")]
        for a in range(2):
            tch += [raw(f"buffer_load_dword v63, v{T3}, s[{SX}:{SX+3}], s{sXO} offen offset:{1024*a}{TFLAGS}")]
        tch += [label("L1_notouch")]
        o = o[:mark] + tch + o[mark:]
    o += [
          V(f"v_lshrrev_b32 v{C}, 2, v{A}"), V(f"v_sub_u32 v{C}, 0, v{C}"), V(f"v_xor_b32 v{C}, v{C}, v{B}"), V(f"v_and_b32 v{C}, 3, v{C}"),
          V(f"v_lshlrev_b32 v{C}, 4, v{C}"), V(f"v_lshl_add_u32 v{C}, v{A}, 6, v{C}"),
          salu(f"s_add_u32 s{sT0}, s{sMX}, {XBASE}"), V(f"v_add_u32 v{VXR}, s{sT0}, v{C}")]
    o += [
          V(f"v_lshrrev_b32 v{C}, 2, v{A}"), V(f"v_mul_u32_u24 v{VKR}, {KP}, v{C}"),
          V(f"v_and_b32 v{C}, 3, v{A}"), V(f"v_lshl_add_u32 v{VKR}, v{C}, 8, v{VKR}"),
          V(f"v_xor_b32 v{C}, v{C}, v{B}"), V(f"v_lshl_add_u32 v{VKR}, v{C}, 4, v{VKR}"),
          V(f"v_and_b32 v{C}, 1, v{B}"), V(f"v_lshlrev_b32 v{C}, 2, v{C}"), V(f"v_lshrrev_b32 v{D}, 2, v{A}"), V(f"v_add_u32 v{C}, v{C}, v{D}"),
          V(f"v_mul_u32_u24 v{C}, {VP}, v{C}"),
          V(f"v_lshrrev_b32 v{D}, 1, v{B}"),
          V(f"v_lshl_add_u32 v{VVR}, v{D}, 8, v{C}"),
          V(f"v_lshl_add_u32 v{VWR0}, v{D}, 9, v{C}"),
          V(f"v_and_b32 v{D}, 3, v{A}"),
          V(f"v_lshl_add_u32 v{VVR}, v{D}, 3, v{VVR}"), V(f"v_add_u32 v{VVR}, {VBIAS}, v{VVR}"),
          V(f"v_lshl_add_u32 v{VWR0}, v{D}, 4, v{VWR0}"),
          V(f"v_lshrrev_b32 v{D}, 1, v{D}"),
          V(f"v_xor_b32 v{C}, 1, v{D}"),
          V(f"v_lshl_add_u32 v{VWR1}, v{C}, 3, v{VWR0}"),
          V(f"v_lshl_add_u32 v{VWR0}, v{D}, 3, v{VWR0}"),
          V(f"v_and_b32 v{C}, 3, v{A}"), V(f"v_xor_b32 v{C}, v{C}, v{B}"), V(f"v_and_b32 v{D}, 12, v{A}"), V(f"v_or_b32 v{C}, v{C}, v{D}"),
          V(f"v_lshlrev_b32 v{C}, 4, v{C}"), V(f"v_lshl_add_u32 v{C}, v{B}, 8, v{C}"),
          salu(f"s_lshl_b32 s{sT0}, s{sW}, 11"), V(f"v_add_u32 v{VDK}, s{sT0}, v{C}"),
          V(f"v_lshlrev_b32 v{C}, 4, v{A}"), V(f"v_lshl_add_u32 v{C}, v{B}, 11, v{C}"),
          salu(f"s_lshl_b32 s{sT0}, s{sW}, 9"), V(f"v_add_u32 v{VDV}, s{sT0}, v{C}"),
          wait(vm=[("X", 0)]), *rd_x(0), wait(vm=[("W", 0)], lgkm="all"), barrier()]
    return o

def k1_epilogue():
    o = [nop(7), nop(1)]
    V = valu
    o += [salu(f"s_mul_i32 s{sT0}, s{sB}, 12"), salu(f"s_mul_i32 s{sT1}, s{sW}, 3"), salu(f"s_add_u32 s{sT0}, s{sT0}, s{sT1}"),
          salu(f"s_lshl_b32 s{sT0}, s{sT0}, 17"), salu(f"s_lshl_b32 s{sT1}, s{sH}, 12"), salu(f"s_add_u32 s{sT0}, s{sT0}, s{sT1}"),
          V(f"v_lshlrev_b32 v{TMP3}, 4, v{VLANE}")]
    for j in range(3):
        l = L0 + j
        o += [V(f"v_mov_b32 v{TMP}, v{l}"), nop(1), V(f"v_permlane16_swap_b32 v{l}, v{TMP}"), nop(1), V(f"v_add_f32 v{l}, v{l}, v{TMP}"),
              V(f"v_mov_b32 v{TMP}, v{l}"), nop(1), V(f"v_permlane32_swap_b32 v{l}, v{TMP}"), nop(1), V(f"v_add_f32 v{l}, v{l}, v{TMP}"),
              V(f"v_rcp_f32 v{l}, v{l}"), nop(0)]
        for u in range(4):
            a = acc(j, 2 * u)
            for r in range(8): o.append(V(f"v_mul_f32 v{a+r}, v{a+r}, v{l}"))
            q = qf(j, u)
            for r in range(4): o.append(V(f"v_cvt_pk_bf16_f32 v{q+r}, v{a+2*r}, v{a+2*r+1}"))
            o.append(buf_store(q, 4, TMP3, SO, f"s{sT0}", u * 1024, tag="st", flags=OSTFLAGS))
        if j < 2: o.append(salu(f"s_add_u32 s{sT0}, s{sT0}, 0x20000"))
    return o

STAMP = False
def stamp(i):
    if not STAMP: return []
    return [raw(f"s_memrealtime s[{64+4*i}:{65+4*i}]"), raw(f"s_memtime s[{66+4*i}:{67+4*i}]")]
def stamp_store(n, wsoff, srdreg, nwg_stride=4):
    if not STAMP: return []
    o = [raw("s_waitcnt lgkmcnt(0)"), salu(f"s_mov_b32 s{srdreg+2}, 0x20000000"),
         salu(f"s_lshl_b32 s60, s2, 2"), salu(f"s_add_u32 s60, s60, s24"), salu("s_lshl_b32 s60, s60, 6"), salu(f"s_add_u32 s60, s60, {wsoff}"),
         valu(f"v_mov_b32 v2, 0"), salu("s_mov_b64 exec, 1")]
    for i in range(n):
        o += [valu(f"v_mov_b32 v4, s{64+4*i}"), valu(f"v_mov_b32 v5, s{66+4*i}"), buf_store(4, 2, 2, srdreg, "s60", 8 * i, tag="dbg"), nop(1)]
    return o

def gen_k1():
    pro = k1_prologue()
    steps = [p_step(ps) for ps in range(16)] + [init_step()] + [a_step(kt) for kt in range(33)]
    lin = link(steps)[:-1]
    epi = k1_epilogue()
    full = pro + [x for s in lin for x in s] + epi
    errs, _, _ = resolve_waits(full)
    errs += check_hazards(full)
    subs = []
    for r in range(4): subs += slow_stub(r)
    for par in range(2):
        rb = rebase(par)
        errs += check_hazards(rb)
        subs += rb
    if errs:
        print("\n".join(errs[:40]), file=sys.stderr); raise SystemExit("generation errors: %d" % len(errs))
    def grp(lo, n): return [x for s in lin[lo:lo + n] for x in s]
    out = pro[:2] + stamp(0) + pro[2:]
    sSWC = sWO1
    pr0 = [raw("s_setprio 1"), salu(f"s_mov_b32 s{sSWC}, 99"), raw("s_cmp_ge_u32 s2, 256", "salu"), raw("s_cbranch_scc1 L1_pr0", "branch"),
           raw("s_setprio 2"), salu(f"s_mov_b32 s{sSWC}, {8 - SW}"), label("L1_pr0")]
    prp = [raw("s_cmp_ge_u32 s2, 256", "salu"), raw("s_cbranch_scc1 L1_prp", "branch"), raw("s_setprio 0"), label("L1_prp")]
    prl = [raw(f"s_cmp_lg_u32 s{sCNT}, s{sSWC}", "salu"), raw("s_cbranch_scc1 L1_prl", "branch"), raw("s_setprio 0"), label("L1_prl")]
    if SW < 0: pr0 = []; prl = []
    out += pr0
    if PSW >= 0: out += grp(0, PSW) + prp + grp(PSW, 16 - PSW)
    else: out += grp(0, 16)
    out += stamp(1) + grp(16, 1) + stamp(2)
    out += [salu(f"s_mov_b32 s{sCNT}, 8"), label("L1_aloop")] + prl
    out += fold([grp(17 + 4 * i, 4) for i in range(8)])
    out += [salu(f"s_sub_u32 s{sCNT}, s{sCNT}, 1"), salu(f"s_cmp_lg_u32 s{sCNT}, 0"), raw("s_cbranch_scc1 L1_aloop", "branch")]
    tk = []
    if TICK:
        tk = [salu(f"s_mov_b32 s{SO+2}, 0x20000000"), salu(f"s_lshl_b32 s60, s2, 2"), salu(f"s_add_u32 s60, s60, s24"), salu("s_lshl_b32 s60, s60, 9"),
              salu(f"s_add_u32 s60, s60, {66 << 20}"), valu(f"v_lshlrev_b32 v2, 2, v{VLANE}"), nop(4),
              buf_store(0, 1, 2, SO, "s60", 0, tag="dbg"), buf_store(15, 1, 2, SO, "s60", 256, tag="dbg"), nop(1)]
    out += stamp(3) + epi + stamp(4) + tk + stamp_store(5, 64 << 20, SO)
    out += [label("L1_end"), raw("s_endpgm")]
    out += subs
    return out

if __name__ == "__main__":
    print(emit(gen_k1()))
```

```python
import sys, math, struct
from asmlib import *

def f32(x): return struct.unpack("<I", struct.pack("<f", x))[0]

SLOT = 8704
KP, VP = 1088, 1056

L0, T0, TMP, TMP2 = 1, 4, 7, 8
VKR, VVR, VDK, VDV = 9, 10, 11, 12
VLANE = 13
TMP3, TMP4 = 14, 15
NM = 16
VDW0, VDW1, VXD, VWR, VXR = 16, 17, 18, 20, 60
FR = 28
SP = 64
QR = 112
ACC = 160
def acc(j, dt): return ACC + (j * 8 + dt) * 4
def qf(j, u): return QR + (j * 4 + u) * 4
def sreg(par, j, t): return SP + par * 24 + j * 8 + t * 4
def negm(j): return NM + 4 * j
def fr(n): return FR + 4 * (n % 8)
def xb(buf, half, j): return SP + buf * 24 + (half * 3 + j) * 4
def xf(st, half, j): return SP + (st % 2) * 24 + (half * 3 + j) * 4

SX, SWQ, SK, SV, SO = 4, 8, 12, 16, 20
sW, sB, sH = 24, 25, 26
sXO, sWO0, sWO1, sKO, sVO, sCNT, sMK, sMV, sTH, sC = 27, 28, 29, 30, 31, 32, 33, 34, 35, 36
sT0, sT1 = 37, 38
sRET = 40
sEX = 42
sKS0, sKS1 = 44, 45
sX0 = 58
sMX = 61
sMW = 63

POS = {0: -12, 1: -11, 2: -10, 3: -9, 4: -8, 5: -6, 6: -3, 7: 3}
for n in range(8, 16): POS[n] = 3 * n - 18
BAR = 36
DMA_GAPS = [37, 40, 43, 46]

class Step:
    def __init__(self, name):
        self.name = name
        self.mf = [None] * 48
        self.gaps = {}
        self.pre = {}
        self.reads = None
        self.has_bar = True
        self.pos = POS
    def gap(self, m, *ins): self.gaps.setdefault(m, []).extend(ins)
    def before(self, m, *ins): self.pre.setdefault(m, []).extend(ins)

WSL = 8192
XBASE = 4 * WSL
XSL = 24576
LDS_BYTES = XBASE + 2 * XSL
def w_slot(i): return (i % 4) * WSL
def x_slot(i): return XBASE + (i % 2) * XSL
KS = [4 * SLOT, 6 * SLOT, 8 * SLOT, 1 * SLOT]
VS = [5 * SLOT, 7 * SLOT, 0, 2 * SLOT]
KBIAS = SLOT
VBIAS = 0
def k_slot(i): return KS[i % 4]
def v_slot(i): return VS[i % 4]

def rd_w(tile, a, n, tagp):
    u, T = a >> 1, a & 1
    base = w_slot(tile)
    va = VWR + T * 4 + u
    return [ds_read("ds_read_b64_tr_b16", fr(n), 2, va, base, tag=(tagp, n)),
            ds_read("ds_read_b64_tr_b16", fr(n) + 2, 2, va, base + 256, tag=(tagp, n))]
def rd_k(tile, a, n, tagp):
    t, u = a >> 2, a & 3
    return [ds_read("ds_read_b128", fr(n), 4, VKR, k_slot(tile) - KBIAS + t * 4 * KP + u * 64, tag=(tagp, n))]
def rd_v(tile, dt, n, tagp):
    base = v_slot(tile) - VBIAS + dt * 32
    return [ds_read("ds_read_b64_tr_b16", fr(n), 2, VVR, base, tag=(tagp, n)),
            ds_read("ds_read_b64_tr_b16", fr(n) + 2, 2, VVR, base + 512, tag=(tagp, n))]

import os
KVADV = os.environ.get("KVADV", "0x2000")
XADV = int(os.environ.get("XADV", "128"))
WADV = os.environ.get("WADV", "0x40000")
TICK = int(os.environ.get("TICK", "0"))
sTK = 62
TOUCH = int(os.environ.get("TOUCH", "1"))
TFLAGS = os.environ.get("TF", "")
SW = int(os.environ.get("SW", "3"))
PSW = int(os.environ.get("PSW", "-1"))
KVFLAGS = os.environ.get("KVF", " nt")
XFLAGS = os.environ.get("XF", "")
WQFLAGS = os.environ.get("WQF", "")
OSTFLAGS = os.environ.get("OSF", "")
def tick_pre():
    return [raw("s_memtime s[84:85]"), raw("s_memrealtime s[86:87]")] if TICK else []
def tick_post():
    return [raw(f"s_mov_b32 m0, s{sTK}"), nop(0), raw(f"v_writelane_b32 v0, s84, m0"), raw(f"v_writelane_b32 v15, s86, m0"), raw(f"s_add_u32 s{sTK}, s{sTK}, 1")] if TICK else []
def dma_k(i):
    s = k_slot(i)
    return [(salu(f"s_add_u32 m0, s{sMK}, {s}"), buf_dma(VDK, SK, f"s{sKO}", 0, tag=("K", i), flags=KVFLAGS)),
            (salu(f"s_add_u32 m0, s{sMK}, {s + KP - 1024}"), buf_dma(VDK, SK, f"s{sKO}", 1024, tag=("K", i), flags=KVFLAGS))]
def dma_v(i):
    s = v_slot(i)
    return [(salu(f"s_add_u32 m0, s{sMV}, {s}"), buf_dma(VDV, SV, f"s{sVO}", 0, tag=("V", i), flags=KVFLAGS)),
            (salu(f"s_add_u32 m0, s{sMV}, {s + VP - 256}"), buf_dma(VDV, SV, f"s{sVO}", 256, tag=("V", i), flags=KVFLAGS))]
def dma_w(i):
    s = w_slot(i)
    so = f"s{sWO0}"
    return [(salu(f"s_add_u32 m0, s{sMW}, {s}"), buf_dma(VDW0, SWQ, so, 0, tag=("W", i), flags=WQFLAGS)),
            (salu(f"s_add_u32 m0, s{sMW}, {s + 1024}"), buf_dma(VDW1, SWQ, so, 0, tag=("W", i), flags=WQFLAGS))]

def dma_x(t):
    s = x_slot(t)
    return [(salu(f"s_add_u32 m0, s{sMX}, {s + e * 1024 - t * XADV}"), buf_dma(VXD + (e & 1), SX, f"s{sX0 + (e >> 1)}", t * XADV, tag=("X", t), flags=XFLAGS)) for e in range(6)]
def rd_x(t):
    return [ds_read("ds_read_b128", xf(t, half, j), 4, VXR + half, x_slot(t) - XBASE + j * 2048, tag=("x", t)) for half in range(2) for j in range(3)]

def place_dma(st, pairs, gaps=None):
    assert len(pairs) <= len(gaps or DMA_GAPS)
    for (m0i, d), g in zip(pairs, gaps or DMA_GAPS):
        st.before(g, m0i)
        if st.mf[g] is None: st.before(g, nop(0))
        st.gap(g, d)

def sm_half(st, g0, par, j, t, first_l):
    a = sreg(par, j, t); p = sreg(par, j, 0) + 2 * t; tj = T0 + j; lj = L0 + j
    for r in range(4): st.gap(g0 + r, valu(f"v_exp_f32 v{a+r}, v{a+r}"))
    if t == 0:
        if first_l: st.gap(g0 + 4, valu(f"v_add_f32 v{lj}, v{lj}, v{tj}"))
        st.gap(g0 + 4, valu(f"v_add_f32 v{tj}, v{a}, v{a+1}"))
    else:
        st.gap(g0 + 4, valu(f"v_add_f32 v{tj}, v{tj}, v{a}"), valu(f"v_add_f32 v{tj}, v{tj}, v{a+1}"))
    st.gap(g0 + 5, valu(f"v_cvt_pk_bf16_f32 v{p}, v{a}, v{a+1}"), valu(f"v_add_f32 v{tj}, v{tj}, v{a+2}"))
    st.gap(g0 + 6, valu(f"v_add_f32 v{tj}, v{tj}, v{a+3}"), valu(f"v_cvt_pk_bf16_f32 v{p+1}, v{a+2}, v{a+3}"))

def link(steps):
    for i, st in enumerate(steps):
        for n in range(16):
            if st.reads is None: continue
            r = st.reads(n)
            if r is None: continue
            p = st.pos[n]
            if p < 0:
                if i == 0:
                    st.before(0, *r)
                else:
                    steps[i - 1].gap(48 + p, *r)
            else:
                st.gap(p, *r)
    out = []
    for st in steps:
        if st.reads is not None:
            for n in range(0, 16, 2):
                if st.reads(n) is None: continue
                st.pre.setdefault(3 * n, []).append(wait(lgkm=[(st.name, n), (st.name, n + 1)]))
        out.append(interleave(st.mf, st.gaps, st.pre))
    return out

POSP = dict(POS)
for n in range(8, 16): POSP[n] = 24 + POS[n - 8]
def p_step(ps):
    st = Step(f"P{ps}")
    st.pos = POSP
    if ps + 1 <= 15:
        st.gap(3, wait(vm=[("X", ps + 1)]))
        for j, r in enumerate(rd_x(ps + 1)): st.gap(4 + j, r)
    for half in range(2):
        t = 2 * ps + half
        o = 24 * half
        for a in range(8):
            for j in range(3):
                st.mf[o + a * 3 + j] = mfma(acc(j, a), fr(half * 8 + a), xf(ps, half, j), 'z' if t == 0 else None)
        need = [("W", t + 1)] if t < 31 else [("K", 0)]
        if half == 1: st.before(o + 12, *tick_pre(), wait(vm=need, lgkm="all"), barrier(), *tick_post())
        else: st.before(o + 12, wait(vm=need, lgkm="all"), barrier())
        d = []
        post = []
        if t + 4 <= 31:
            d += dma_w(t + 4); post.append(salu(f"s_add_u32 s{sWO0}, s{sWO0}, {WADV}"))
        kv = {26: "K0", 27: "V0", 28: "K1 V1", 29: "K2 V2", 30: "K3", 31: "V3"}.get(t, "")
        for it in kv.split():
            if it[0] == "K":
                d += dma_k(int(it[1])); post.append(salu(f"s_add_u32 s{sKO}, s{sKO}, {KVADV}"))
            else:
                d += dma_v(int(it[1])); post.append(salu(f"s_add_u32 s{sVO}, s{sVO}, {KVADV}"))
        place_dma(st, d, [o + 13, o + 15, o + 17, o + 19])
        st.gap(o + 22, *post)
    if ps + 3 <= 15: place_dma(st, dma_x(ps + 3), [18, 21, 24, 27, 30, 33])
    st.reads = lambda n: rd_w(2 * ps + (n >> 3), n & 7, n, st.name)
    if ps == 0:
        place_dma(st, dma_x(2), [0, 1, 2, 9, 10, 11])
    return st

def qk_mfmas(st, kt1, czero=False):
    par = kt1 & 1
    for t in range(2):
        for u in range(4):
            for j in range(3):
                m = t * 12 + u * 3 + j
                c = None
                if u == 0: c = 'z' if czero else negm(j)
                st.mf[m] = mfma(sreg(par, j, t), fr(t * 4 + u), qf(j, u), c)

def rowmax_code(par, j, dst, tmp):
    a = sreg(par, j, 0)
    return [valu(f"v_max3_f32 v{dst}, v{a}, v{a+1}, v{a+2}"),
            valu(f"v_max3_f32 v{dst}, v{dst}, v{a+3}, v{a+4}"),
            valu(f"v_max3_f32 v{dst}, v{dst}, v{a+5}, v{a+6}"),
            valu(f"v_max_f32 v{dst}, v{dst}, v{a+7}"),
            valu(f"v_mov_b32 v{tmp}, v{dst}"), nop(1),
            valu(f"v_permlane16_swap_b32 v{dst}, v{tmp}"), nop(1),
            valu(f"v_max_f32 v{dst}, v{dst}, v{tmp}"),
            valu(f"v_mov_b32 v{tmp}, v{dst}"), nop(1),
            valu(f"v_permlane32_swap_b32 v{dst}, v{tmp}"), nop(1),
            valu(f"v_max_f32 v{dst}, v{dst}, v{tmp}")]

def q_finalize():
    out = [nop(7), nop(1)]
    for j in range(3):
        for dt in range(8):
            for r in range(4):
                a = acc(j, dt) + r
                out.append(valu(f"v_mul_f32 v{a}, s{sC}, v{a}"))
    for j in range(3):
        for u in range(4):
            q = qf(j, u); a0 = acc(j, 2 * u); a1 = acc(j, 2 * u + 1)
            out += [valu(f"v_cvt_pk_bf16_f32 v{q}, v{a0}, v{a0+1}"), valu(f"v_cvt_pk_bf16_f32 v{q+1}, v{a0+2}, v{a0+3}"),
                    valu(f"v_cvt_pk_bf16_f32 v{q+2}, v{a1}, v{a1+1}"), valu(f"v_cvt_pk_bf16_f32 v{q+3}, v{a1+2}, v{a1+3}")]
    out += [salu("s_mov_b32 exec_lo, 0"), nop(0)]
    for j in range(3):
        for u in range(4):
            q = qf(j, u)
            out += [valu(f"v_swap_b32 v{q}, v{q+2}"), valu(f"v_swap_b32 v{q+1}, v{q+3}")]
    out += [salu("s_mov_b32 exec_lo, -1"), nop(1)]
    return out

def init_step():
    st = Step("A-1")
    qk_mfmas(st, 0, czero=True)
    st.reads = lambda n: rd_k(0, n, n, st.name) if n < 8 else None
    st.before(0, *q_finalize())
    z = [valu(f"v_mov_b32 v{ACC+i}, 0") for i in range(96)]
    for i, ins in enumerate(z): st.gap(i // 4, ins)
    post = [nop(7), nop(1)]
    for j in range(3):
        post += rowmax_code(0, j, TMP, TMP2)
        for r in range(4): post.append(valu(f"v_sub_f32 v{negm(j)+r}, 0, v{TMP}"))
        for r in range(8): post.append(valu(f"v_sub_f32 v{sreg(0,j,0)+r}, v{sreg(0,j,0)+r}, v{TMP}"))
        post.append(valu(f"v_mov_b32 v{L0+j}, 0"))
    st.gap(23, *post)
    for j in range(3): sm_half(st, 24 + 4 * j, 0, j, 0, False)
    st.before(BAR, *tick_pre(), wait(vm=[("K", 1), ("V", 0)], lgkm="all"), barrier(), *tick_post())
    place_dma(st, dma_k(4))
    st.gap(47, salu(f"s_add_u32 s{sKO}, s{sKO}, {KVADV}"))
    return st

def a_step(kt):
    st = Step(f"A{kt}")
    par = kt & 1
    qk_mfmas(st, kt + 1)
    for dt in range(8):
        for j in range(3):
            st.mf[24 + dt * 3 + j] = mfma(acc(j, dt), fr(8 + dt), sreg(par, j, 0))
    st.reads = lambda n: rd_k(kt + 1, n, n, st.name) if n < 8 else rd_v(kt, n - 8, n, st.name)
    for j in range(3): sm_half(st, 7 * j, par, j, 1, False)
    st.gap(21, valu(f"v_max3_f32 v{TMP}, v{T0}, v{T0+1}, v{T0+2}"))
    st.gap(22, valu(f"v_cmp_lt_f32 vcc, s{sTH}, v{TMP}"))
    st.gap(23, raw(f"s_cbranch_vccnz L_slow{kt%4}", "branch"), label(f"L_back{kt%4}"))
    for j in range(3): sm_half(st, 24 + 7 * j, 1 - par, j, 0, True)
    st.before(BAR, *tick_pre(), wait(vm=[("K", kt + 2), ("V", kt + 1)], lgkm="all"), barrier(), *tick_post())
    place_dma(st, dma_k(kt + 5) + dma_v(kt + 4))
    st.gap(47, salu(f"s_add_u32 s{sKO}, s{sKO}, {KVADV}"), salu(f"s_add_u32 s{sVO}, s{sVO}, {KVADV}"))
    return st

def slow_stub(r):
    out = [label(f"L_slow{r}"),
           salu(f"s_sub_u32 s{sKS0}, s{sKO}, {5*8192}"),
           salu(f"s_add_u32 s{sKS1}, s{sKS0}, 4096"),
           raw(f"s_call_b64 s[{sRET}:{sRET+1}], L_rebase{r&1}", "branch")]
    for n in range(8, 16):
        if POS[n] <= 23: out += rd_v(r, n - 8, n, "slow")
    out += [raw("s_waitcnt lgkmcnt(0)"), raw(f"s_branch L_back{r}", "branch")]
    return out

def rebase(par):
    out = [label(f"L_rebase{par}"), raw("s_waitcnt lgkmcnt(0)"), nop(7), nop(7),
           valu(f"v_and_b32 v{TMP}, 15, v{VLANE}"), valu(f"v_lshlrev_b32 v{TMP}, 8, v{TMP}"),
           valu(f"v_lshrrev_b32 v{TMP2}, 4, v{VLANE}"), valu(f"v_lshl_add_u32 v{TMP}, v{TMP2}, 4, v{TMP}")]
    for t in range(2):
        for u in range(4):
            out.append(buf_load(fr(t * 4 + u), 4, TMP, SK, f"s{sKS0 + t}", u * 64, tag="sl"))
    out.append(raw("s_waitcnt vmcnt(0)"))
    for t in range(2):
        for u in range(4):
            for j in range(3):
                out.append(mfma(sreg(par, j, t), fr(t * 4 + u), qf(j, u), negm(j) if u == 0 else None))
    out += [nop(7), nop(7)]
    for j in range(3):
        out += rowmax_code(par, j, TMP, TMP2)
        out.append(valu(f"v_max_f32 v{TMP}, 0, v{TMP}"))
        out.append(valu(f"v_sub_f32 v{TMP2}, 0, v{TMP}"))
        out.append(valu(f"v_exp_f32 v{TMP2}, v{TMP2}"))
        for r in range(4): out.append(valu(f"v_sub_f32 v{negm(j)+r}, v{negm(j)+r}, v{TMP}"))
        for pp in range(2):
            for r in range(8): out.append(valu(f"v_sub_f32 v{sreg(pp,j,0)+r}, v{sreg(pp,j,0)+r}, v{TMP}"))
        out.append(valu(f"v_mul_f32 v{L0+j}, v{L0+j}, v{TMP2}"))
        for r in range(32): out.append(valu(f"v_mul_f32 v{acc(j,0)+r}, v{acc(j,0)+r}, v{TMP2}"))
        a = sreg(par, j, 0); tj = T0 + j
        for r in range(8): out.append(valu(f"v_exp_f32 v{a+r}, v{a+r}"))
        out.append(nop(0))
        out.append(valu(f"v_add_f32 v{tj}, v{a}, v{a+1}"))
        for r in range(2, 8): out.append(valu(f"v_add_f32 v{tj}, v{tj}, v{a+r}"))
        for r in range(4): out.append(valu(f"v_cvt_pk_bf16_f32 v{a+r}, v{a+2*r}, v{a+2*r+1}"))
    out += [nop(3), raw(f"s_setpc_b64 s[{sRET}:{sRET+1}]", "branch")]
    return out

def srd(s, lo, hi, nbytes):
    return [salu(f"s_mov_b32 s{s}, s{lo}"), salu(f"s_and_b32 s{s+1}, s{hi}, 0xffff"),
            salu(f"s_mov_b32 s{s+2}, {nbytes}"), salu(f"s_mov_b32 s{s+3}, 0x00020000")]

def k1_prologue():
    o = [raw("s_cmp_ge_u32 s2, 512", "salu"), raw("s_cbranch_scc1 L1_end", "branch"),
         raw("s_load_dwordx8 s[48:55], s[0:1], 0"),
         raw("s_load_dwordx2 s[56:57], s[0:1], 56"),
         valu(f"v_and_b32 v{VLANE}, 63, v0"), valu(f"v_lshrrev_b32 v{TMP}, 6, v0"), nop(0),
         valu(f"v_readfirstlane_b32 s{sW}, v{TMP}"),
         salu(f"s_and_b32 s{sT0}, s2, 1"), salu(f"s_lshl_b32 s{sT0}, s{sT0}, 3"),
         salu(f"s_lshr_b32 s{sT1}, s2, 3"), salu(f"s_and_b32 s{sB}, s{sT1}, 3"), salu(f"s_add_u32 s{sB}, s{sB}, s{sT0}"),
         salu(f"s_lshr_b32 s{sT0}, s2, 8"), salu(f"s_lshl_b32 s{sT0}, s{sT0}, 2"), salu(f"s_add_u32 s{sB}, s{sB}, s{sT0}"),
         salu(f"s_lshr_b32 s{sT0}, s2, 1"), salu(f"s_and_b32 s{sT0}, s{sT0}, 3"), salu(f"s_lshl_b32 s{sT0}, s{sT0}, 3"),
         salu(f"s_lshr_b32 s{sH}, s2, 5"), salu(f"s_and_b32 s{sH}, s{sH}, 7"), salu(f"s_add_u32 s{sH}, s{sH}, s{sT0}"),
         raw("s_waitcnt lgkmcnt(0)")]
    o += srd(SX, 48, 49, 16 * 192 * 1024 * 2)
    o += srd(SWQ, 54, 55, 1024 * 4096 * 2)
    o += [salu(f"s_lshl_b32 s{sT0}, s{sB}, 5"), salu(f"s_add_u32 s{sT0}, s{sT0}, s{sH}"), salu(f"s_lshl_b32 s{sT0}, s{sT0}, 18"),
          salu(f"s_add_u32 s50, s50, s{sT0}"), salu("s_addc_u32 s51, s51, 0"),
          salu(f"s_add_u32 s52, s52, s{sT0}"), salu("s_addc_u32 s53, s53, 0")]
    o += srd(SK, 50, 51, 262144) + srd(SV, 52, 53, 262144)
    o += srd(SO, 56, 57, 192 * 128 * 1024)
    A, B, C, D = 2, 3, 4, 5
    V = valu
    o += [salu(f"s_mov_b32 s{sTK}, 0")]
    o += [salu(f"s_mul_i32 s{sMK}, s{sW}, {2*KP}"), salu(f"s_mul_i32 s{sMV}, s{sW}, {2*VP}"),
          salu(f"s_mov_b32 s{sTH}, {f32(1024.0)}"), salu(f"s_mov_b32 s{sC}, {f32(math.log2(math.e) / math.sqrt(128.0))}"),
          salu(f"s_mov_b32 s{sKO}, 0"), salu(f"s_mov_b32 s{sVO}, 0"),
          salu(f"s_mov_b32 s{sWO0}, 0"), salu(f"s_mul_i32 s{sMX}, s{sW}, 6144"), salu(f"s_lshl_b32 s{sMW}, s{sW}, 11"),
          salu(f"s_mul_i32 s{sXO}, s{sB}, 192"), salu(f"s_mul_i32 s{sT0}, s{sW}, 48"), salu(f"s_add_u32 s{sXO}, s{sXO}, s{sT0}"),
          salu(f"s_lshl_b32 s{sX0}, s{sXO}, 11"), salu(f"s_add_u32 s{sX0+1}, s{sX0}, 0x8000"), salu(f"s_add_u32 s{sX0+2}, s{sX0}, 0x10000"),
          V(f"v_and_b32 v{A}, 15, v{VLANE}"),
          V(f"v_lshrrev_b32 v{B}, 4, v{VLANE}"),
          V(f"v_xor_b32 v{C}, v{B}, v{VLANE}"), V(f"v_and_b32 v{C}, 7, v{C}"),
          V(f"v_lshrrev_b32 v{D}, 3, v{VLANE}"), V(f"v_lshlrev_b32 v{D}, 11, v{D}"),
          V(f"v_lshl_add_u32 v{VXD}, v{C}, 4, v{D}"),
          V(f"v_xor_b32 v{VXD+1}, 64, v{VXD}"), V(f"v_add_u32 v{VXD+1}, 0x4000, v{VXD+1}"),
          V(f"v_and_b32 v{C}, 1, v{B}"), V(f"v_lshlrev_b32 v{C}, 2, v{C}"),
          V(f"v_lshrrev_b32 v{D}, 1, v{B}"), V(f"v_lshl_add_u32 v{C}, v{D}, 4, v{C}"),
          salu(f"s_lshl_b32 s{sT0}, s{sW}, 1"), salu(f"s_and_b32 s{sT0}, s{sT0}, 3"),
          salu(f"s_lshr_b32 s{sT1}, s{sW}, 1"), salu(f"s_lshl_b32 s{sT1}, s{sT1}, 3"), salu(f"s_add_u32 s{sT0}, s{sT0}, s{sT1}"),
          V(f"v_add_u32 v{C}, s{sT0}, v{C}"), V(f"v_lshlrev_b32 v{C}, 13, v{C}"),
          salu(f"s_lshl_b32 s{sT0}, s{sW}, 2"), V(f"v_xor_b32 v{D}, s{sT0}, v{A}"),
          V(f"v_lshl_add_u32 v{C}, v{D}, 4, v{C}"),
          salu(f"s_lshl_b32 s{sT0}, s{sH}, 8"),
          V(f"v_add_u32 v{VDW0}, s{sT0}, v{C}"), V(f"v_xor_b32 v{VDW1}, 32, v{VDW0}"), V(f"v_add_u32 v{VDW1}, 0x2000, v{VDW1}"),
          ]
    def em(pairs):
        r = []
        for m0i, d in pairs: r += [m0i, nop(0), d]
        return r
    def wl(i): return em(dma_w(i)) + [salu(f"s_add_u32 s{sWO0}, s{sWO0}, {WADV}")]
    mark = len(o)
    o += em(dma_x(0)) + wl(0) + wl(1) + em(dma_x(1)) + wl(2) + wl(3)
    if TOUCH:
        T1, T2, T3 = 28, 29, 30
        tch = [raw("s_cmp_lt_u32 s2, 256", "salu"), raw("s_cbranch_scc1 L1_notouch", "branch"),
              salu(f"s_lshr_b32 s{sT0}, s2, 3"), salu(f"s_and_b32 s{sT0}, s{sT0}, 31"), salu(f"s_lshl_b32 s{sT0}, s{sT0}, 2"), salu(f"s_add_u32 s{sT0}, s{sT0}, s{sW}"),
              V(f"v_lshlrev_b32 v{C}, 7, v{A}"), V(f"v_and_b32 v{D}, 1, v{B}"),
              V(f"v_lshl_add_u32 v{T1}, v{D}, 13, v{C}"),
              salu(f"s_lshl_b32 s{sT1}, s{sT0}, 14"),
              salu(f"s_lshr_b32 s{sXO}, s2, 1"), salu(f"s_and_b32 s{sXO}, s{sXO}, 3"), salu(f"s_lshl_b32 s{sXO}, s{sXO}, 11"),
              salu(f"s_add_u32 s{sT1}, s{sT1}, s{sXO}"),
              V(f"v_lshrrev_b32 v{C}, 2, v{VLANE}"), V(f"v_and_b32 v{C}, 7, v{C}"), V(f"v_min_u32 v{C}, 5, v{C}"),
              V(f"v_and_b32 v{D}, 3, v{VLANE}"), V(f"v_lshlrev_b32 v{D}, 7, v{D}"), V(f"v_lshl_add_u32 v{T2}, v{C}, 11, v{D}"),
              V(f"v_lshrrev_b32 v{C}, 3, v{VLANE}"), V(f"v_min_u32 v{C}, 5, v{C}"),
              V(f"v_and_b32 v{D}, 7, v{VLANE}"), V(f"v_lshlrev_b32 v{D}, 7, v{D}"), V(f"v_lshl_add_u32 v{T3}, v{C}, 11, v{D}"),
              salu(f"s_mul_i32 s{sT0}, s{sT0}, {6*2048}"), salu(f"s_and_b32 s{sXO}, s2, 1"), salu(f"s_mul_i32 s{sXO}, s{sXO}, {8*192*2048}"),
              salu(f"s_add_u32 s{sT0}, s{sT0}, s{sXO}"), salu(f"s_add_u32 s{sXO}, s{sT0}, {4*192*2048}"),
              salu("s_mov_b32 exec_hi, 0")]
        for a in range(4):
            tch += [raw(f"buffer_load_dword v63, v{T1}, s[{SWQ}:{SWQ+3}], s{sT1} offen{TFLAGS}"),
                    raw(f"buffer_load_dword v63, v{T2}, s[{SX}:{SX+3}], s{sT0} offen offset:{512*a}{TFLAGS}"),
                    salu(f"s_add_u32 s{sT1}, s{sT1}, {256*8192}")]
        tch += [salu("s_mov_b32 exec_hi, -1")]
        for a in range(2):
            tch += [raw(f"buffer_load_dword v63, v{T3}, s[{SX}:{SX+3}], s{sXO} offen offset:{1024*a}{TFLAGS}")]
        tch += [label("L1_notouch")]
        o = o[:mark] + tch + o[mark:]
    o += [
          V(f"v_lshrrev_b32 v{C}, 1, v{A}"), V(f"v_xor_b32 v{C}, v{C}, v{B}"),
          V(f"v_lshlrev_b32 v{C}, 4, v{C}"), V(f"v_lshl_add_u32 v{C}, v{A}, 7, v{C}"),
          salu(f"s_add_u32 s{sT0}, s{sMX}, {XBASE}"), V(f"v_add_u32 v{VXR}, s{sT0}, v{C}"), V(f"v_xor_b32 v{VXR+1}, 64, v{VXR}"),
          V(f"v_and_b32 v{C}, 1, v{B}"), V(f"v_lshlrev_b32 v{C}, 2, v{C}"), V(f"v_lshrrev_b32 v{D}, 2, v{A}"), V(f"v_add_u32 v{C}, v{C}, v{D}"),
          V(f"v_lshlrev_b32 v{VWR}, 10, v{C}"),
          V(f"v_lshrrev_b32 v{D}, 1, v{B}"), V(f"v_lshl_add_u32 v{VWR}, v{D}, 9, v{VWR}"),
          V(f"v_lshlrev_b32 v{C}, 1, v{C}"), V(f"v_and_b32 v{D}, 3, v{A}"), V(f"v_xor_b32 v{C}, v{C}, v{D}"),
          V(f"v_lshl_add_u32 v{VWR}, v{C}, 4, v{VWR}"),
          V(f"v_lshrrev_b32 v{D}, 1, v{D}"), V(f"v_lshl_add_u32 v{VWR}, v{D}, 3, v{VWR}")]
    for T in range(2):
        for u in range(4):
            if T or u: o.append(V(f"v_xor_b32 v{VWR + T * 4 + u}, {u * 64 + T * 8}, v{VWR}"))
    o += [
          V(f"v_lshrrev_b32 v{C}, 2, v{A}"), V(f"v_mul_u32_u24 v{VKR}, {KP}, v{C}"),
          V(f"v_and_b32 v{C}, 3, v{A}"), V(f"v_lshl_add_u32 v{VKR}, v{C}, 8, v{VKR}"),
          V(f"v_xor_b32 v{C}, v{C}, v{B}"), V(f"v_lshl_add_u32 v{VKR}, v{C}, 4, v{VKR}"), V(f"v_add_u32 v{VKR}, {KBIAS}, v{VKR}"),
          V(f"v_and_b32 v{C}, 1, v{B}"), V(f"v_lshlrev_b32 v{C}, 2, v{C}"), V(f"v_lshrrev_b32 v{D}, 2, v{A}"), V(f"v_add_u32 v{C}, v{C}, v{D}"),
          V(f"v_mul_u32_u24 v{C}, {VP}, v{C}"),
          V(f"v_lshrrev_b32 v{D}, 1, v{B}"),
          V(f"v_lshl_add_u32 v{VVR}, v{D}, 8, v{C}"),
          V(f"v_and_b32 v{D}, 3, v{A}"),
          V(f"v_lshl_add_u32 v{VVR}, v{D}, 3, v{VVR}"),
          V(f"v_and_b32 v{C}, 3, v{A}"), V(f"v_xor_b32 v{C}, v{C}, v{B}"), V(f"v_and_b32 v{D}, 12, v{A}"), V(f"v_or_b32 v{C}, v{C}, v{D}"),
          V(f"v_lshlrev_b32 v{C}, 4, v{C}"), V(f"v_lshl_add_u32 v{C}, v{B}, 8, v{C}"),
          salu(f"s_lshl_b32 s{sT0}, s{sW}, 11"), V(f"v_add_u32 v{VDK}, s{sT0}, v{C}"),
          V(f"v_lshlrev_b32 v{C}, 4, v{A}"), V(f"v_lshl_add_u32 v{C}, v{B}, 11, v{C}"),
          salu(f"s_lshl_b32 s{sT0}, s{sW}, 9"), V(f"v_add_u32 v{VDV}, s{sT0}, v{C}"),
          wait(vm=[("X", 0)]), *rd_x(0), wait(vm=[("W", 0)], lgkm="all"), barrier()]
    return o

def k1_epilogue():
    o = [nop(7), nop(1)]
    V = valu
    o += [salu(f"s_mul_i32 s{sT0}, s{sB}, 12"), salu(f"s_mul_i32 s{sT1}, s{sW}, 3"), salu(f"s_add_u32 s{sT0}, s{sT0}, s{sT1}"),
          salu(f"s_lshl_b32 s{sT0}, s{sT0}, 17"), salu(f"s_lshl_b32 s{sT1}, s{sH}, 12"), salu(f"s_add_u32 s{sT0}, s{sT0}, s{sT1}"),
          V(f"v_lshlrev_b32 v{TMP3}, 4, v{VLANE}")]
    for j in range(3):
        l = L0 + j
        o += [V(f"v_mov_b32 v{TMP}, v{l}"), nop(1), V(f"v_permlane16_swap_b32 v{l}, v{TMP}"), nop(1), V(f"v_add_f32 v{l}, v{l}, v{TMP}"),
              V(f"v_mov_b32 v{TMP}, v{l}"), nop(1), V(f"v_permlane32_swap_b32 v{l}, v{TMP}"), nop(1), V(f"v_add_f32 v{l}, v{l}, v{TMP}"),
              V(f"v_rcp_f32 v{l}, v{l}"), nop(0)]
        for u in range(4):
            a = acc(j, 2 * u)
            for r in range(8): o.append(V(f"v_mul_f32 v{a+r}, v{a+r}, v{l}"))
            q = qf(j, u)
            for r in range(4): o.append(V(f"v_cvt_pk_bf16_f32 v{q+r}, v{a+2*r}, v{a+2*r+1}"))
            o.append(buf_store(q, 4, TMP3, SO, f"s{sT0}", u * 1024, tag="st", flags=OSTFLAGS))
        if j < 2: o.append(salu(f"s_add_u32 s{sT0}, s{sT0}, 0x20000"))
    return o

STAMP = False
def stamp(i):
    if not STAMP: return []
    return [raw(f"s_memrealtime s[{64+4*i}:{65+4*i}]"), raw(f"s_memtime s[{66+4*i}:{67+4*i}]")]
def stamp_store(n, wsoff, srdreg, nwg_stride=4):
    if not STAMP: return []
    o = [raw("s_waitcnt lgkmcnt(0)"), salu(f"s_mov_b32 s{srdreg+2}, 0x20000000"),
         salu(f"s_lshl_b32 s60, s2, 2"), salu(f"s_add_u32 s60, s60, s24"), salu("s_lshl_b32 s60, s60, 6"), salu(f"s_add_u32 s60, s60, {wsoff}"),
         valu(f"v_mov_b32 v2, 0"), salu("s_mov_b64 exec, 1")]
    for i in range(n):
        o += [valu(f"v_mov_b32 v4, s{64+4*i}"), valu(f"v_mov_b32 v5, s{66+4*i}"), buf_store(4, 2, 2, srdreg, "s60", 8 * i, tag="dbg"), nop(1)]
    return o

def gen_k1():
    pro = k1_prologue()
    steps = [p_step(ps) for ps in range(16)] + [init_step()] + [a_step(kt) for kt in range(33)]
    lin = link(steps)[:-1]
    epi = k1_epilogue()
    full = pro + [x for s in lin for x in s] + epi
    errs, _, _ = resolve_waits(full)
    errs += check_hazards(full)
    subs = []
    for r in range(4): subs += slow_stub(r)
    for par in range(2):
        rb = rebase(par)
        errs += check_hazards(rb)
        subs += rb
    if errs:
        print("\n".join(errs[:40]), file=sys.stderr); raise SystemExit("generation errors: %d" % len(errs))
    def grp(lo, n): return [x for s in lin[lo:lo + n] for x in s]
    out = pro[:2] + stamp(0) + pro[2:]
    sSWC = sWO1
    pr0 = [raw("s_setprio 1"), salu(f"s_mov_b32 s{sSWC}, 99"), raw("s_cmp_ge_u32 s2, 256", "salu"), raw("s_cbranch_scc1 L1_pr0", "branch"),
           raw("s_setprio 2"), salu(f"s_mov_b32 s{sSWC}, {8 - SW}"), label("L1_pr0")]
    prp = [raw("s_cmp_ge_u32 s2, 256", "salu"), raw("s_cbranch_scc1 L1_prp", "branch"), raw("s_setprio 0"), label("L1_prp")]
    prl = [raw(f"s_cmp_lg_u32 s{sCNT}, s{sSWC}", "salu"), raw("s_cbranch_scc1 L1_prl", "branch"), raw("s_setprio 0"), label("L1_prl")]
    if SW < 0: pr0 = []; prl = []
    out += pr0
    if PSW >= 0: out += grp(0, PSW) + prp + grp(PSW, 16 - PSW)
    else: out += grp(0, 16)
    out += stamp(1) + grp(16, 1) + stamp(2)
    out += [salu(f"s_mov_b32 s{sCNT}, 8"), label("L1_aloop")] + prl
    out += fold([grp(17 + 4 * i, 4) for i in range(8)])
    out += [salu(f"s_sub_u32 s{sCNT}, s{sCNT}, 1"), salu(f"s_cmp_lg_u32 s{sCNT}, 0"), raw("s_cbranch_scc1 L1_aloop", "branch")]
    tk = []
    if TICK:
        tk = [salu(f"s_mov_b32 s{SO+2}, 0x20000000"), salu(f"s_lshl_b32 s60, s2, 2"), salu(f"s_add_u32 s60, s60, s24"), salu("s_lshl_b32 s60, s60, 9"),
              salu(f"s_add_u32 s60, s60, {66 << 20}"), valu(f"v_lshlrev_b32 v2, 2, v{VLANE}"), nop(4),
              buf_store(0, 1, 2, SO, "s60", 0, tag="dbg"), buf_store(15, 1, 2, SO, "s60", 256, tag="dbg"), nop(1)]
    out += stamp(3) + epi + stamp(4) + tk + stamp_store(5, 64 << 20, SO)
    out += [label("L1_end"), raw("s_endpgm")]
    out += subs
    return out

if __name__ == "__main__":
    print(emit(gen_k1()))
```

```python
import sys, math, struct
from asmlib import *

def f32(x): return struct.unpack("<I", struct.pack("<f", x))[0]

SLOT = 8704
KP, VP = 1088, 1056

L0, T0, TMP, TMP2 = 1, 4, 7, 8
VKR, VVR, VDK, VDV = 9, 10, 11, 12
VLANE = 13
TMP3, TMP4 = 14, 15
NM = 16
VDW0, VDW1, VXD, VWR, VXR = 16, 17, 18, 20, 60
FR = 28
SP = 64
QR = 112
ACC = 160
def acc(j, dt): return ACC + (j * 8 + dt) * 4
def qf(j, u): return QR + (j * 4 + u) * 4
def sreg(par, j, t): return SP + par * 24 + j * 8 + t * 4
def negm(j): return NM + 4 * j
def fr(n): return FR + 4 * (n % 8)
def xb(buf, half, j): return SP + buf * 24 + (half * 3 + j) * 4
def xf(st, half, j): return SP + (st % 2) * 24 + (half * 3 + j) * 4

SX, SWQ, SK, SV, SO = 4, 8, 12, 16, 20
sW, sB, sH = 24, 25, 26
sXO, sWO0, sWO1, sKO, sVO, sCNT, sMK, sMV, sTH, sC = 27, 28, 29, 30, 31, 32, 33, 34, 35, 36
sT0, sT1 = 37, 38
sRET = 40
sEX = 42
sKS0, sKS1 = 44, 45
sX0 = 58
sMX = 61
sMW = 63

POS = {0: -12, 1: -11, 2: -10, 3: -9, 4: -8, 5: -6, 6: -3, 7: 3}
for n in range(8, 16): POS[n] = 3 * n - 18
BAR = 36
DMA_GAPS = [37, 40, 43, 46]

class Step:
    def __init__(self, name):
        self.name = name
        self.mf = [None] * 48
        self.gaps = {}
        self.pre = {}
        self.reads = None
        self.has_bar = True
        self.pos = POS
    def gap(self, m, *ins): self.gaps.setdefault(m, []).extend(ins)
    def before(self, m, *ins): self.pre.setdefault(m, []).extend(ins)

WSL = 8192
XBASE = 4 * WSL
XSL = 24576
LDS_BYTES = XBASE + 2 * XSL
def w_slot(i): return (i % 4) * WSL
def x_slot(i): return XBASE + (i % 2) * XSL
KS = [4 * SLOT, 6 * SLOT, 8 * SLOT, 1 * SLOT]
VS = [5 * SLOT, 7 * SLOT, 0, 2 * SLOT]
KBIAS = SLOT
VBIAS = 0
def k_slot(i): return KS[i % 4]
def v_slot(i): return VS[i % 4]

def rd_w(tile, a, n, tagp):
    u, T = a >> 1, a & 1
    base = w_slot(tile)
    va = VWR + T * 4 + u
    return [ds_read("ds_read_b64_tr_b16", fr(n), 2, va, base, tag=(tagp, n)),
            ds_read("ds_read_b64_tr_b16", fr(n) + 2, 2, va, base + 256, tag=(tagp, n))]
def rd_k(tile, a, n, tagp):
    t, u = a >> 2, a & 3
    return [ds_read("ds_read_b128", fr(n), 4, VKR, k_slot(tile) - KBIAS + t * 4 * KP + u * 64, tag=(tagp, n))]
def rd_v(tile, dt, n, tagp):
    base = v_slot(tile) - VBIAS + dt * 32
    return [ds_read("ds_read_b64_tr_b16", fr(n), 2, VVR, base, tag=(tagp, n)),
            ds_read("ds_read_b64_tr_b16", fr(n) + 2, 2, VVR, base + 512, tag=(tagp, n))]

import os
KVADV = os.environ.get("KVADV", "0x2000")
XADV = int(os.environ.get("XADV", "128"))
WADV = os.environ.get("WADV", "0x40000")
TICK = int(os.environ.get("TICK", "0"))
sTK = 62
TOUCH = int(os.environ.get("TOUCH", "1"))
TFLAGS = os.environ.get("TF", "")
SW = int(os.environ.get("SW", "3"))
PSW = int(os.environ.get("PSW", "-1"))
WOPF = int(os.environ.get("WOPF", "1"))
WOPFLAGS = os.environ.get("WOPFF", "")
KVFLAGS = os.environ.get("KVF", " nt")
XFLAGS = os.environ.get("XF", "")
WQFLAGS = os.environ.get("WQF", "")
OSTFLAGS = os.environ.get("OSF", "")
def tick_pre():
    return [raw("s_memtime s[84:85]"), raw("s_memrealtime s[86:87]")] if TICK else []
def tick_post():
    return [raw(f"s_mov_b32 m0, s{sTK}"), nop(0), raw(f"v_writelane_b32 v0, s84, m0"), raw(f"v_writelane_b32 v15, s86, m0"), raw(f"s_add_u32 s{sTK}, s{sTK}, 1")] if TICK else []
def dma_k(i):
    s = k_slot(i)
    return [(salu(f"s_add_u32 m0, s{sMK}, {s}"), buf_dma(VDK, SK, f"s{sKO}", 0, tag=("K", i), flags=KVFLAGS)),
            (salu(f"s_add_u32 m0, s{sMK}, {s + KP - 1024}"), buf_dma(VDK, SK, f"s{sKO}", 1024, tag=("K", i), flags=KVFLAGS))]
def dma_v(i):
    s = v_slot(i)
    return [(salu(f"s_add_u32 m0, s{sMV}, {s}"), buf_dma(VDV, SV, f"s{sVO}", 0, tag=("V", i), flags=KVFLAGS)),
            (salu(f"s_add_u32 m0, s{sMV}, {s + VP - 256}"), buf_dma(VDV, SV, f"s{sVO}", 256, tag=("V", i), flags=KVFLAGS))]
def dma_w(i):
    s = w_slot(i)
    so = f"s{sWO0}"
    return [(salu(f"s_add_u32 m0, s{sMW}, {s}"), buf_dma(VDW0, SWQ, so, 0, tag=("W", i), flags=WQFLAGS)),
            (salu(f"s_add_u32 m0, s{sMW}, {s + 1024}"), buf_dma(VDW1, SWQ, so, 0, tag=("W", i), flags=WQFLAGS))]

def dma_x(t):
    s = x_slot(t)
    return [(salu(f"s_add_u32 m0, s{sMX}, {s + e * 1024 - t * XADV}"), buf_dma(VXD + (e & 1), SX, f"s{sX0 + (e >> 1)}", t * XADV, tag=("X", t), flags=XFLAGS)) for e in range(6)]
def rd_x(t):
    return [ds_read("ds_read_b128", xf(t, half, j), 4, VXR + half, x_slot(t) - XBASE + j * 2048, tag=("x", t)) for half in range(2) for j in range(3)]

def place_dma(st, pairs, gaps=None):
    assert len(pairs) <= len(gaps or DMA_GAPS)
    for (m0i, d), g in zip(pairs, gaps or DMA_GAPS):
        st.before(g, m0i)
        if st.mf[g] is None: st.before(g, nop(0))
        st.gap(g, d)

def sm_half(st, g0, par, j, t, first_l):
    a = sreg(par, j, t); p = sreg(par, j, 0) + 2 * t; tj = T0 + j; lj = L0 + j
    for r in range(4): st.gap(g0 + r, valu(f"v_exp_f32 v{a+r}, v{a+r}"))
    if t == 0:
        if first_l: st.gap(g0 + 4, valu(f"v_add_f32 v{lj}, v{lj}, v{tj}"))
        st.gap(g0 + 4, valu(f"v_add_f32 v{tj}, v{a}, v{a+1}"))
    else:
        st.gap(g0 + 4, valu(f"v_add_f32 v{tj}, v{tj}, v{a}"), valu(f"v_add_f32 v{tj}, v{tj}, v{a+1}"))
    st.gap(g0 + 5, valu(f"v_cvt_pk_bf16_f32 v{p}, v{a}, v{a+1}"), valu(f"v_add_f32 v{tj}, v{tj}, v{a+2}"))
    st.gap(g0 + 6, valu(f"v_add_f32 v{tj}, v{tj}, v{a+3}"), valu(f"v_cvt_pk_bf16_f32 v{p+1}, v{a+2}, v{a+3}"))

def link(steps):
    for i, st in enumerate(steps):
        for n in range(16):
            if st.reads is None: continue
            r = st.reads(n)
            if r is None: continue
            p = st.pos[n]
            if p < 0:
                if i == 0:
                    st.before(0, *r)
                else:
                    steps[i - 1].gap(48 + p, *r)
            else:
                st.gap(p, *r)
    out = []
    for st in steps:
        if st.reads is not None:
            for n in range(0, 16, 2):
                if st.reads(n) is None: continue
                st.pre.setdefault(3 * n, []).append(wait(lgkm=[(st.name, n), (st.name, n + 1)]))
        out.append(interleave(st.mf, st.gaps, st.pre))
    return out

POSP = dict(POS)
for n in range(8, 16): POSP[n] = 24 + POS[n - 8]
def p_step(ps):
    st = Step(f"P{ps}")
    st.pos = POSP
    if ps + 1 <= 15:
        st.gap(3, wait(vm=[("X", ps + 1)]))
        for j, r in enumerate(rd_x(ps + 1)): st.gap(4 + j, r)
    for half in range(2):
        t = 2 * ps + half
        o = 24 * half
        for a in range(8):
            for j in range(3):
                st.mf[o + a * 3 + j] = mfma(acc(j, a), fr(half * 8 + a), xf(ps, half, j), 'z' if t == 0 else None)
        need = [("W", t + 1)] if t < 31 else [("K", 0)]
        if half == 1: st.before(o + 12, *tick_pre(), wait(vm=need, lgkm="all"), barrier(), *tick_post())
        else: st.before(o + 12, wait(vm=need, lgkm="all"), barrier())
        d = []
        post = []
        if t + 4 <= 31:
            d += dma_w(t + 4); post.append(salu(f"s_add_u32 s{sWO0}, s{sWO0}, {WADV}"))
        kv = {26: "K0", 27: "V0", 28: "K1 V1", 29: "K2 V2", 30: "K3", 31: "V3"}.get(t, "")
        for it in kv.split():
            if it[0] == "K":
                d += dma_k(int(it[1])); post.append(salu(f"s_add_u32 s{sKO}, s{sKO}, {KVADV}"))
            else:
                d += dma_v(int(it[1])); post.append(salu(f"s_add_u32 s{sVO}, s{sVO}, {KVADV}"))
        place_dma(st, d, [o + 13, o + 15, o + 17, o + 19])
        st.gap(o + 22, *post)
    if ps + 3 <= 15: place_dma(st, dma_x(ps + 3), [18, 21, 24, 27, 30, 33])
    st.reads = lambda n: rd_w(2 * ps + (n >> 3), n & 7, n, st.name)
    if ps == 0:
        place_dma(st, dma_x(2), [0, 1, 2, 9, 10, 11])
    return st

def qk_mfmas(st, kt1, czero=False):
    par = kt1 & 1
    for t in range(2):
        for u in range(4):
            for j in range(3):
                m = t * 12 + u * 3 + j
                c = None
                if u == 0: c = 'z' if czero else negm(j)
                st.mf[m] = mfma(sreg(par, j, t), fr(t * 4 + u), qf(j, u), c)

def rowmax_code(par, j, dst, tmp):
    a = sreg(par, j, 0)
    return [valu(f"v_max3_f32 v{dst}, v{a}, v{a+1}, v{a+2}"),
            valu(f"v_max3_f32 v{dst}, v{dst}, v{a+3}, v{a+4}"),
            valu(f"v_max3_f32 v{dst}, v{dst}, v{a+5}, v{a+6}"),
            valu(f"v_max_f32 v{dst}, v{dst}, v{a+7}"),
            valu(f"v_mov_b32 v{tmp}, v{dst}"), nop(1),
            valu(f"v_permlane16_swap_b32 v{dst}, v{tmp}"), nop(1),
            valu(f"v_max_f32 v{dst}, v{dst}, v{tmp}"),
            valu(f"v_mov_b32 v{tmp}, v{dst}"), nop(1),
            valu(f"v_permlane32_swap_b32 v{dst}, v{tmp}"), nop(1),
            valu(f"v_max_f32 v{dst}, v{dst}, v{tmp}")]

def q_finalize():
    out = [nop(7), nop(1)]
    for j in range(3):
        for dt in range(8):
            for r in range(4):
                a = acc(j, dt) + r
                out.append(valu(f"v_mul_f32 v{a}, s{sC}, v{a}"))
    for j in range(3):
        for u in range(4):
            q = qf(j, u); a0 = acc(j, 2 * u); a1 = acc(j, 2 * u + 1)
            out += [valu(f"v_cvt_pk_bf16_f32 v{q}, v{a0}, v{a0+1}"), valu(f"v_cvt_pk_bf16_f32 v{q+1}, v{a0+2}, v{a0+3}"),
                    valu(f"v_cvt_pk_bf16_f32 v{q+2}, v{a1}, v{a1+1}"), valu(f"v_cvt_pk_bf16_f32 v{q+3}, v{a1+2}, v{a1+3}")]
    out += [salu("s_mov_b32 exec_lo, 0"), nop(0)]
    for j in range(3):
        for u in range(4):
            q = qf(j, u)
            out += [valu(f"v_swap_b32 v{q}, v{q+2}"), valu(f"v_swap_b32 v{q+1}, v{q+3}")]
    out += [salu("s_mov_b32 exec_lo, -1"), nop(1)]
    return out

def init_step():
    st = Step("A-1")
    qk_mfmas(st, 0, czero=True)
    st.reads = lambda n: rd_k(0, n, n, st.name) if n < 8 else None
    st.before(0, *q_finalize())
    z = [valu(f"v_mov_b32 v{ACC+i}, 0") for i in range(96)]
    for i, ins in enumerate(z): st.gap(i // 4, ins)
    post = [nop(7), nop(1)]
    for j in range(3):
        post += rowmax_code(0, j, TMP, TMP2)
        for r in range(4): post.append(valu(f"v_sub_f32 v{negm(j)+r}, 0, v{TMP}"))
        for r in range(8): post.append(valu(f"v_sub_f32 v{sreg(0,j,0)+r}, v{sreg(0,j,0)+r}, v{TMP}"))
        post.append(valu(f"v_mov_b32 v{L0+j}, 0"))
    st.gap(23, *post)
    for j in range(3): sm_half(st, 24 + 4 * j, 0, j, 0, False)
    st.before(BAR, *tick_pre(), wait(vm=[("K", 1), ("V", 0)], lgkm="all"), barrier(), *tick_post())
    place_dma(st, dma_k(4))
    st.gap(47, salu(f"s_add_u32 s{sKO}, s{sKO}, {KVADV}"))
    if WOPF:
        st.gap(47, *srd(SX, 46, 47, 4096 * 1024 * 2), salu(f"s_lshl_b32 s{sT0}, s2, 2"), salu(f"s_add_u32 s{sT0}, s{sT0}, s{sW}"),
               salu(f"s_lshl_b32 s{sT0}, s{sT0}, 12"), valu(f"v_lshlrev_b32 v62, 6, v{VLANE}"),
               buf_load(63, 1, 62, SX, f"s{sT0}", 0, tag="wo", flags=WOPFLAGS))
    return st

def a_step(kt):
    st = Step(f"A{kt}")
    par = kt & 1
    qk_mfmas(st, kt + 1)
    for dt in range(8):
        for j in range(3):
            st.mf[24 + dt * 3 + j] = mfma(acc(j, dt), fr(8 + dt), sreg(par, j, 0))
    st.reads = lambda n: rd_k(kt + 1, n, n, st.name) if n < 8 else rd_v(kt, n - 8, n, st.name)
    for j in range(3): sm_half(st, 7 * j, par, j, 1, False)
    st.gap(21, valu(f"v_max3_f32 v{TMP}, v{T0}, v{T0+1}, v{T0+2}"))
    st.gap(22, valu(f"v_cmp_lt_f32 vcc, s{sTH}, v{TMP}"))
    st.gap(23, raw(f"s_cbranch_vccnz L_slow{kt%4}", "branch"), label(f"L_back{kt%4}"))
    for j in range(3): sm_half(st, 24 + 7 * j, 1 - par, j, 0, True)
    st.before(BAR, *tick_pre(), wait(vm=[("K", kt + 2), ("V", kt + 1)], lgkm="all"), barrier(), *tick_post())
    place_dma(st, dma_k(kt + 5) + dma_v(kt + 4))
    st.gap(47, salu(f"s_add_u32 s{sKO}, s{sKO}, {KVADV}"), salu(f"s_add_u32 s{sVO}, s{sVO}, {KVADV}"))
    return st

def slow_stub(r):
    out = [label(f"L_slow{r}"),
           salu(f"s_sub_u32 s{sKS0}, s{sKO}, {5*8192}"),
           salu(f"s_add_u32 s{sKS1}, s{sKS0}, 4096"),
           raw(f"s_call_b64 s[{sRET}:{sRET+1}], L_rebase{r&1}", "branch")]
    for n in range(8, 16):
        if POS[n] <= 23: out += rd_v(r, n - 8, n, "slow")
    out += [raw("s_waitcnt lgkmcnt(0)"), raw(f"s_branch L_back{r}", "branch")]
    return out

def rebase(par):
    out = [label(f"L_rebase{par}"), raw("s_waitcnt lgkmcnt(0)"), nop(7), nop(7),
           valu(f"v_and_b32 v{TMP}, 15, v{VLANE}"), valu(f"v_lshlrev_b32 v{TMP}, 8, v{TMP}"),
           valu(f"v_lshrrev_b32 v{TMP2}, 4, v{VLANE}"), valu(f"v_lshl_add_u32 v{TMP}, v{TMP2}, 4, v{TMP}")]
    for t in range(2):
        for u in range(4):
            out.append(buf_load(fr(t * 4 + u), 4, TMP, SK, f"s{sKS0 + t}", u * 64, tag="sl"))
    out.append(raw("s_waitcnt vmcnt(0)"))
    for t in range(2):
        for u in range(4):
            for j in range(3):
                out.append(mfma(sreg(par, j, t), fr(t * 4 + u), qf(j, u), negm(j) if u == 0 else None))
    out += [nop(7), nop(7)]
    for j in range(3):
        out += rowmax_code(par, j, TMP, TMP2)
        out.append(valu(f"v_max_f32 v{TMP}, 0, v{TMP}"))
        out.append(valu(f"v_sub_f32 v{TMP2}, 0, v{TMP}"))
        out.append(valu(f"v_exp_f32 v{TMP2}, v{TMP2}"))
        for r in range(4): out.append(valu(f"v_sub_f32 v{negm(j)+r}, v{negm(j)+r}, v{TMP}"))
        for pp in range(2):
            for r in range(8): out.append(valu(f"v_sub_f32 v{sreg(pp,j,0)+r}, v{sreg(pp,j,0)+r}, v{TMP}"))
        out.append(valu(f"v_mul_f32 v{L0+j}, v{L0+j}, v{TMP2}"))
        for r in range(32): out.append(valu(f"v_mul_f32 v{acc(j,0)+r}, v{acc(j,0)+r}, v{TMP2}"))
        a = sreg(par, j, 0); tj = T0 + j
        for r in range(8): out.append(valu(f"v_exp_f32 v{a+r}, v{a+r}"))
        out.append(nop(0))
        out.append(valu(f"v_add_f32 v{tj}, v{a}, v{a+1}"))
        for r in range(2, 8): out.append(valu(f"v_add_f32 v{tj}, v{tj}, v{a+r}"))
        for r in range(4): out.append(valu(f"v_cvt_pk_bf16_f32 v{a+r}, v{a+2*r}, v{a+2*r+1}"))
    out += [nop(3), raw(f"s_setpc_b64 s[{sRET}:{sRET+1}]", "branch")]
    return out

def srd(s, lo, hi, nbytes):
    return [salu(f"s_mov_b32 s{s}, s{lo}"), salu(f"s_and_b32 s{s+1}, s{hi}, 0xffff"),
            salu(f"s_mov_b32 s{s+2}, {nbytes}"), salu(f"s_mov_b32 s{s+3}, 0x00020000")]

def k1_prologue():
    o = [raw("s_cmp_ge_u32 s2, 512", "salu"), raw("s_cbranch_scc1 L1_end", "branch"),
         raw("s_load_dwordx8 s[48:55], s[0:1], 0"),
         raw("s_load_dwordx2 s[56:57], s[0:1], 56"),
         raw("s_load_dwordx2 s[46:47], s[0:1], 32"),
         valu(f"v_and_b32 v{VLANE}, 63, v0"), valu(f"v_lshrrev_b32 v{TMP}, 6, v0"), nop(0),
         valu(f"v_readfirstlane_b32 s{sW}, v{TMP}"),
         salu(f"s_and_b32 s{sT0}, s2, 1"), salu(f"s_lshl_b32 s{sT0}, s{sT0}, 3"),
         salu(f"s_lshr_b32 s{sT1}, s2, 3"), salu(f"s_and_b32 s{sB}, s{sT1}, 3"), salu(f"s_add_u32 s{sB}, s{sB}, s{sT0}"),
         salu(f"s_lshr_b32 s{sT0}, s2, 8"), salu(f"s_lshl_b32 s{sT0}, s{sT0}, 2"), salu(f"s_add_u32 s{sB}, s{sB}, s{sT0}"),
         salu(f"s_lshr_b32 s{sT0}, s2, 1"), salu(f"s_and_b32 s{sT0}, s{sT0}, 3"), salu(f"s_lshl_b32 s{sT0}, s{sT0}, 3"),
         salu(f"s_lshr_b32 s{sH}, s2, 5"), salu(f"s_and_b32 s{sH}, s{sH}, 7"), salu(f"s_add_u32 s{sH}, s{sH}, s{sT0}"),
         raw("s_waitcnt lgkmcnt(0)")]
    o += srd(SX, 48, 49, 16 * 192 * 1024 * 2)
    o += srd(SWQ, 54, 55, 1024 * 4096 * 2)
    o += [salu(f"s_lshl_b32 s{sT0}, s{sB}, 5"), salu(f"s_add_u32 s{sT0}, s{sT0}, s{sH}"), salu(f"s_lshl_b32 s{sT0}, s{sT0}, 18"),
          salu(f"s_add_u32 s50, s50, s{sT0}"), salu("s_addc_u32 s51, s51, 0"),
          salu(f"s_add_u32 s52, s52, s{sT0}"), salu("s_addc_u32 s53, s53, 0")]
    o += srd(SK, 50, 51, 262144) + srd(SV, 52, 53, 262144)
    o += srd(SO, 56, 57, 192 * 128 * 1024)
    A, B, C, D = 2, 3, 4, 5
    V = valu
    o += [salu(f"s_mov_b32 s{sTK}, 0")]
    o += [salu(f"s_mul_i32 s{sMK}, s{sW}, {2*KP}"), salu(f"s_mul_i32 s{sMV}, s{sW}, {2*VP}"),
          salu(f"s_mov_b32 s{sTH}, {f32(1024.0)}"), salu(f"s_mov_b32 s{sC}, {f32(math.log2(math.e) / math.sqrt(128.0))}"),
          salu(f"s_mov_b32 s{sKO}, 0"), salu(f"s_mov_b32 s{sVO}, 0"),
          salu(f"s_mov_b32 s{sWO0}, 0"), salu(f"s_mul_i32 s{sMX}, s{sW}, 6144"), salu(f"s_lshl_b32 s{sMW}, s{sW}, 11"),
          salu(f"s_mul_i32 s{sXO}, s{sB}, 192"), salu(f"s_mul_i32 s{sT0}, s{sW}, 48"), salu(f"s_add_u32 s{sXO}, s{sXO}, s{sT0}"),
          salu(f"s_lshl_b32 s{sX0}, s{sXO}, 11"), salu(f"s_add_u32 s{sX0+1}, s{sX0}, 0x8000"), salu(f"s_add_u32 s{sX0+2}, s{sX0}, 0x10000"),
          V(f"v_and_b32 v{A}, 15, v{VLANE}"),
          V(f"v_lshrrev_b32 v{B}, 4, v{VLANE}"),
          V(f"v_xor_b32 v{C}, v{B}, v{VLANE}"), V(f"v_and_b32 v{C}, 7, v{C}"),
          V(f"v_lshrrev_b32 v{D}, 3, v{VLANE}"), V(f"v_lshlrev_b32 v{D}, 11, v{D}"),
          V(f"v_lshl_add_u32 v{VXD}, v{C}, 4, v{D}"),
          V(f"v_xor_b32 v{VXD+1}, 64, v{VXD}"), V(f"v_add_u32 v{VXD+1}, 0x4000, v{VXD+1}"),
          V(f"v_and_b32 v{C}, 1, v{B}"), V(f"v_lshlrev_b32 v{C}, 2, v{C}"),
          V(f"v_lshrrev_b32 v{D}, 1, v{B}"), V(f"v_lshl_add_u32 v{C}, v{D}, 4, v{C}"),
          salu(f"s_lshl_b32 s{sT0}, s{sW}, 1"), salu(f"s_and_b32 s{sT0}, s{sT0}, 3"),
          salu(f"s_lshr_b32 s{sT1}, s{sW}, 1"), salu(f"s_lshl_b32 s{sT1}, s{sT1}, 3"), salu(f"s_add_u32 s{sT0}, s{sT0}, s{sT1}"),
          V(f"v_add_u32 v{C}, s{sT0}, v{C}"), V(f"v_lshlrev_b32 v{C}, 13, v{C}"),
          salu(f"s_lshl_b32 s{sT0}, s{sW}, 2"), V(f"v_xor_b32 v{D}, s{sT0}, v{A}"),
          V(f"v_lshl_add_u32 v{C}, v{D}, 4, v{C}"),
          salu(f"s_lshl_b32 s{sT0}, s{sH}, 8"),
          V(f"v_add_u32 v{VDW0}, s{sT0}, v{C}"), V(f"v_xor_b32 v{VDW1}, 32, v{VDW0}"), V(f"v_add_u32 v{VDW1}, 0x2000, v{VDW1}"),
          ]
    def em(pairs):
        r = []
        for m0i, d in pairs: r += [m0i, nop(0), d]
        return r
    def wl(i): return em(dma_w(i)) + [salu(f"s_add_u32 s{sWO0}, s{sWO0}, {WADV}")]
    mark = len(o)
    o += em(dma_x(0)) + wl(0) + wl(1) + em(dma_x(1)) + wl(2) + wl(3)
    if TOUCH:
        T1, T2, T3 = 28, 29, 30
        tch = [raw("s_cmp_lt_u32 s2, 256", "salu"), raw("s_cbranch_scc1 L1_notouch", "branch"),
              salu(f"s_lshr_b32 s{sT0}, s2, 3"), salu(f"s_and_b32 s{sT0}, s{sT0}, 31"), salu(f"s_lshl_b32 s{sT0}, s{sT0}, 2"), salu(f"s_add_u32 s{sT0}, s{sT0}, s{sW}"),
              V(f"v_lshlrev_b32 v{C}, 7, v{A}"), V(f"v_and_b32 v{D}, 1, v{B}"),
              V(f"v_lshl_add_u32 v{T1}, v{D}, 13, v{C}"),
              salu(f"s_lshl_b32 s{sT1}, s{sT0}, 14"),
              salu(f"s_lshr_b32 s{sXO}, s2, 1"), salu(f"s_and_b32 s{sXO}, s{sXO}, 3"), salu(f"s_lshl_b32 s{sXO}, s{sXO}, 11"),
              salu(f"s_add_u32 s{sT1}, s{sT1}, s{sXO}"),
              V(f"v_lshrrev_b32 v{C}, 2, v{VLANE}"), V(f"v_and_b32 v{C}, 7, v{C}"), V(f"v_min_u32 v{C}, 5, v{C}"),
              V(f"v_and_b32 v{D}, 3, v{VLANE}"), V(f"v_lshlrev_b32 v{D}, 7, v{D}"), V(f"v_lshl_add_u32 v{T2}, v{C}, 11, v{D}"),
              V(f"v_lshrrev_b32 v{C}, 3, v{VLANE}"), V(f"v_min_u32 v{C}, 5, v{C}"),
              V(f"v_and_b32 v{D}, 7, v{VLANE}"), V(f"v_lshlrev_b32 v{D}, 7, v{D}"), V(f"v_lshl_add_u32 v{T3}, v{C}, 11, v{D}"),
              salu(f"s_mul_i32 s{sT0}, s{sT0}, {6*2048}"), salu(f"s_and_b32 s{sXO}, s2, 1"), salu(f"s_mul_i32 s{sXO}, s{sXO}, {8*192*2048}"),
              salu(f"s_add_u32 s{sT0}, s{sT0}, s{sXO}"), salu(f"s_add_u32 s{sXO}, s{sT0}, {4*192*2048}"),
              salu("s_mov_b32 exec_hi, 0")]
        for a in range(4):
            tch += [raw(f"buffer_load_dword v63, v{T1}, s[{SWQ}:{SWQ+3}], s{sT1} offen{TFLAGS}"),
                    raw(f"buffer_load_dword v63, v{T2}, s[{SX}:{SX+3}], s{sT0} offen offset:{512*a}{TFLAGS}"),
                    salu(f"s_add_u32 s{sT1}, s{sT1}, {256*8192}")]
        tch += [salu("s_mov_b32 exec_hi, -1")]
        for a in range(2):
            tch += [raw(f"buffer_load_dword v63, v{T3}, s[{SX}:{SX+3}], s{sXO} offen offset:{1024*a}{TFLAGS}")]
        tch += [label("L1_notouch")]
        o = o[:mark] + tch + o[mark:]
    o += [
          V(f"v_lshrrev_b32 v{C}, 1, v{A}"), V(f"v_xor_b32 v{C}, v{C}, v{B}"),
          V(f"v_lshlrev_b32 v{C}, 4, v{C}"), V(f"v_lshl_add_u32 v{C}, v{A}, 7, v{C}"),
          salu(f"s_add_u32 s{sT0}, s{sMX}, {XBASE}"), V(f"v_add_u32 v{VXR}, s{sT0}, v{C}"), V(f"v_xor_b32 v{VXR+1}, 64, v{VXR}"),
          V(f"v_and_b32 v{C}, 1, v{B}"), V(f"v_lshlrev_b32 v{C}, 2, v{C}"), V(f"v_lshrrev_b32 v{D}, 2, v{A}"), V(f"v_add_u32 v{C}, v{C}, v{D}"),
          V(f"v_lshlrev_b32 v{VWR}, 10, v{C}"),
          V(f"v_lshrrev_b32 v{D}, 1, v{B}"), V(f"v_lshl_add_u32 v{VWR}, v{D}, 9, v{VWR}"),
          V(f"v_lshlrev_b32 v{C}, 1, v{C}"), V(f"v_and_b32 v{D}, 3, v{A}"), V(f"v_xor_b32 v{C}, v{C}, v{D}"),
          V(f"v_lshl_add_u32 v{VWR}, v{C}, 4, v{VWR}"),
          V(f"v_lshrrev_b32 v{D}, 1, v{D}"), V(f"v_lshl_add_u32 v{VWR}, v{D}, 3, v{VWR}")]
    for T in range(2):
        for u in range(4):
            if T or u: o.append(V(f"v_xor_b32 v{VWR + T * 4 + u}, {u * 64 + T * 8}, v{VWR}"))
    o += [
          V(f"v_lshrrev_b32 v{C}, 2, v{A}"), V(f"v_mul_u32_u24 v{VKR}, {KP}, v{C}"),
          V(f"v_and_b32 v{C}, 3, v{A}"), V(f"v_lshl_add_u32 v{VKR}, v{C}, 8, v{VKR}"),
          V(f"v_xor_b32 v{C}, v{C}, v{B}"), V(f"v_lshl_add_u32 v{VKR}, v{C}, 4, v{VKR}"), V(f"v_add_u32 v{VKR}, {KBIAS}, v{VKR}"),
          V(f"v_and_b32 v{C}, 1, v{B}"), V(f"v_lshlrev_b32 v{C}, 2, v{C}"), V(f"v_lshrrev_b32 v{D}, 2, v{A}"), V(f"v_add_u32 v{C}, v{C}, v{D}"),
          V(f"v_mul_u32_u24 v{C}, {VP}, v{C}"),
          V(f"v_lshrrev_b32 v{D}, 1, v{B}"),
          V(f"v_lshl_add_u32 v{VVR}, v{D}, 8, v{C}"),
          V(f"v_and_b32 v{D}, 3, v{A}"),
          V(f"v_lshl_add_u32 v{VVR}, v{D}, 3, v{VVR}"),
          V(f"v_and_b32 v{C}, 3, v{A}"), V(f"v_xor_b32 v{C}, v{C}, v{B}"), V(f"v_and_b32 v{D}, 12, v{A}"), V(f"v_or_b32 v{C}, v{C}, v{D}"),
          V(f"v_lshlrev_b32 v{C}, 4, v{C}"), V(f"v_lshl_add_u32 v{C}, v{B}, 8, v{C}"),
          salu(f"s_lshl_b32 s{sT0}, s{sW}, 11"), V(f"v_add_u32 v{VDK}, s{sT0}, v{C}"),
          V(f"v_lshlrev_b32 v{C}, 4, v{A}"), V(f"v_lshl_add_u32 v{C}, v{B}, 11, v{C}"),
          salu(f"s_lshl_b32 s{sT0}, s{sW}, 9"), V(f"v_add_u32 v{VDV}, s{sT0}, v{C}"),
          wait(vm=[("X", 0)]), *rd_x(0), wait(vm=[("W", 0)], lgkm="all"), barrier()]
    return o

def k1_epilogue():
    o = [nop(7), nop(1)]
    V = valu
    o += [salu(f"s_mul_i32 s{sT0}, s{sB}, 12"), salu(f"s_mul_i32 s{sT1}, s{sW}, 3"), salu(f"s_add_u32 s{sT0}, s{sT0}, s{sT1}"),
          salu(f"s_lshl_b32 s{sT0}, s{sT0}, 17"), salu(f"s_lshl_b32 s{sT1}, s{sH}, 12"), salu(f"s_add_u32 s{sT0}, s{sT0}, s{sT1}"),
          V(f"v_lshlrev_b32 v{TMP3}, 4, v{VLANE}")]
    for j in range(3):
        l = L0 + j
        o += [V(f"v_mov_b32 v{TMP}, v{l}"), nop(1), V(f"v_permlane16_swap_b32 v{l}, v{TMP}"), nop(1), V(f"v_add_f32 v{l}, v{l}, v{TMP}"),
              V(f"v_mov_b32 v{TMP}, v{l}"), nop(1), V(f"v_permlane32_swap_b32 v{l}, v{TMP}"), nop(1), V(f"v_add_f32 v{l}, v{l}, v{TMP}"),
              V(f"v_rcp_f32 v{l}, v{l}"), nop(0)]
        for u in range(4):
            a = acc(j, 2 * u)
            for r in range(8): o.append(V(f"v_mul_f32 v{a+r}, v{a+r}, v{l}"))
            q = qf(j, u)
            for r in range(4): o.append(V(f"v_cvt_pk_bf16_f32 v{q+r}, v{a+2*r}, v{a+2*r+1}"))
            o.append(buf_store(q, 4, TMP3, SO, f"s{sT0}", u * 1024, tag="st", flags=OSTFLAGS))
        if j < 2: o.append(salu(f"s_add_u32 s{sT0}, s{sT0}, 0x20000"))
    return o

STAMP = False
def stamp(i):
    if not STAMP: return []
    return [raw(f"s_memrealtime s[{64+4*i}:{65+4*i}]"), raw(f"s_memtime s[{66+4*i}:{67+4*i}]")]
def stamp_store(n, wsoff, srdreg, nwg_stride=4):
    if not STAMP: return []
    o = [raw("s_waitcnt lgkmcnt(0)"), salu(f"s_mov_b32 s{srdreg+2}, 0x20000000"),
         salu(f"s_lshl_b32 s60, s2, 2"), salu(f"s_add_u32 s60, s60, s24"), salu("s_lshl_b32 s60, s60, 6"), salu(f"s_add_u32 s60, s60, {wsoff}"),
         valu(f"v_mov_b32 v2, 0"), salu("s_mov_b64 exec, 1")]
    for i in range(n):
        o += [valu(f"v_mov_b32 v4, s{64+4*i}"), valu(f"v_mov_b32 v5, s{66+4*i}"), buf_store(4, 2, 2, srdreg, "s60", 8 * i, tag="dbg"), nop(1)]
    return o

def gen_k1():
    pro = k1_prologue()
    steps = [p_step(ps) for ps in range(16)] + [init_step()] + [a_step(kt) for kt in range(33)]
    lin = link(steps)[:-1]
    epi = k1_epilogue()
    full = pro + [x for s in lin for x in s] + epi
    errs, _, _ = resolve_waits(full)
    errs += check_hazards(full)
    subs = []
    for r in range(4): subs += slow_stub(r)
    for par in range(2):
        rb = rebase(par)
        errs += check_hazards(rb)
        subs += rb
    if errs:
        print("\n".join(errs[:40]), file=sys.stderr); raise SystemExit("generation errors: %d" % len(errs))
    def grp(lo, n): return [x for s in lin[lo:lo + n] for x in s]
    out = pro[:2] + stamp(0) + pro[2:]
    sSWC = sWO1
    pr0 = [raw("s_setprio 1"), salu(f"s_mov_b32 s{sSWC}, 99"), raw("s_cmp_ge_u32 s2, 256", "salu"), raw("s_cbranch_scc1 L1_pr0", "branch"),
           raw("s_setprio 2"), salu(f"s_mov_b32 s{sSWC}, {8 - SW}"), label("L1_pr0")]
    prp = [raw("s_cmp_ge_u32 s2, 256", "salu"), raw("s_cbranch_scc1 L1_prp", "branch"), raw("s_setprio 0"), label("L1_prp")]
    prl = [raw(f"s_cmp_lg_u32 s{sCNT}, s{sSWC}", "salu"), raw("s_cbranch_scc1 L1_prl", "branch"), raw("s_setprio 0"), label("L1_prl")]
    if SW < 0: pr0 = []; prl = []
    out += pr0
    if PSW >= 0: out += grp(0, PSW) + prp + grp(PSW, 16 - PSW)
    else: out += grp(0, 16)
    out += stamp(1) + grp(16, 1) + stamp(2)
    out += [salu(f"s_mov_b32 s{sCNT}, 8"), label("L1_aloop")] + prl
    out += fold([grp(17 + 4 * i, 4) for i in range(8)])
    out += [salu(f"s_sub_u32 s{sCNT}, s{sCNT}, 1"), salu(f"s_cmp_lg_u32 s{sCNT}, 0"), raw("s_cbranch_scc1 L1_aloop", "branch")]
    tk = []
    if TICK:
        tk = [salu(f"s_mov_b32 s{SO+2}, 0x20000000"), salu(f"s_lshl_b32 s60, s2, 2"), salu(f"s_add_u32 s60, s60, s24"), salu("s_lshl_b32 s60, s60, 9"),
              salu(f"s_add_u32 s60, s60, {66 << 20}"), valu(f"v_lshlrev_b32 v2, 2, v{VLANE}"), nop(4),
              buf_store(0, 1, 2, SO, "s60", 0, tag="dbg"), buf_store(15, 1, 2, SO, "s60", 256, tag="dbg"), nop(1)]
    out += stamp(3) + epi + stamp(4) + tk + stamp_store(5, 64 << 20, SO)
    out += [label("L1_end"), raw("s_endpgm")]
    out += subs
    return out

if __name__ == "__main__":
    print(emit(gen_k1()))
```

```python
import sys, math, struct, os
from asmlib import *

def f32(x): return struct.unpack("<I", struct.pack("<f", x))[0]
V = valu
SLOT = 8704
KP, VP = 1088, 1056
L0, T0, TMP, TMP2 = 1, 4, 7, 8
VKR, VVR, VDK, VDV = 9, 10, 11, 12
VLANE = 13
TMP3, TMP4 = 14, 15
NM = 16
VDW0, VDW1, VXD, VWR, VXR = 16, 17, 18, 20, 60
FR = 28
VFA, VFL = 62, 63
SP = 64
QR = 112
ACC = 160
def acc(j, dt): return ACC + (j * 8 + dt) * 4
def qf(j, u): return QR + (j * 4 + u) * 4
def sreg(par, j, t): return SP + par * 24 + j * 8 + t * 4
def negm(j): return NM + 4 * j
def fr(n): return FR + 4 * (n % 8)
def xb(buf, half, j): return SP + buf * 24 + (half * 3 + j) * 4
def xf(st, half, j): return SP + (st % 2) * 24 + (half * 3 + j) * 4
SX, SWQ, SK, SV, SO = 4, 8, 12, 16, 20
SDBG = SWQ
SWO, SOUT = SX, SK
sW, sB, sH = 24, 25, 26
sXO, sWO0, sITEM, sKO, sVO, sCNT, sMK, sMV, sTH, sC = 27, 28, 29, 30, 31, 32, 33, 34, 35, 36
sQOK = sWO0
sPUB = sWO0
sT0, sT1, sU = 37, 38, 39
sRET = 40
sKS0, sKS1 = 44, 45
sXC, sV = 46, 47
PX, PK, PV, PWQ, PWO, POUT, PDBG, PWS = 48, 50, 52, 54, 56, 58, 60, 62
sX0 = 64
sMX, sMW, sTK, sR, sCLS = 67, 68, 69, 70, 71
STB = 72
sMG, sNB, sMH, sKH, sM0, sPH = 44, 45, 33, 34, 67, 29

POS = {0: -12, 1: -11, 2: -10, 3: -9, 4: -8, 5: -6, 6: -3, 7: 3}
for n in range(8, 16): POS[n] = 3 * n - 18
POSP = dict(POS)
for n in range(8, 16): POSP[n] = 24 + POS[n - 8]
BAR = 36
DMA_GAPS = [37, 40, 43, 46]

class Step:
    def __init__(self, name):
        self.name = name; self.mf = [None] * 48; self.gaps = {}; self.pre = {}; self.reads = None; self.pos = POS
    def gap(self, m, *ins): self.gaps.setdefault(m, []).extend(ins)
    def before(self, m, *ins): self.pre.setdefault(m, []).extend(ins)

WSL = 8192
XBASE = 4 * WSL
XSL = 24576
LDS_BYTES = XBASE + 2 * XSL
ABORT = 9 * SLOT
def w_slot(i): return (i % 4) * WSL
def x_slot(i): return XBASE + (i % 2) * XSL
KS = [4 * SLOT, 6 * SLOT, 8 * SLOT, 1 * SLOT]
VS = [5 * SLOT, 7 * SLOT, 0, 2 * SLOT]
KBIAS = SLOT
def k_slot(i): return KS[i % 4]
def v_slot(i): return VS[i % 4]
QOFF = 32 << 20
FLGQ = QOFF + 256 * 49152
FLGO = FLGQ + 65536
WS_BYTES = FLGO + 32 * 256
OXOFF = int(os.environ.get("OXOFF", "0"))
if OXOFF: WS_BYTES = 256 << 20
sTOK = 3

E = os.environ.get
TICK = int(E("TICK", "0"))
STAMP = False
KVFLAGS = E("KVF", " nt")
PRA, PRB = int(E("PRA", "2")), int(E("PRB", "1"))
PSLEEP = int(E("PSLEEP", "24"))
PSN = int(E("PSN", "1"))
QLIMIT = int(E("QLIMIT", "64"))
OLF = E("OLF", " sc1")
OUTF = E("OUTF", "")
WT = int(E("WT", "1"))
WTF = E("WTF", "")
QPOS = int(E("QPOS", "43"))
RBS = 0x20000 + int(E("RPAD", "2048"))
FORCE_SLOW = int(E("FORCE_SLOW", "0"))

def rd_w(tile, a, n, tagp):
    u, T = a >> 1, a & 1
    base = w_slot(tile); va = VWR + T * 4 + u
    return [ds_read("ds_read_b64_tr_b16", fr(n), 2, va, base, tag=(tagp, n)),
            ds_read("ds_read_b64_tr_b16", fr(n) + 2, 2, va, base + 256, tag=(tagp, n))]
def rd_k(tile, a, n, tagp):
    t, u = a >> 2, a & 3
    return [ds_read("ds_read_b128", fr(n), 4, VKR, k_slot(tile) - KBIAS + t * 4 * KP + u * 64, tag=(tagp, n))]
def rd_v(tile, dt, n, tagp):
    base = v_slot(tile) + dt * 32
    return [ds_read("ds_read_b64_tr_b16", fr(n), 2, VVR, base, tag=(tagp, n)),
            ds_read("ds_read_b64_tr_b16", fr(n) + 2, 2, VVR, base + 512, tag=(tagp, n))]
def adv_simple(r): return [salu(f"s_add_u32 s{r}, s{r}, 0x2000"), salu(f"s_and_b32 s{r}, s{r}, 0x3ffff")]
def tile_off(dst, src):
    return [salu(f"s_and_b32 s{sT0}, s{src}, 0xc0000"), salu(f"s_add_u32 s{dst}, s{src}, s{sR}"), salu(f"s_lshl_b32 s{sT0}, s{sT0}, 4"),
            salu(f"s_and_b32 s{dst}, s{dst}, 0x3ffff"), salu(f"s_or_b32 s{dst}, s{dst}, s{sT0}")]
def adv_kv(first=False):
    return [salu(f"s_mov_b32 s{sVO}, s{sKO}"),
            salu(f"s_mov_b32 s{sU}, {5*8192}") if first else salu(f"s_add_u32 s{sU}, s{sU}, 0x2000")] + tile_off(sKO, sU)
def tick_pre(): return [raw("s_memtime s[100:101]"), raw("s_memrealtime s[42:43]")] if TICK else []
def tick_post():
    return [raw(f"s_mov_b32 m0, s{sTK}"), nop(0), raw(f"v_writelane_b32 v0, s100, m0"), raw(f"v_writelane_b32 v15, s42, m0"),
            raw(f"s_add_u32 s{sTK}, s{sTK}, 1"), raw(f"s_and_b32 s{sTK}, s{sTK}, 63")] if TICK else []
def dma_k(i):
    s = k_slot(i)
    return [(salu(f"s_add_u32 m0, s{sMK}, {s}"), buf_dma(VDK, SK, f"s{sKO}", 0, tag=("K", i), flags=KVFLAGS)),
            (salu(f"s_add_u32 m0, s{sMK}, {s + KP - 1024}"), buf_dma(VDK, SK, f"s{sKO}", 1024, tag=("K", i), flags=KVFLAGS))]
def dma_v(i):
    s = v_slot(i)
    return [(salu(f"s_add_u32 m0, s{sMV}, {s}"), buf_dma(VDV, SV, f"s{sVO}", 0, tag=("V", i), flags=KVFLAGS)),
            (salu(f"s_add_u32 m0, s{sMV}, {s + VP - 256}"), buf_dma(VDV, SV, f"s{sVO}", 256, tag=("V", i), flags=KVFLAGS))]
def dma_w(i):
    s = w_slot(i); so = f"s{sWO0}"
    return [(salu(f"s_add_u32 m0, s{sMW}, {s}"), buf_dma(VDW0, SWQ, so, 0, tag=("W", i))),
            (salu(f"s_add_u32 m0, s{sMW}, {s + 1024}"), buf_dma(VDW1, SWQ, so, 0, tag=("W", i)))]
def dma_x(t):
    s = x_slot(t)
    return [(salu(f"s_add_u32 m0, s{sMX}, {s + e * 1024 - t * 128}"), buf_dma(VXD + (e & 1), SX, f"s{sX0 + (e >> 1)}", t * 128, tag=("X", t))) for e in range(6)]
def rd_x(t):
    return [ds_read("ds_read_b128", xf(t, half, j), 4, VXR + half, x_slot(t) - XBASE + j * 2048, tag=("x", t)) for half in range(2) for j in range(3)]
def place_dma(st, pairs, gaps=None):
    assert len(pairs) <= len(gaps or DMA_GAPS)
    for (m0i, d), g in zip(pairs, gaps or DMA_GAPS):
        st.before(g, m0i)
        if st.mf[g] is None: st.before(g, nop(0))
        st.gap(g, d)
def sm_half(st, g0, par, j, t, first_l):
    a = sreg(par, j, t); p = sreg(par, j, 0) + 2 * t; tj = T0 + j; lj = L0 + j
    for r in range(4): st.gap(g0 + r, V(f"v_exp_f32 v{a+r}, v{a+r}"))
    if t == 0:
        if first_l: st.gap(g0 + 4, V(f"v_add_f32 v{lj}, v{lj}, v{tj}"))
        st.gap(g0 + 4, V(f"v_add_f32 v{tj}, v{a}, v{a+1}"))
    else:
        st.gap(g0 + 4, V(f"v_add_f32 v{tj}, v{tj}, v{a}"), V(f"v_add_f32 v{tj}, v{tj}, v{a+1}"))
    st.gap(g0 + 5, V(f"v_cvt_pk_bf16_f32 v{p}, v{a}, v{a+1}"), V(f"v_add_f32 v{tj}, v{tj}, v{a+2}"))
    st.gap(g0 + 6, V(f"v_add_f32 v{tj}, v{tj}, v{a+3}"), V(f"v_cvt_pk_bf16_f32 v{p+1}, v{a+2}, v{a+3}"))

def link(steps, early_first=True):
    early = []
    for i, st in enumerate(steps):
        for n in range(16):
            if st.reads is None: continue
            r = st.reads(n)
            if r is None: continue
            p = st.pos[n]
            if p < 0:
                if i == 0:
                    if early_first: st.before(0, *r)
                    else: early += r
                else: steps[i - 1].gap(48 + p, *r)
            else: st.gap(p, *r)
    out = []
    for st in steps:
        if st.reads is not None:
            for n in range(0, 16, 2):
                if st.reads(n) is None: continue
                st.pre.setdefault(3 * n, []).append(wait(lgkm=[(st.name, n), (st.name, n + 1)]))
        out.append(interleave(st.mf, st.gaps, st.pre))
    return out, early

def p_step(ps):
    st = Step(f"P{ps}")
    st.pos = POSP
    if ps + 1 <= 15:
        st.gap(3, wait(vm=[("X", ps + 1)]))
        for j, r in enumerate(rd_x(ps + 1)): st.gap(4 + j, r)
    for half in range(2):
        t = 2 * ps + half
        o = 24 * half
        for a in range(8):
            for j in range(3):
                st.mf[o + a * 3 + j] = mfma(acc(j, a), fr(half * 8 + a), xf(ps, half, j), 'z' if t == 0 else None)
        need = [("W", t + 1)] if t < 31 else [("K", 0)]
        if half == 1: st.before(o + 12, *tick_pre(), wait(vm=need, lgkm="all"), barrier(), *tick_post())
        else: st.before(o + 12, wait(vm=need, lgkm="all"), barrier())
        d = []; post = []
        if t + 4 <= 31:
            d += dma_w(t + 4); post.append(salu(f"s_add_u32 s{sWO0}, s{sWO0}, 0x40000"))
        kv = {26: "K0", 27: "V0", 28: "K1 V1", 29: "K2 V2", 30: "K3", 31: "V3"}.get(t, "")
        for it in kv.split():
            if it[0] == "K": d += dma_k(int(it[1])); post += adv_simple(sKO)
            else: d += dma_v(int(it[1])); post += adv_simple(sVO)
        place_dma(st, d, [o + 13, o + 15, o + 17, o + 19])
        st.gap(o + 22, *post)
    if ps + 3 <= 15: place_dma(st, dma_x(ps + 3), [18, 21, 24, 27, 30, 33])
    if ps == 14:
        st.gap(1, *srd(SDBG, PDBG, PDBG + 1, 256), V(f"v_mov_b32 v{VFA}, 0"))
        st.gap(11, buf_load(VFL, 1, VFA, SDBG, 0, 0, tag="tok", flags=" sc1"))
    st.reads = lambda n: rd_w(2 * ps + (n >> 3), n & 7, n, st.name)
    if ps == 0: place_dma(st, dma_x(2), [0, 1, 2, 9, 10, 11])
    return st

def qk_mfmas(st, kt1, czero=False):
    par = kt1 & 1
    for t in range(2):
        for u in range(4):
            for j in range(3):
                c = None
                if u == 0: c = 'z' if czero else negm(j)
                st.mf[t * 12 + u * 3 + j] = mfma(sreg(par, j, t), fr(t * 4 + u), qf(j, u), c)
def rowmax_code(par, j, dst, tmp):
    a = sreg(par, j, 0)
    return [V(f"v_max3_f32 v{dst}, v{a}, v{a+1}, v{a+2}"), V(f"v_max3_f32 v{dst}, v{dst}, v{a+3}, v{a+4}"),
            V(f"v_max3_f32 v{dst}, v{dst}, v{a+5}, v{a+6}"), V(f"v_max_f32 v{dst}, v{dst}, v{a+7}"),
            V(f"v_mov_b32 v{tmp}, v{dst}"), nop(1), V(f"v_permlane16_swap_b32 v{dst}, v{tmp}"), nop(1),
            V(f"v_max_f32 v{dst}, v{dst}, v{tmp}"), V(f"v_mov_b32 v{tmp}, v{dst}"), nop(1),
            V(f"v_permlane32_swap_b32 v{dst}, v{tmp}"), nop(1), V(f"v_max_f32 v{dst}, v{dst}, v{tmp}")]
def q_finalize():
    out = [nop(7), nop(1)]
    for j in range(3):
        for dt in range(8):
            for r in range(4): out.append(V(f"v_mul_f32 v{acc(j,dt)+r}, s{sC}, v{acc(j,dt)+r}"))
    for j in range(3):
        for u in range(4):
            q = qf(j, u); a0 = acc(j, 2 * u); a1 = acc(j, 2 * u + 1)
            out += [V(f"v_cvt_pk_bf16_f32 v{q}, v{a0}, v{a0+1}"), V(f"v_cvt_pk_bf16_f32 v{q+1}, v{a0+2}, v{a0+3}"),
                    V(f"v_cvt_pk_bf16_f32 v{q+2}, v{a1}, v{a1+1}"), V(f"v_cvt_pk_bf16_f32 v{q+3}, v{a1+2}, v{a1+3}")]
    out += [salu("s_mov_b32 exec_lo, 0"), nop(0)]
    for j in range(3):
        for u in range(4):
            q = qf(j, u)
            out += [V(f"v_swap_b32 v{q}, v{q+2}"), V(f"v_swap_b32 v{q+1}, v{q+3}")]
    out += [salu("s_mov_b32 exec_lo, -1"), nop(1)]
    return out
def srd(s, lo, hi, nbytes):
    return [salu(f"s_mov_b32 s{s}, s{lo}"), salu(f"s_and_b32 s{s+1}, s{hi}, 0xffff"),
            salu(f"s_mov_b32 s{s+2}, {nbytes}"), salu(f"s_mov_b32 s{s+3}, 0x00020000")]
def q_soff(dst):
    return [salu(f"s_and_b32 s{dst}, s2, 255"), salu(f"s_lshl_b32 s{dst}, s{dst}, 2"), salu(f"s_add_u32 s{dst}, s{dst}, s{sW}"),
            salu(f"s_mul_i32 s{dst}, s{dst}, 12288"), salu(f"s_add_u32 s{dst}, s{dst}, {QOFF}")]
def q_loads(tag):
    o = []
    for i in range(12):
        so = [sXO, sKS0, sKS1][i >> 2]
        o.append(buf_load(QR + 4 * i, 4, TMP3, SO, f"s{so}", (i & 3) * 1024, tag=tag, flags=" sc1"))
    return o
def q_addr():
    return q_soff(sXO) + [salu(f"s_add_u32 s{sKS0}, s{sXO}, 4096"), salu(f"s_add_u32 s{sKS1}, s{sXO}, 8192"), V(f"v_lshlrev_b32 v{TMP3}, 4, v{VLANE}")]
def publish_cnt(lab, hreg_round):
    o = [raw(f"s_cmp_lg_u32 s{sW}, 0", "salu"), raw(f"s_cbranch_scc1 {lab}", "branch")]
    if hreg_round is None: o += [salu(f"s_and_b32 s{sT0}, s{sH}, 16"), salu(f"s_add_u32 s{sT0}, s{sT0}, s{sB}"), salu(f"s_lshl_b32 s{sT0}, s{sT0}, 8")]
    else: o += [salu(f"s_lshl_b32 s{sT0}, s{sB}, 8")]
    o += [salu(f"s_and_b32 s{sT1}, s{sH}, 15"), salu(f"s_lshl_b32 s{sT1}, s{sT1}, 2"), salu(f"s_add_u32 s{sT0}, s{sT0}, s{sT1}"),
          salu(f"s_add_u32 s{sT0}, s{sT0}, {FLGO}"),
          V(f"v_mov_b32 v{VFA}, 0"), V(f"v_mov_b32 v{VFL}, s{sTOK}"), salu("s_mov_b64 exec, 1"), nop(0),
          raw(f"buffer_store_dword v{VFL}, v{VFA}, s[{SO}:{SO+3}], s{sT0} offen sc1"), salu("s_mov_b64 exec, -1"), label(lab)]
    return o
def qflag_off(dst): return [salu(f"s_and_b32 s{dst}, s2, 255"), salu(f"s_lshl_b32 s{dst}, s{dst}, 7"), salu(f"s_add_u32 s{dst}, s{dst}, {FLGQ}")]

def init_step(item):
    base = 32 * item
    st = Step(f"I{item}")
    qk_mfmas(st, 0, czero=True)
    st.reads = lambda n: rd_k(base, n, n, st.name) if n < 8 else None
    if item: st.before(0, wait(vm=["Q2"]))
    z = [V(f"v_mov_b32 v{ACC+i}, 0") for i in range(96)]
    for i, ins in enumerate(z): st.gap(i // 4, ins)
    post = [nop(7), nop(1)]
    for j in range(3):
        post += rowmax_code(0, j, TMP, TMP2)
        for r in range(4): post.append(V(f"v_sub_f32 v{negm(j)+r}, 0, v{TMP}"))
        for r in range(8): post.append(V(f"v_sub_f32 v{sreg(0,j,0)+r}, v{sreg(0,j,0)+r}, v{TMP}"))
        post.append(V(f"v_mov_b32 v{L0+j}, 0"))
    st.gap(23, *post)
    for j in range(3): sm_half(st, 24 + 4 * j, 0, j, 0, False)
    if item == 0:
        st.before(BAR, *tick_pre(), wait(vm=[("K", 1), ("V", 0)], lgkm="all"), barrier(), *tick_post())
        st.gap(BAR, V(f"v_mov_b32 v{VFA}, {ABORT}"), V(f"v_mov_b32 v{VFL}, 0"), ds_write("ds_write_b32", VFA, VFL, 1, 0, tag="abw"), salu(f"s_mov_b32 s{sPUB}, 0"))
    else:
        st.before(BAR, label("L_i1bar"), *tick_pre(), wait(vm=[("K", 33), ("V", 32)], lgkm="all"), barrier(), *tick_post())
        st.gap(BAR, V(f"v_mov_b32 v{TMP2}, {ABORT}"), ds_read("ds_read_b32", TMP, 1, TMP2, 0, tag="abr"), salu(f"s_mov_b32 s{sPUB}, 1"))
    place_dma(st, dma_k(base + 4))
    st.gap(47, *adv_kv(item == 0))
    if item:
        st.gap(47, wait(lgkm=["abr"]), V(f"v_readfirstlane_b32 s{sT0}, v{TMP}"), nop(3), raw(f"s_cmp_lg_u32 s{sT0}, 0", "salu"),
               raw("s_cbranch_scc1 L_restart", "branch"))
    return st

def a_step(kt, item):
    g = kt + 32 * item
    st = Step(f"A{g}")
    par = kt & 1
    last = kt == 31
    site = kt % 4 + (4 if kt >= 28 else 0)
    if not last: qk_mfmas(st, kt + 1)
    for dt in range(8):
        for j in range(3):
            st.mf[24 + dt * 3 + j] = mfma(acc(j, dt), fr(8 + dt), sreg(par, j, 0))
    st.reads = lambda n: ((None if last else rd_k(g + 1, n, n, st.name)) if n < 8 else rd_v(g, n - 8, n, st.name))
    for j in range(3): sm_half(st, 7 * j, par, j, 1, False)
    st.gap(21, V(f"v_max3_f32 v{TMP}, v{T0}, v{T0+1}, v{T0+2}"))
    st.gap(22, V(f"v_cmp_lt_f32 vcc, s{sTH}, v{TMP}"))
    if last: st.gap(22, nop(3))
    st.gap(23, raw(f"s_cbranch_vccnz L_slow{site}", "branch"), label(f"L_back{site}"))
    if last:
        st.gap(23, nop(1))
        for j in range(3): st.gap(24 + j, V(f"v_add_f32 v{L0+j}, v{L0+j}, v{T0+j}"))
        st.before(BAR, *tick_pre(), wait(vm=[("K", g + 2), ("V", g + 1)], lgkm="all"), barrier(), *tick_post())
        place_dma(st, dma_v(g + 4), [37, 39])
        st.gap(QPOS - 3, wait(vm=[("F", item)]), V(f"v_readfirstlane_b32 s{sT0}, v{VFL}"))
        st.gap(QPOS - 2, *q_addr())
        chk = [salu(f"s_cmp_eq_u32 s{sT0}, s{sTOK}"), salu(f"s_cselect_b32 s{sQOK}, {0 if FORCE_SLOW else 1}, 0"),
               salu(f"s_cmp_eq_u32 s{sITEM}, 0"), salu(f"s_cselect_b32 s{sQOK}, s{sQOK}, 0"),
               salu(f"s_cmp_eq_u32 s{sQOK}, 0"), raw("s_cbranch_scc1 L_noq", "branch")]
        st.gap(QPOS, *chk, *q_loads("Q2" if item == 0 else "Q2x"), label("L_noq"))
    else:
        for j in range(3): sm_half(st, 24 + 7 * j, 1 - par, j, 0, True)
        st.before(BAR, *tick_pre(), wait(vm=[("K", g + 2), ("V", g + 1)] + (["st"] if g == 34 else []), lgkm="all"), barrier(), *tick_post())
        if kt % 4 == 2 and kt < 28:
            st.gap(BAR + 2, raw(f"s_cmp_lg_u32 s{sPUB}, 0", "salu"), raw("s_cbranch_scc1 L_pub", "branch"), label("L_pubback"))
        place_dma(st, dma_k(g + 5) + dma_v(g + 4))
        st.gap(47, *adv_kv())
    if kt == 28:
        st.gap(30, *qflag_off(sT0), V(f"v_mov_b32 v{VFA}, 0"))
        st.gap(32, buf_load(VFL, 1, VFA, SO, f"s{sT0}", 0, tag=("F", item), flags=" sc1"))
    return st

def slow_stub(site):
    r = site % 4
    out = [label(f"L_slow{site}"), salu(f"s_sub_u32 s{sKS1}, s{sU}, {5*8192}")] + tile_off(sKS0, sKS1) + [
           salu(f"s_add_u32 s{sKS1}, s{sKS0}, 4096"),
           raw(f"s_call_b64 s[{sRET}:{sRET+1}], L_rebase{r&1}", "branch")]
    for n in range(8, 16):
        if POS[n] <= 23: out += rd_v(r, n - 8, n, "slow")
    out += [raw("s_waitcnt lgkmcnt(0)"), raw(f"s_branch L_back{site}", "branch")]
    return out
def rebase(par):
    out = [label(f"L_rebase{par}"), raw("s_waitcnt lgkmcnt(0)"), nop(7), nop(7),
           V(f"v_and_b32 v{TMP}, 15, v{VLANE}"), V(f"v_lshlrev_b32 v{TMP}, 8, v{TMP}"),
           V(f"v_lshrrev_b32 v{TMP2}, 4, v{VLANE}"), V(f"v_lshl_add_u32 v{TMP}, v{TMP2}, 4, v{TMP}")]
    for t in range(2):
        for u in range(4): out.append(buf_load(fr(t * 4 + u), 4, TMP, SK, f"s{sKS0 + t}", u * 64, tag="sl"))
    out.append(raw("s_waitcnt vmcnt(0)"))
    for t in range(2):
        for u in range(4):
            for j in range(3): out.append(mfma(sreg(par, j, t), fr(t * 4 + u), qf(j, u), negm(j) if u == 0 else None))
    out += [nop(7), nop(7)]
    for j in range(3):
        out += rowmax_code(par, j, TMP, TMP2)
        out += [V(f"v_max_f32 v{TMP}, 0, v{TMP}"), V(f"v_sub_f32 v{TMP2}, 0, v{TMP}"), V(f"v_exp_f32 v{TMP2}, v{TMP2}")]
        for r in range(4): out.append(V(f"v_sub_f32 v{negm(j)+r}, v{negm(j)+r}, v{TMP}"))
        for pp in range(2):
            for r in range(8): out.append(V(f"v_sub_f32 v{sreg(pp,j,0)+r}, v{sreg(pp,j,0)+r}, v{TMP}"))
        out.append(V(f"v_mul_f32 v{L0+j}, v{L0+j}, v{TMP2}"))
        for r in range(32): out.append(V(f"v_mul_f32 v{acc(j,0)+r}, v{acc(j,0)+r}, v{TMP2}"))
        a = sreg(par, j, 0); tj = T0 + j
        for r in range(8): out.append(V(f"v_exp_f32 v{a+r}, v{a+r}"))
        out.append(nop(0))
        out.append(V(f"v_add_f32 v{tj}, v{a}, v{a+1}"))
        for r in range(2, 8): out.append(V(f"v_add_f32 v{tj}, v{tj}, v{a+r}"))
        for r in range(4): out.append(V(f"v_cvt_pk_bf16_f32 v{a+r}, v{a+2*r}, v{a+2*r+1}"))
    out += [nop(3), raw(f"s_setpc_b64 s[{sRET}:{sRET+1}]", "branch")]
    return out

def head():
    return [raw("s_cmp_ge_u32 s2, 512", "salu"), raw("s_cbranch_scc1 L_end", "branch"),
            raw("s_load_dwordx16 s[48:63], s[0:1], 0"),
            V(f"v_and_b32 v{VLANE}, 63, v0"), V(f"v_lshrrev_b32 v{TMP}, 6, v0"), nop(0),
            V(f"v_readfirstlane_b32 s{sW}, v{TMP}"),
            salu(f"s_lshr_b32 s{sCLS}, s2, 8"), salu(f"s_lshl_b32 s{sITEM}, s{sCLS}, 1"), salu(f"s_mov_b32 s{sTK}, 0"),
            raw(f"s_setprio {PRB}"), raw("s_cmp_ge_u32 s2, 256", "salu"), raw("s_cbranch_scc1 L_pr0", "branch"), raw(f"s_setprio {PRA}"), label("L_pr0"),
            raw("s_memrealtime s[42:43]"), raw("s_waitcnt lgkmcnt(0)"),
            salu(f"s_or_b32 s{sT0}, s2, s{sW}"), raw(f"s_cmp_lg_u32 s{sT0}, 0", "salu"), raw("s_cbranch_scc1 L_start", "branch"),
            *srd(SO, PDBG, PDBG + 1, 256), salu("s_or_b32 s42, s42, 1"), V(f"v_mov_b32 v{VFA}, 0"), V(f"v_mov_b32 v{VFL}, s42"),
            salu("s_mov_b64 exec, 1"), nop(0), raw(f"buffer_store_dword v{VFL}, v{VFA}, s[{SO}:{SO+3}], 0 offen sc1"), salu("s_mov_b64 exec, -1"), nop(1)]
def prologue():
    o = [label("L_start"),
         salu(f"s_and_b32 s{sXC}, s2, 7"), salu(f"s_lshr_b32 s{sV}, s2, 3"), salu(f"s_and_b32 s{sV}, s{sV}, 31"),
         salu(f"s_and_b32 s{sT0}, s{sXC}, 3"), salu(f"s_lshl_b32 s{sT0}, s{sT0}, 2"), salu(f"s_and_b32 s{sB}, s{sV}, 3"), salu(f"s_add_u32 s{sB}, s{sB}, s{sT0}"),
         salu(f"s_lshr_b32 s{sT0}, s{sXC}, 2"), salu(f"s_lshl_b32 s{sT0}, s{sT0}, 3"), salu(f"s_lshr_b32 s{sH}, s{sV}, 2"), salu(f"s_add_u32 s{sH}, s{sH}, s{sT0}"),
         salu(f"s_lshl_b32 s{sT0}, s{sCLS}, 4"), salu(f"s_add_u32 s{sH}, s{sH}, s{sT0}")]
    o += srd(SX, PX, PX + 1, 16 * 192 * 1024 * 2) + srd(SWQ, PWQ, PWQ + 1, 1024 * 4096 * 2)
    o += [salu(f"s_lshl_b32 s{sT0}, s{sB}, 5"), salu(f"s_add_u32 s{sT0}, s{sT0}, s{sH}"), salu(f"s_lshl_b32 s{sT0}, s{sT0}, 18"),
          salu(f"s_add_u32 s{SK}, s{PK}, s{sT0}"), salu(f"s_addc_u32 s{SK+1}, s{PK+1}, 0"),
          salu(f"s_add_u32 s{SV}, s{PV}, s{sT0}"), salu(f"s_addc_u32 s{SV+1}, s{PV+1}, 0")]
    o += srd(SK, SK, SK + 1, 0x440000)[1:] + srd(SV, SV, SV + 1, 0x440000)[1:]
    o += [salu(f"s_cmp_eq_u32 s{sITEM}, 1"), salu(f"s_cselect_b32 s{SK+2}, 0x40000, s{SK+2}"),
          salu(f"s_cmp_eq_u32 s{sITEM}, 2"), salu(f"s_cselect_b32 s{SK+2}, 0, s{SK+2}"), salu(f"s_mov_b32 s{SV+2}, s{SK+2}")]
    o += srd(SO, PWS, PWS + 1, WS_BYTES)
    A, B, C, D = 2, 3, 4, 5
    o += [salu(f"s_mul_i32 s{sMK}, s{sW}, {2*KP}"), salu(f"s_mul_i32 s{sMV}, s{sW}, {2*VP}"),
          salu(f"s_mov_b32 s{sTH}, {f32(1024.0)}"), salu(f"s_mov_b32 s{sC}, {f32(math.log2(math.e) / math.sqrt(128.0))}"),
          salu(f"s_lshl_b32 s{sR}, s{sV}, 13"), salu(f"s_mov_b32 s{sKO}, s{sR}"), salu(f"s_mov_b32 s{sVO}, s{sR}"),
          salu(f"s_mov_b32 s{sWO0}, 0"), salu(f"s_mul_i32 s{sMX}, s{sW}, 6144"), salu(f"s_lshl_b32 s{sMW}, s{sW}, 11"),
          salu(f"s_mul_i32 s{sXO}, s{sB}, 192"), salu(f"s_mul_i32 s{sT0}, s{sW}, 48"), salu(f"s_add_u32 s{sXO}, s{sXO}, s{sT0}"),
          salu(f"s_lshl_b32 s{sX0}, s{sXO}, 11"), salu(f"s_add_u32 s{sX0+1}, s{sX0}, 0x8000"), salu(f"s_add_u32 s{sX0+2}, s{sX0}, 0x10000"),
          V(f"v_and_b32 v{A}, 15, v{VLANE}"), V(f"v_lshrrev_b32 v{B}, 4, v{VLANE}"),
          V(f"v_xor_b32 v{C}, v{B}, v{VLANE}"), V(f"v_and_b32 v{C}, 7, v{C}"),
          V(f"v_lshrrev_b32 v{D}, 3, v{VLANE}"), V(f"v_lshlrev_b32 v{D}, 11, v{D}"),
          V(f"v_lshl_add_u32 v{VXD}, v{C}, 4, v{D}"),
          V(f"v_xor_b32 v{VXD+1}, 64, v{VXD}"), V(f"v_add_u32 v{VXD+1}, 0x4000, v{VXD+1}"),
          V(f"v_and_b32 v{C}, 1, v{B}"), V(f"v_lshlrev_b32 v{C}, 2, v{C}"),
          V(f"v_lshrrev_b32 v{D}, 1, v{B}"), V(f"v_lshl_add_u32 v{C}, v{D}, 4, v{C}"),
          salu(f"s_lshl_b32 s{sT0}, s{sW}, 1"), salu(f"s_and_b32 s{sT0}, s{sT0}, 3"),
          salu(f"s_lshr_b32 s{sT1}, s{sW}, 1"), salu(f"s_lshl_b32 s{sT1}, s{sT1}, 3"), salu(f"s_add_u32 s{sT0}, s{sT0}, s{sT1}"),
          V(f"v_add_u32 v{C}, s{sT0}, v{C}"), V(f"v_lshlrev_b32 v{C}, 13, v{C}"),
          salu(f"s_lshl_b32 s{sT0}, s{sW}, 2"), V(f"v_xor_b32 v{D}, s{sT0}, v{A}"),
          V(f"v_lshl_add_u32 v{C}, v{D}, 4, v{C}"),
          salu(f"s_lshl_b32 s{sT0}, s{sH}, 8"),
          V(f"v_add_u32 v{VDW0}, s{sT0}, v{C}"), V(f"v_xor_b32 v{VDW1}, 32, v{VDW0}"), V(f"v_add_u32 v{VDW1}, 0x2000, v{VDW1}")]
    def em(pairs):
        r = []
        for m0i, d in pairs: r += [m0i, nop(0), d]
        return r
    def wl(i): return em(dma_w(i)) + [salu(f"s_add_u32 s{sWO0}, s{sWO0}, 0x40000")]
    o += em(dma_x(0)) + wl(0) + wl(1) + em(dma_x(1)) + wl(2) + wl(3)
    o += [V(f"v_lshrrev_b32 v{C}, 1, v{A}"), V(f"v_xor_b32 v{C}, v{C}, v{B}"),
          V(f"v_lshlrev_b32 v{C}, 4, v{C}"), V(f"v_lshl_add_u32 v{C}, v{A}, 7, v{C}"),
          salu(f"s_add_u32 s{sT0}, s{sMX}, {XBASE}"), V(f"v_add_u32 v{VXR}, s{sT0}, v{C}"), V(f"v_xor_b32 v{VXR+1}, 64, v{VXR}"),
          V(f"v_and_b32 v{C}, 1, v{B}"), V(f"v_lshlrev_b32 v{C}, 2, v{C}"), V(f"v_lshrrev_b32 v{D}, 2, v{A}"), V(f"v_add_u32 v{C}, v{C}, v{D}"),
          V(f"v_lshlrev_b32 v{VWR}, 10, v{C}"),
          V(f"v_lshrrev_b32 v{D}, 1, v{B}"), V(f"v_lshl_add_u32 v{VWR}, v{D}, 9, v{VWR}"),
          V(f"v_lshlrev_b32 v{C}, 1, v{C}"), V(f"v_and_b32 v{D}, 3, v{A}"), V(f"v_xor_b32 v{C}, v{C}, v{D}"),
          V(f"v_lshl_add_u32 v{VWR}, v{C}, 4, v{VWR}"),
          V(f"v_lshrrev_b32 v{D}, 1, v{D}"), V(f"v_lshl_add_u32 v{VWR}, v{D}, 3, v{VWR}")]
    for T in range(2):
        for u in range(4):
            if T or u: o.append(V(f"v_xor_b32 v{VWR + T * 4 + u}, {u * 64 + T * 8}, v{VWR}"))
    o += [V(f"v_lshrrev_b32 v{C}, 2, v{A}"), V(f"v_mul_u32_u24 v{VKR}, {KP}, v{C}"),
          V(f"v_and_b32 v{C}, 3, v{A}"), V(f"v_lshl_add_u32 v{VKR}, v{C}, 8, v{VKR}"),
          V(f"v_xor_b32 v{C}, v{C}, v{B}"), V(f"v_lshl_add_u32 v{VKR}, v{C}, 4, v{VKR}"), V(f"v_add_u32 v{VKR}, {KBIAS}, v{VKR}"),
          V(f"v_and_b32 v{C}, 1, v{B}"), V(f"v_lshlrev_b32 v{C}, 2, v{C}"), V(f"v_lshrrev_b32 v{D}, 2, v{A}"), V(f"v_add_u32 v{C}, v{C}, v{D}"),
          V(f"v_mul_u32_u24 v{C}, {VP}, v{C}"),
          V(f"v_lshrrev_b32 v{D}, 1, v{B}"), V(f"v_lshl_add_u32 v{VVR}, v{D}, 8, v{C}"),
          V(f"v_and_b32 v{D}, 3, v{A}"), V(f"v_lshl_add_u32 v{VVR}, v{D}, 3, v{VVR}"),
          V(f"v_and_b32 v{C}, 3, v{A}"), V(f"v_xor_b32 v{C}, v{C}, v{B}"), V(f"v_and_b32 v{D}, 12, v{A}"), V(f"v_or_b32 v{C}, v{C}, v{D}"),
          V(f"v_lshlrev_b32 v{C}, 4, v{C}"), V(f"v_lshl_add_u32 v{C}, v{B}, 8, v{C}"),
          salu(f"s_lshl_b32 s{sT0}, s{sW}, 11"), V(f"v_add_u32 v{VDK}, s{sT0}, v{C}"),
          V(f"v_lshlrev_b32 v{C}, 4, v{A}"), V(f"v_lshl_add_u32 v{C}, v{B}, 11, v{C}"),
          salu(f"s_lshl_b32 s{sT0}, s{sW}, 9"), V(f"v_add_u32 v{VDV}, s{sT0}, v{C}"),
          wait(vm=[("X", 0)]), *rd_x(0), wait(vm=[("W", 0)], lgkm="all"), barrier()]
    return o

def a_epilogue(item):
    o = [nop(7), nop(1)]
    o += [salu(f"s_mul_i32 s{sT0}, s{sB}, 12"), salu(f"s_mul_i32 s{sT1}, s{sW}, 3"), salu(f"s_add_u32 s{sT0}, s{sT0}, s{sT1}"),
          salu(f"s_mul_i32 s{sT0}, s{sT0}, {RBS}"), salu(f"s_lshl_b32 s{sT1}, s{sH}, 12"), salu(f"s_add_u32 s{sT0}, s{sT0}, s{sT1}")]
    for j in range(3):
        l = L0 + j
        o += [V(f"v_mov_b32 v{TMP}, v{l}"), nop(1), V(f"v_permlane16_swap_b32 v{l}, v{TMP}"), nop(1), V(f"v_add_f32 v{l}, v{l}, v{TMP}"),
              V(f"v_mov_b32 v{TMP}, v{l}"), nop(1), V(f"v_permlane32_swap_b32 v{l}, v{TMP}"), nop(1), V(f"v_add_f32 v{l}, v{l}, v{TMP}"),
              V(f"v_rcp_f32 v{l}, v{l}"), nop(0)]
        for u in range(4):
            a = acc(j, 2 * u)
            for r in range(8): o.append(V(f"v_mul_f32 v{a+r}, v{a+r}, v{l}"))
            q = SP + (j * 4 + u) * 4
            for r in range(4): o.append(V(f"v_cvt_pk_bf16_f32 v{q+r}, v{a+2*r}, v{a+2*r+1}"))
            o.append(buf_store(q, 4, TMP3, SO, f"s{sT0}", u * 1024, tag="st", flags=[E("OSF0", " sc1 nt"), " sc1"][item]))
        if j < 2: o.append(salu(f"s_add_u32 s{sT0}, s{sT0}, {RBS}"))
    return o

def stamp(i):
    if not STAMP: return []
    return [raw(f"s_memrealtime s[{STB+4*i}:{STB+1+4*i}]"), raw(f"s_memtime s[{STB+2+4*i}:{STB+3+4*i}]")]
def dbg_out():
    o = []
    if TICK:
        o += [salu(f"s_mov_b32 s{SO+2}, 0x20000000"), salu(f"s_lshl_b32 s39, s2, 2"), salu(f"s_add_u32 s39, s39, s24"), salu("s_lshl_b32 s39, s39, 9"),
              salu(f"s_add_u32 s39, s39, {66 << 20}"), V(f"v_lshlrev_b32 v2, 2, v{VLANE}"), nop(4),
              buf_store(0, 1, 2, SO, "s39", 0, tag="dbg"), buf_store(15, 1, 2, SO, "s39", 256, tag="dbg"), nop(1)]
    if STAMP:
        o += [raw("s_waitcnt lgkmcnt(0)"), salu(f"s_mov_b32 s{SO+2}, 0x20000000"),
              salu(f"s_lshl_b32 s39, s2, 2"), salu(f"s_add_u32 s39, s39, s24"), salu("s_lshl_b32 s39, s39, 6"), salu(f"s_add_u32 s39, s39, {64 << 20}"),
              V(f"v_mov_b32 v2, 0"), salu("s_mov_b64 exec, 1")]
        for i in range(7):
            o += [V(f"v_mov_b32 v4, s{STB+4*i}"), V(f"v_mov_b32 v5, s{STB+2+4*i}"), buf_store(4, 2, 2, SO, "s39", 8 * i, tag="dbg"), nop(1)]
    return o

SLW = 8 * VP
ODW, OX0, OWR = 16, 20, 23
def o_rdw(tile, a, n, tagp):
    u, T = a >> 1, a & 1
    base = (tile % 4) * SLW + u * 64
    return [ds_read("ds_read_b64_tr_b16", fr(n), 2, OWR + T, base, tag=(tagp, n)),
            ds_read("ds_read_b64_tr_b16", fr(n) + 2, 2, OWR + T, base + 512, tag=(tagp, n))]
def o_dmaw(i):
    s = (i % 4) * SLW
    return [(salu(f"s_add_u32 m0, s{sM0}, {s + e * VP}"), buf_dma(ODW + e, SV if E("NOW") else SWO, f"s{sWO0}", 0, tag=("OW", i), flags=E("OWF", ""))) for e in range(4)]
def o_xl(ps, half, j):
    return buf_load(xb(ps % 4, half, j), 4, OX0 + j, SV if E("NOX") else SO, f"s{sXO}", half * 1024, tag=("OX", ps, half), flags=OLF)
def o_step(ps):
    st = Step(f"O{ps}")
    st.pos = POSP
    buf = ps % 4
    for half in range(2):
        t = 2 * ps + half; o = 24 * half
        for a in range(8):
            for j in range(3): st.mf[o + a * 3 + j] = mfma(acc(j, a), fr(half * 8 + a), xb(buf, half, j))
        st.before(o, wait(vm=[("OX", ps, half)]))
        if half == 1: st.before(o + 12, *tick_pre(), wait(vm=[("OW", t + 1)], lgkm="all"), barrier(), *tick_post())
        else: st.before(o + 12, wait(vm=[("OW", t + 1)], lgkm="all"), barrier())
        place_dma(st, o_dmaw(t + 4), [o + 13, o + 15, o + 17, o + 19])
        st.gap(o + 22, salu(f"s_add_u32 s{sWO0}, s{sWO0}, {0x210000 if (t + 4) % 32 == 31 else 0x10000}"))
    st.reads = lambda n: o_rdw(2 * ps + (n >> 3), n & 7, n, st.name)
    if (ps & 15) + 3 < 16:
        for k, g in enumerate([1, 4, 7, 25, 28, 31]): st.gap(g, o_xl(ps + 3, k // 3, k % 3))
        st.gap(33, salu(f"s_add_u32 s{sXO}, s{sXO}, 2048"))
    return st
def b_setup():
    A, B, C, D = 2, 3, 4, 5
    o = q_soff(sT0) + [V(f"v_lshlrev_b32 v{TMP3}, 4, v{VLANE}")]
    for i in range(12):
        o.append(buf_store(QR + 4 * i, 4, TMP3, SO, f"s{sT0}", (i & 3) * 1024, tag="qst", flags=E("QSF", " sc1")))
        if i % 4 == 3 and i < 11: o.append(salu(f"s_add_u32 s{sT0}, s{sT0}, 4096"))
    o += srd(SWO, PWO, PWO + 1, 4096 * 1024 * 2) + srd(SOUT, POUT, POUT + 1, 3072 * 1024 * 2)
    o += [salu(f"s_and_b32 s{sT0}, s{sXC}, 3"), salu(f"s_lshl_b32 s{sT0}, s{sT0}, 3"), salu(f"s_and_b32 s{sMG}, s{sV}, 7"), salu(f"s_add_u32 s{sMG}, s{sMG}, s{sT0}"),
          salu(f"s_lshr_b32 s{sT0}, s{sXC}, 2"), salu(f"s_lshl_b32 s{sT0}, s{sT0}, 2"), salu(f"s_lshr_b32 s{sNB}, s{sV}, 3"), salu(f"s_add_u32 s{sNB}, s{sNB}, s{sT0}"),
          salu(f"s_and_b32 s{sMH}, s{sW}, 1"), salu(f"s_lshr_b32 s{sKH}, s{sW}, 1"), salu(f"s_mov_b32 s{sPH}, 0"),
          salu(f"s_mul_i32 s{sM0}, s{sKH}, {4*SLW}"), salu(f"s_mul_i32 s{sT0}, s{sMH}, {4*VP}"), salu(f"s_add_u32 s{sM0}, s{sM0}, s{sT0}"),
          salu(f"s_lshl_b32 s{sWO0}, s{sKH}, 21"),
          salu(f"s_mul_i32 s{sXO}, s{sMG}, 6"), salu(f"s_mul_i32 s{sT0}, s{sMH}, 3"), salu(f"s_add_u32 s{sXO}, s{sXO}, s{sT0}"),
          salu(f"s_mul_i32 s{sXO}, s{sXO}, {RBS}"), salu(f"s_lshl_b32 s{sT0}, s{sKH}, 15"), salu(f"s_add_u32 s{sXO}, s{sXO}, s{sT0}"), *([salu(f"s_add_u32 s{sXO}, s{sXO}, {OXOFF}")] if OXOFF else []),
          V(f"v_and_b32 v{A}, 15, v{VLANE}"), V(f"v_lshrrev_b32 v{B}, 4, v{VLANE}"),
          V(f"v_lshlrev_b32 v{OX0}, 4, v{VLANE}"), V(f"v_add_u32 v{OX0+1}, {RBS}, v{OX0}"), V(f"v_add_u32 v{OX0+2}, {2*RBS}, v{OX0}"),
          V(f"v_lshlrev_b32 v{C}, 14, v{B}"), V(f"v_lshl_add_u32 v{C}, v{A}, 4, v{C}"),
          salu(f"s_lshl_b32 s{sT0}, s{sMH}, 13"), salu(f"s_lshl_b32 s{sT1}, s{sNB}, 8"), salu(f"s_add_u32 s{sT0}, s{sT0}, s{sT1}"),
          V(f"v_add_u32 v{ODW}, s{sT0}, v{C}"), V(f"v_add_u32 v{ODW+1}, 0x800, v{ODW}"),
          V(f"v_add_u32 v{ODW+2}, 0x1000, v{ODW}"), V(f"v_add_u32 v{ODW+3}, 0x1800, v{ODW}"),
          V(f"v_and_b32 v{C}, 1, v{B}"), V(f"v_lshlrev_b32 v{C}, 2, v{C}"), V(f"v_lshrrev_b32 v{D}, 2, v{A}"), V(f"v_add_u32 v{C}, v{C}, v{D}"),
          V(f"v_mul_u32_u24 v{C}, {VP}, v{C}"),
          V(f"v_lshrrev_b32 v{D}, 1, v{B}"), V(f"v_lshl_add_u32 v{C}, v{D}, 8, v{C}"),
          V(f"v_and_b32 v{D}, 3, v{A}"), V(f"v_lshl_add_u32 v{C}, v{D}, 4, v{C}"),
          salu(f"s_mul_i32 s{sT0}, s{sKH}, {4*SLW}"), V(f"v_add_u32 v{C}, s{sT0}, v{C}"),
          V(f"v_lshrrev_b32 v{D}, 1, v{D}"), V(f"v_lshl_add_u32 v{OWR}, v{D}, 3, v{C}"),
          V(f"v_xor_b32 v{D}, 1, v{D}"), V(f"v_lshl_add_u32 v{OWR+1}, v{D}, 3, v{C}")]
    o += [V(f"v_mov_b32 v{ACC+i}, 0") for i in range(96)]
    o += [wait(vm="all", lgkm="all"), barrier(),
          raw(f"s_cmp_lg_u32 s{sW}, 0", "salu"), raw("s_cbranch_scc1 L_bq", "branch"),
          *qflag_off(sT0), V(f"v_mov_b32 v{VFA}, 0"), V(f"v_mov_b32 v{VFL}, s{sTOK}"), salu("s_mov_b64 exec, 1"), nop(0)]
    if FORCE_SLOW < 2: o += [raw(f"buffer_store_dword v{VFL}, v{VFA}, s[{SO}:{SO+3}], s{sT0} offen sc1")]
    o += [salu("s_mov_b64 exec, -1"), label("L_bq")] + stamp(2)
    for i in range(4):
        for m0i, d in o_dmaw(i): o += [m0i, nop(0), d]
        o.append(salu(f"s_add_u32 s{sWO0}, s{sWO0}, 0x10000"))
    o += [wait(vm=[("OW", 0)]), barrier()]
    return o
def b_poll(ph):
    o = []
    if WT:
        o += [salu(f"s_lshl_b32 s{sT0}, s{sPH}, 4"), salu(f"s_lshl_b32 s{sT1}, s{sKH}, 3"), salu(f"s_add_u32 s{sT0}, s{sT0}, s{sT1}"),
              salu(f"s_and_b32 s{sT1}, s{sV}, 7"), salu(f"s_add_u32 s{sT0}, s{sT0}, s{sT1}"), salu(f"s_lshl_b32 s{sT0}, s{sT0}, 1"),
              salu(f"s_add_u32 s{sT0}, s{sT0}, s{sMH}"), salu(f"s_lshl_b32 s{sT0}, s{sT0}, 17"),
              salu(f"s_lshl_b32 s{sT1}, s{sNB}, 8"), salu(f"s_add_u32 s{sT0}, s{sT0}, s{sT1}"), V(f"v_lshlrev_b32 v{TMP3}, 11, v{VLANE}"),
              raw(buf_load(TMP, 1, TMP3, SWO, f"s{sT0}", 0, flags=WTF).text), raw(buf_load(TMP2, 1, TMP3, SWO, f"s{sT0}", 128, flags=WTF).text)]
        if WT == 1: o = [raw(f"s_cmp_eq_u32 s{sPH}, 0", "salu"), raw("s_cbranch_scc1 L_nowt", "branch")] + o + [label("L_nowt")]
    o += [raw(f"s_cmp_lg_u32 s{sW}, 0", "salu"), raw("s_cbranch_scc1 L_bpd", "branch"),
         salu(f"s_lshr_b32 s{sT0}, s{sMG}, 1"), salu(f"s_lshl_b32 s{sT1}, s{sPH}, 4"), salu(f"s_add_u32 s{sT0}, s{sT0}, s{sT1}"), salu(f"s_lshl_b32 s{sT0}, s{sT0}, 8"),
         salu(f"s_add_u32 s{sT0}, s{sT0}, {FLGO}"),
         V(f"v_and_b32 v{VFA}, 15, v{VLANE}"), V(f"v_lshlrev_b32 v{VFA}, 2, v{VFA}"), salu(f"s_mov_b32 s{sCNT}, 0"), label("L_bpl"),
         raw(f"buffer_load_dword v{VFL}, v{VFA}, s[{SO}:{SO+3}], s{sT0} offen sc1"), raw("s_waitcnt vmcnt(0)"),
         raw(f"v_cmp_ne_u32 vcc, s{sTOK}, v{VFL}"), nop(3), raw("s_cbranch_vccz L_bpd", "branch"),
         salu(f"s_add_u32 s{sCNT}, s{sCNT}, 1"), raw(f"s_cmp_ge_u32 s{sCNT}, {1 << 17}"), raw("s_cbranch_scc1 L_bpd", "branch"),
         *[raw(f"s_sleep {PSLEEP}")] * PSN, raw("s_branch L_bpl", "branch"),
         label("L_bpd"), barrier()]
    post = []
    for k in range(3):
        post += [o_xl(16 * ph + k, h, j) for h in range(2) for j in range(3)] + [salu(f"s_add_u32 s{sXO}, s{sXO}, 2048")]
    return o, post
def b_epi(kh):
    keep = [2 * kh, 2 * kh + 1]; send = [2 - 2 * kh, 3 - 2 * kh]
    o = []; idx = 0
    for j in range(3):
        for u in send:
            for T in range(2):
                o.append(ds_write("ds_write_b128", TMP, acc(j, 2 * u + T), 4, idx * 1024, tag="w")); idx += 1
    o += [wait(lgkm="all"), barrier()]
    idx = 0; RB = SP
    for j in range(3):
        for u in keep:
            for T in range(2):
                o.append(ds_read("ds_read_b128", RB + idx * 4, 4, TMP2, idx * 1024, tag=("r", idx))); idx += 1
    idx = 0; QB = QR
    for j in range(3):
        for ui, u in enumerate(keep):
            o.append(wait(lgkm=[("r", idx), ("r", idx + 1)]))
            a = acc(j, 2 * u)
            for r in range(8): o.append(V(f"v_add_f32 v{a+r}, v{a+r}, v{RB+idx*4+r}"))
            q = QB + (j * 2 + ui) * 4
            for r in range(4): o.append(V(f"v_cvt_pk_bf16_f32 v{q+r}, v{a+2*r}, v{a+2*r+1}"))
            idx += 2
    o += [salu("s_mov_b32 exec_lo, 0"), nop(0)]
    for k in range(6):
        q = QB + k * 4
        o += [V(f"v_swap_b32 v{q}, v{q+2}"), V(f"v_swap_b32 v{q+1}, v{q+3}")]
    o += [salu("s_mov_b32 exec_lo, -1"), nop(1)]
    for j in range(3):
        for ui, u in enumerate(keep):
            o.append(buf_store(QB + (j * 2 + ui) * 4, 4, TMP3, SOUT, f"s{sT0}", u * 64, tag="st", flags=OUTF))
        if j < 2: o.append(salu(f"s_add_u32 s{sT0}, s{sT0}, 0x8000"))
    return o

def flat(l): return [x for s in l for x in s]
def check(full, what):
    errs, _, _ = resolve_waits(full)
    errs += check_hazards(full)
    if errs:
        print("\n".join(errs[:40]), file=sys.stderr); raise SystemExit(f"{what}: generation errors: {len(errs)}")

def gen():
    hd = head(); pro = prologue()
    steps = [p_step(ps) for ps in range(16)]
    for item in range(2): steps += [init_step(item)] + [a_step(kt, item) for kt in range(32)]
    steps.append(init_step(1)); steps[-1].name = "I2"
    dummy = steps[-1]; dummy.reads = lambda n: rd_k(64, n, n, "I2") if n < 8 else None
    lin, _ = link(steps); lin = lin[:-1]
    qfin = q_finalize() + [wait(vm=["tok"]), label("L_tok"), V(f"v_readfirstlane_b32 s{sTOK}, v{VFL}"), nop(3), raw(f"s_cmp_eq_u32 s{sTOK}, 0", "salu"),
                           raw("s_cbranch_scc1 L_tokslow", "branch")]
    epi = [a_epilogue(0), a_epilogue(1)]
    mid = [salu(f"s_add_u32 s{sH}, s{sH}, 16"), salu(f"s_mov_b32 s{sITEM}, 1")]
    P = flat(lin[:16])
    I0, A0, I1, A1 = lin[16], lin[17:49], lin[49], lin[50:82]
    full = hd + pro + P + qfin + I0 + flat(A0) + epi[0] + mid + I1 + flat(A1) + epi[1]
    check(full, "role A")
    osteps = [o_step(ps) for ps in range(33)]
    olin, early = link(osteps, early_first=False); olin = olin[:-1]
    bs = b_setup()
    polls = [b_poll(0), b_poll(1)]
    phsw = [salu(f"s_add_u32 s{sXO}, s{sXO}, 0x8000")]
    bmid = [wait(vm="all", lgkm="all"), nop(7), nop(1), barrier(),
            salu(f"s_mul_i32 s{sT0}, s{sW}, 12288"), V(f"v_lshlrev_b32 v{TMP2}, 4, v{VLANE}"), V(f"v_add_u32 v{TMP}, s{sT0}, v{TMP2}"),
            salu(f"s_xor_b32 s{sT1}, s{sW}, 2"), salu(f"s_mul_i32 s{sT1}, s{sT1}, 12288"), V(f"v_add_u32 v{TMP2}, s{sT1}, v{TMP2}"),
            V(f"v_and_b32 v{TMP3}, 15, v{VLANE}"), V(f"v_lshlrev_b32 v{TMP3}, 11, v{TMP3}"), V(f"v_lshrrev_b32 v2, 4, v{VLANE}"),
            V(f"v_lshl_add_u32 v{TMP3}, v2, 4, v{TMP3}"),
            salu(f"s_mul_i32 s{sT0}, s{sMG}, 96"), salu(f"s_mul_i32 s{sT1}, s{sMH}, 48"), salu(f"s_add_u32 s{sT0}, s{sT0}, s{sT1}"),
            salu(f"s_lshl_b32 s{sT0}, s{sT0}, 11"), salu(f"s_lshl_b32 s{sT1}, s{sNB}, 8"), salu(f"s_add_u32 s{sT0}, s{sT0}, s{sT1}"),
            salu(f"s_cmp_lg_u32 s{sKH}, 0"), raw("s_cbranch_scc1 L_bepi1", "branch")]
    be = [b_epi(0), b_epi(1)]
    import copy
    for e in be:
        pre = [copy.copy(x) for x in hd + pro + P + qfin]
        fullb = pre + bs + early + polls[0][0] + polls[0][1] + flat(olin[:16]) + phsw + polls[1][0] + polls[1][1] + flat(olin[16:]) + bmid + e
        check(fullb, "role B")
    subs = []
    for s in range(8): subs += slow_stub(s)
    for par in range(2):
        rb = rebase(par)
        errs = check_hazards(rb); assert not errs, errs
        subs += rb
    out = hd[:2] + stamp(0) + hd[2:] + pro + P + stamp(1) + qfin
    out += [raw(f"s_cmp_eq_u32 s{sITEM}, 2", "salu"), raw("s_cbranch_scc1 L_B", "branch")]
    out += I0 + stamp(2)
    out += [label("L_item"), salu(f"s_mov_b32 s{sCNT}, 7"), label("L_aloop")]
    out += fold([flat(A[4 * i:4 * i + 4]) for A in (A0, A1) for i in range(7)])
    out += [salu(f"s_sub_u32 s{sCNT}, s{sCNT}, 1"), salu(f"s_cmp_lg_u32 s{sCNT}, 0"), raw("s_cbranch_scc1 L_aloop", "branch")]
    out += fold([flat(A0[28:]), flat(A1[28:])])
    out += [raw(f"s_cmp_lg_u32 s{sITEM}, 0", "salu"), raw("s_cbranch_scc1 L_fin", "branch")] + stamp(3) + epi[0] + stamp(4) + mid
    out += [raw(f"s_cmp_eq_u32 s{sQOK}, 0", "salu"), raw("s_cbranch_scc1 L_qslow", "branch"), label("L_init1")]
    out += I1 + [raw("s_branch L_item", "branch")]
    out += [label("L_pub"), salu(f"s_mov_b32 s{sPUB}, 0")] + publish_cnt("L_pub1", 0) + [raw("s_branch L_pubback", "branch")]
    out += [label("L_fin")] + stamp(5) + epi[1] + [raw("s_waitcnt vmcnt(0)"), barrier()] + publish_cnt("L_finpub", None) + stamp(6) + dbg_out() + [raw("s_endpgm")]
    out += [label("L_qslow"), salu(f"s_mov_b32 s{sCNT}, 0"),
            *qflag_off(sT1), V(f"v_mov_b32 v{VFA}, 0"), label("L_qpl"),
            raw(f"buffer_load_dword v{VFL}, v{VFA}, s[{SO}:{SO+3}], s{sT1} offen sc1"), raw("s_waitcnt vmcnt(0)"),
            raw(f"v_readfirstlane_b32 s{sT0}, v{VFL}"), nop(3),
            raw(f"s_cmp_eq_u32 s{sT0}, s{sTOK}", "salu"), raw("s_cbranch_scc1 L_qgot", "branch"),
            salu(f"s_add_u32 s{sCNT}, s{sCNT}, 1"), raw(f"s_cmp_ge_u32 s{sCNT}, {QLIMIT}", "salu"), raw("s_cbranch_scc1 L_qto", "branch"),
            raw(f"s_sleep {PSLEEP}"), raw("s_branch L_qpl", "branch"),
            label("L_qgot")] + q_loads("qs") + [raw("s_waitcnt vmcnt(0)"), raw("s_branch L_init1", "branch"),
            label("L_qto"), V(f"v_mov_b32 v{VFA}, {ABORT}"), V(f"v_mov_b32 v{VFL}, 1"), raw(f"ds_write_b32 v{VFA}, v{VFL}"), raw("s_branch L_i1bar", "branch"),
            label("L_restart"), raw("s_waitcnt vmcnt(0) lgkmcnt(0)"), barrier(), *publish_cnt("L_pub2", 0), salu(f"s_mov_b32 s{sCLS}, 1"), raw("s_branch L_start", "branch")]
    out += [label("L_tokslow"), raw("s_sleep 8"), raw(f"buffer_load_dword v{VFL}, v{VFA}, s[{SDBG}:{SDBG+3}], 0 offen sc1"), raw("s_waitcnt vmcnt(0)"),
            raw("s_branch L_tok", "branch")]
    out += [label("L_B")] + bs + early + [label("L_phase")]
    out += fold([polls[0][0], polls[1][0]])
    if STAMP:
        out += [raw(f"s_cmp_lg_u32 s{sPH}, 0", "salu"), raw("s_cbranch_scc1 L_sb5", "branch")] + stamp(3) + [label("L_sb5")] + stamp(5)
    out += fold([polls[0][1], polls[1][1]])
    out += [salu(f"s_mov_b32 s{sCNT}, 3"), label("L_oloop")]
    out += fold([flat(olin[16 * ph + 4 * i: 16 * ph + 4 * i + 4]) for ph in range(2) for i in range(3)])
    out += [salu(f"s_sub_u32 s{sCNT}, s{sCNT}, 1"), salu(f"s_cmp_lg_u32 s{sCNT}, 0"), raw("s_cbranch_scc1 L_oloop", "branch")]
    out += fold([flat(olin[12:16]), flat(olin[28:32])])
    out += [raw(f"s_cmp_lg_u32 s{sPH}, 0", "salu"), raw("s_cbranch_scc1 L_bfin", "branch")] + stamp(4) + phsw
    out += [salu(f"s_mov_b32 s{sPH}, 1"), raw("s_branch L_phase", "branch"), label("L_bfin")]
    fin = stamp(6) + dbg_out() + [raw("s_endpgm")]
    out += bmid + be[0] + fin + [label("L_bepi1")] + be[1] + fin
    out += [label("L_end"), raw("s_endpgm")]
    out += subs
    return out

HDR = open("standalone__mha_block_cached__near_ridge.s.ref").read().split("; Override")[0]
def main(path):
    name = "standalone__mha_block_cached__near_ridge_kernel"
    s = HDR + f"; @launch kernel={name} grid=(512,1,1) block=(256,1,1) lds={LDS_BYTES}\n"
    s += f"; RBS={RBS}\n"
    s += '.amdgcn_target "amdgcn-amd-amdhsa--gfx950"\n.text\n'
    s += f".globl {name}\n.p2align 8\n.type {name},@function\n{name}:\n{emit(gen())}\n"
    s += f""".section .rodata,"a"
.p2align 6
.amdhsa_kernel {name}
  .amdhsa_next_free_vgpr 256
  .amdhsa_next_free_sgpr 102
  .amdhsa_accum_offset 256
  .amdhsa_group_segment_fixed_size 0
  .amdhsa_kernarg_size 64
  .amdhsa_user_sgpr_count 2
  .amdhsa_user_sgpr_kernarg_segment_ptr 1
  .amdhsa_system_sgpr_workgroup_id_x 1
.end_amdhsa_kernel
"""
    open(path, "w").write(s)
if __name__ == "__main__":
    STAMP = "--stamp" in sys.argv
    main([a for a in sys.argv[1:] if not a.startswith("--")][0])
```

```python
import sys, math, struct, os
from asmlib import *

def f32(x): return struct.unpack("<I", struct.pack("<f", x))[0]
V = valu
SLOT = 8704
KP, VP = 1088, 1056
L0, T0, TMP, TMP2 = 1, 4, 7, 8
VKR, VVR, VDK, VDV = 9, 10, 11, 12
VLANE = 13
TMP3, TMP4 = 14, 15
NM = 16
VDW0, VDW1, VXD, VWR, VXR = 16, 17, 18, 20, 60
FR = 28
VFA, VFL = 62, 63
SP = 64
QR = 112
ACC = 160
def acc(j, dt): return ACC + (j * 8 + dt) * 4
def qf(j, u): return QR + (j * 4 + u) * 4
def sreg(par, j, t): return SP + par * 24 + j * 8 + t * 4
def negm(j): return NM + 4 * j
def fr(n): return FR + 4 * (n % 8)
def xb(buf, half, j): return SP + buf * 24 + (half * 3 + j) * 4
def xf(st, half, j): return SP + (st % 2) * 24 + (half * 3 + j) * 4
SX, SWQ, SK, SV, SO = 4, 8, 12, 16, 20
SDBG = SWQ
SWO, SOUT = SX, SK
sW, sB, sH = 24, 25, 26
sXO, sWO0, sITEM, sKO, sVO, sCNT, sMK, sMV, sTH, sC = 27, 28, 29, 30, 31, 32, 33, 34, 35, 36
sQOK = sWO0
sPUB = sWO0
sT0, sT1, sU = 37, 38, 39
sRET = 40
sKS0, sKS1 = 44, 45
sXC, sV = 46, 47
PX, PK, PV, PWQ, PWO, POUT, PDBG, PWS = 48, 50, 52, 54, 56, 58, 60, 62
sX0 = 64
sMX, sMW, sTK, sR, sCLS = 67, 68, 69, 70, 71
STB = 72
sMG, sNB, sMH, sKH, sM0, sPH = 44, 45, 33, 34, 67, 29

POS = {0: -12, 1: -11, 2: -10, 3: -9, 4: -8, 5: -6, 6: -3, 7: 3}
for n in range(8, 16): POS[n] = 3 * n - 18
POSP = dict(POS)
for n in range(8, 16): POSP[n] = 24 + POS[n - 8]
BAR = 36
DMA_GAPS = [37, 40, 43, 46]

class Step:
    def __init__(self, name):
        self.name = name; self.mf = [None] * 48; self.gaps = {}; self.pre = {}; self.reads = None; self.pos = POS
    def gap(self, m, *ins): self.gaps.setdefault(m, []).extend(ins)
    def before(self, m, *ins): self.pre.setdefault(m, []).extend(ins)

WSL = 8192
XBASE = 4 * WSL
XSL = 24576
LDS_BYTES = XBASE + 2 * XSL
ABORT = 9 * SLOT
def w_slot(i): return (i % 4) * WSL
def x_slot(i): return XBASE + (i % 2) * XSL
KS = [4 * SLOT, 6 * SLOT, 8 * SLOT, 1 * SLOT]
VS = [5 * SLOT, 7 * SLOT, 0, 2 * SLOT]
KBIAS = SLOT
def k_slot(i): return KS[i % 4]
def v_slot(i): return VS[i % 4]
QOFF = 32 << 20
FLGQ = QOFF + 256 * 49152
FLGO = FLGQ + 65536
FLGP = FLGO + 32 * 256
FLGA = FLGP + 32768
WS_BYTES = FLGA + 65536
OXOFF = int(os.environ.get("OXOFF", "0"))
if OXOFF: WS_BYTES = 256 << 20
sTOK = 3

E = os.environ.get
TICK = int(E("TICK", "0"))
STAMP = False
KVFLAGS = E("KVF", " nt")
PRA, PRB, PRO, PRB2 = int(E("PRA", "2")), int(E("PRB", "1")), int(E("PRO", "0")), int(E("PRB2", "-1"))
PSLEEP = int(E("PSLEEP", "24"))
PSN = int(E("PSN", "1"))
QLIMIT = int(E("QLIMIT", "64"))
OLF = E("OLF", " sc1")
OUTF = E("OUTF", "")
WT = int(E("WT", "1"))
WTF = E("WTF", "")
QPOS = int(E("QPOS", "27"))
RBS = 0x20000 + int(E("RPAD", "0"))
BW = int(E("BW", "1"))
PFS = int(E("PFS", "12"))
BWLIM = int(E("BWLIM", "16"))
BWS = int(E("BWS", "8"))
SD2 = 96
PRE = int(E("PRE", "-1"))
S2 = int(E("S2", "-1"))
sSIG = 66
AW = int(E("AW", "1"))
AFS = int(E("AFS", "26"))
AWLIM = int(E("AWLIM", "48"))
AWS = int(E("AWS", "8"))
APRE = int(E("APRE", "3"))
FORCE_SLOW = int(E("FORCE_SLOW", "0"))

def rd_w(tile, a, n, tagp):
    u, T = a >> 1, a & 1
    base = w_slot(tile); va = VWR + T * 4 + u
    return [ds_read("ds_read_b64_tr_b16", fr(n), 2, va, base, tag=(tagp, n)),
            ds_read("ds_read_b64_tr_b16", fr(n) + 2, 2, va, base + 256, tag=(tagp, n))]
def rd_k(tile, a, n, tagp):
    t, u = a >> 2, a & 3
    return [ds_read("ds_read_b128", fr(n), 4, VKR, k_slot(tile) - KBIAS + t * 4 * KP + u * 64, tag=(tagp, n))]
def rd_v(tile, dt, n, tagp):
    base = v_slot(tile) + dt * 32
    return [ds_read("ds_read_b64_tr_b16", fr(n), 2, VVR, base, tag=(tagp, n)),
            ds_read("ds_read_b64_tr_b16", fr(n) + 2, 2, VVR, base + 512, tag=(tagp, n))]
def adv_simple(r): return [salu(f"s_add_u32 s{r}, s{r}, 0x2000"), salu(f"s_and_b32 s{r}, s{r}, 0x3ffff")]
def tile_off(dst, src):
    return [salu(f"s_and_b32 s{sT0}, s{src}, 0xc0000"), salu(f"s_add_u32 s{dst}, s{src}, s{sR}"), salu(f"s_lshl_b32 s{sT0}, s{sT0}, 4"),
            salu(f"s_and_b32 s{dst}, s{dst}, 0x3ffff"), salu(f"s_or_b32 s{dst}, s{dst}, s{sT0}")]
def adv_kv(first=False):
    return [salu(f"s_mov_b32 s{sVO}, s{sKO}"),
            salu(f"s_mov_b32 s{sU}, {5*8192}") if first else salu(f"s_add_u32 s{sU}, s{sU}, 0x2000")] + tile_off(sKO, sU)
def tick_pre(): return [raw("s_memtime s[100:101]"), raw("s_memrealtime s[42:43]")] if TICK else []
def tick_post():
    return [raw(f"s_mov_b32 m0, s{sTK}"), nop(0), raw(f"v_writelane_b32 v0, s100, m0"), raw(f"v_writelane_b32 v15, s42, m0"),
            raw(f"s_add_u32 s{sTK}, s{sTK}, 1"), raw(f"s_and_b32 s{sTK}, s{sTK}, 63") if TICK == 1 else raw(f"s_min_u32 s{sTK}, s{sTK}, 63")] if TICK else []
def dma_k(i):
    s = k_slot(i)
    return [(salu(f"s_add_u32 m0, s{sMK}, {s}"), buf_dma(VDK, SK, f"s{sKO}", 0, tag=("K", i), flags=KVFLAGS)),
            (salu(f"s_add_u32 m0, s{sMK}, {s + KP - 1024}"), buf_dma(VDK, SK, f"s{sKO}", 1024, tag=("K", i), flags=KVFLAGS))]
def dma_v(i):
    s = v_slot(i)
    return [(salu(f"s_add_u32 m0, s{sMV}, {s}"), buf_dma(VDV, SV, f"s{sVO}", 0, tag=("V", i), flags=KVFLAGS)),
            (salu(f"s_add_u32 m0, s{sMV}, {s + VP - 256}"), buf_dma(VDV, SV, f"s{sVO}", 256, tag=("V", i), flags=KVFLAGS))]
def dma_w(i):
    s = w_slot(i); so = f"s{sWO0}"
    return [(salu(f"s_add_u32 m0, s{sMW}, {s}"), buf_dma(VDW0, SWQ, so, 0, tag=("W", i))),
            (salu(f"s_add_u32 m0, s{sMW}, {s + 1024}"), buf_dma(VDW1, SWQ, so, 0, tag=("W", i)))]
def dma_x(t):
    s = x_slot(t)
    return [(salu(f"s_add_u32 m0, s{sMX}, {s + e * 1024 - t * 128}"), buf_dma(VXD + (e & 1), SX, f"s{sX0 + (e >> 1)}", t * 128, tag=("X", t))) for e in range(6)]
def rd_x(t):
    return [ds_read("ds_read_b128", xf(t, half, j), 4, VXR + half, x_slot(t) - XBASE + j * 2048, tag=("x", t)) for half in range(2) for j in range(3)]
def place_dma(st, pairs, gaps=None):
    assert len(pairs) <= len(gaps or DMA_GAPS)
    for (m0i, d), g in zip(pairs, gaps or DMA_GAPS):
        st.before(g, m0i)
        if st.mf[g] is None: st.before(g, nop(0))
        st.gap(g, d)
def sm_half(st, g0, par, j, t, first_l):
    a = sreg(par, j, t); p = sreg(par, j, 0) + 2 * t; tj = T0 + j; lj = L0 + j
    for r in range(4): st.gap(g0 + r, V(f"v_exp_f32 v{a+r}, v{a+r}"))
    if t == 0:
        if first_l: st.gap(g0 + 4, V(f"v_add_f32 v{lj}, v{lj}, v{tj}"))
        st.gap(g0 + 4, V(f"v_add_f32 v{tj}, v{a}, v{a+1}"))
    else:
        st.gap(g0 + 4, V(f"v_add_f32 v{tj}, v{tj}, v{a}"), V(f"v_add_f32 v{tj}, v{tj}, v{a+1}"))
    st.gap(g0 + 5, V(f"v_cvt_pk_bf16_f32 v{p}, v{a}, v{a+1}"), V(f"v_add_f32 v{tj}, v{tj}, v{a+2}"))
    st.gap(g0 + 6, V(f"v_add_f32 v{tj}, v{tj}, v{a+3}"), V(f"v_cvt_pk_bf16_f32 v{p+1}, v{a+2}, v{a+3}"))

def link(steps, early_first=True):
    early = []
    for i, st in enumerate(steps):
        for n in range(16):
            if st.reads is None: continue
            r = st.reads(n)
            if r is None: continue
            p = st.pos[n]
            if p < 0:
                if i == 0:
                    if early_first: st.before(0, *r)
                    else: early += r
                else: steps[i - 1].gap(48 + p, *r)
            else: st.gap(p, *r)
    out = []
    for st in steps:
        if st.reads is not None:
            for n in range(0, 16, 2):
                if st.reads(n) is None: continue
                st.pre.setdefault(3 * n, []).append(wait(lgkm=[(st.name, n), (st.name, n + 1)]))
        out.append(interleave(st.mf, st.gaps, st.pre))
    return out, early

def p_step(ps):
    st = Step(f"P{ps}")
    st.pos = POSP
    if ps + 1 <= 15:
        st.gap(3, wait(vm=[("X", ps + 1)]))
        for j, r in enumerate(rd_x(ps + 1)): st.gap(4 + j, r)
    for half in range(2):
        t = 2 * ps + half
        o = 24 * half
        for a in range(8):
            for j in range(3):
                st.mf[o + a * 3 + j] = mfma(acc(j, a), fr(half * 8 + a), xf(ps, half, j), 'z' if t == 0 else None)
        need = [("W", t + 1)] if t < 31 else [("K", 0)]
        if half == 1 and TICK != 3: st.before(o + 12, *tick_pre(), wait(vm=need, lgkm="all"), barrier(), *tick_post())
        else: st.before(o + 12, wait(vm=need, lgkm="all"), barrier())
        d = []; post = []
        if t + 4 <= 31:
            d += dma_w(t + 4); post.append(salu(f"s_add_u32 s{sWO0}, s{sWO0}, 0x40000"))
        kv = {26: "K0", 27: "V0", 28: "K1 V1", 29: "K2 V2", 30: "K3", 31: "V3"}.get(t, "")
        for it in kv.split():
            if it[0] == "K": d += dma_k(int(it[1])); post += adv_simple(sKO)
            else: d += dma_v(int(it[1])); post += adv_simple(sVO)
        place_dma(st, d, [o + 13, o + 15, o + 17, o + 19])
        st.gap(o + 22, *post)
    if ps + 3 <= 15: place_dma(st, dma_x(ps + 3), [18, 21, 24, 27, 30, 33])
    if ps == 5:
        st.gap(1, V(f"v_mov_b32 v{VFA}, 0"))
        st.gap(11, buf_load(VFL, 1, VFA, SD2, 0, 0, tag="tok", flags=" sc1"))
    if ps == PFS and BW:
        st.gap(1, wait(vm=["tok"]), salu(f"s_or_b32 s{sT0}, s{sCLS}, s{sW}"), raw(f"s_cmp_lg_u32 s{sT0}, 0", "salu"), raw("s_cbranch_scc1 L_nopf", "branch"),
               salu(f"s_and_b32 s{sT0}, s2, 255"), salu(f"s_lshl_b32 s{sT0}, s{sT0}, 7"), salu(f"s_add_u32 s{sT0}, s{sT0}, {FLGP}"), salu("s_mov_b64 exec, 1"), nop(0),
               raw(f"buffer_store_dword v{VFL}, v{VFA}, s[{SO}:{SO+3}], s{sT0} offen sc1"), salu("s_mov_b64 exec, -1"), label("L_nopf"))
    st.reads = lambda n: rd_w(2 * ps + (n >> 3), n & 7, n, st.name)
    if ps == 0: place_dma(st, dma_x(2), [0, 1, 2, 9, 10, 11])
    return st

def qk_mfmas(st, kt1, czero=False):
    par = kt1 & 1
    for t in range(2):
        for u in range(4):
            for j in range(3):
                c = None
                if u == 0: c = 'z' if czero else negm(j)
                st.mf[t * 12 + u * 3 + j] = mfma(sreg(par, j, t), fr(t * 4 + u), qf(j, u), c)
def rowmax_code(par, j, dst, tmp):
    a = sreg(par, j, 0)
    return [V(f"v_max3_f32 v{dst}, v{a}, v{a+1}, v{a+2}"), V(f"v_max3_f32 v{dst}, v{dst}, v{a+3}, v{a+4}"),
            V(f"v_max3_f32 v{dst}, v{dst}, v{a+5}, v{a+6}"), V(f"v_max_f32 v{dst}, v{dst}, v{a+7}"),
            V(f"v_mov_b32 v{tmp}, v{dst}"), nop(1), V(f"v_permlane16_swap_b32 v{dst}, v{tmp}"), nop(1),
            V(f"v_max_f32 v{dst}, v{dst}, v{tmp}"), V(f"v_mov_b32 v{tmp}, v{dst}"), nop(1),
            V(f"v_permlane32_swap_b32 v{dst}, v{tmp}"), nop(1), V(f"v_max_f32 v{dst}, v{dst}, v{tmp}")]
def q_finalize():
    out = [nop(7), nop(1)]
    for j in range(3):
        for dt in range(8):
            for r in range(4): out.append(V(f"v_mul_f32 v{acc(j,dt)+r}, s{sC}, v{acc(j,dt)+r}"))
    for j in range(3):
        for u in range(4):
            q = qf(j, u); a0 = acc(j, 2 * u); a1 = acc(j, 2 * u + 1)
            out += [V(f"v_cvt_pk_bf16_f32 v{q}, v{a0}, v{a0+1}"), V(f"v_cvt_pk_bf16_f32 v{q+1}, v{a0+2}, v{a0+3}"),
                    V(f"v_cvt_pk_bf16_f32 v{q+2}, v{a1}, v{a1+1}"), V(f"v_cvt_pk_bf16_f32 v{q+3}, v{a1+2}, v{a1+3}")]
    out += [salu("s_mov_b32 exec_lo, 0"), nop(0)]
    for j in range(3):
        for u in range(4):
            q = qf(j, u)
            out += [V(f"v_swap_b32 v{q}, v{q+2}"), V(f"v_swap_b32 v{q+1}, v{q+3}")]
    out += [salu("s_mov_b32 exec_lo, -1"), nop(1)]
    return out
def srd(s, lo, hi, nbytes):
    return [salu(f"s_mov_b32 s{s}, s{lo}"), salu(f"s_and_b32 s{s+1}, s{hi}, 0xffff"),
            salu(f"s_mov_b32 s{s+2}, {nbytes}"), salu(f"s_mov_b32 s{s+3}, 0x00020000")]
def q_soff(dst):
    return [salu(f"s_and_b32 s{dst}, s2, 255"), salu(f"s_lshl_b32 s{dst}, s{dst}, 2"), salu(f"s_add_u32 s{dst}, s{dst}, s{sW}"),
            salu(f"s_mul_i32 s{dst}, s{dst}, 12288"), salu(f"s_add_u32 s{dst}, s{dst}, {QOFF}")]
def q_loads(tag):
    o = []
    for i in range(12):
        so = [sXO, sKS0, sKS1][i >> 2]
        o.append(buf_load(QR + 4 * i, 4, TMP3, SO, f"s{so}", (i & 3) * 1024, tag=tag, flags=" sc1"))
    return o
def q_addr():
    return q_soff(sXO) + [salu(f"s_add_u32 s{sKS0}, s{sXO}, 4096"), salu(f"s_add_u32 s{sKS1}, s{sXO}, 8192"), V(f"v_lshlrev_b32 v{TMP3}, 4, v{VLANE}")]
def publish_cnt(lab, hreg_round):
    o = [raw(f"s_cmp_lg_u32 s{sW}, 0", "salu"), raw(f"s_cbranch_scc1 {lab}", "branch")]
    if hreg_round is None: o += [salu(f"s_and_b32 s{sT0}, s{sH}, 16"), salu(f"s_add_u32 s{sT0}, s{sT0}, s{sB}"), salu(f"s_lshl_b32 s{sT0}, s{sT0}, 8")]
    else: o += [salu(f"s_lshl_b32 s{sT0}, s{sB}, 8")]
    o += [salu(f"s_and_b32 s{sT1}, s{sH}, 15"), salu(f"s_lshl_b32 s{sT1}, s{sT1}, 2"), salu(f"s_add_u32 s{sT0}, s{sT0}, s{sT1}"),
          salu(f"s_add_u32 s{sT0}, s{sT0}, {FLGO}"),
          V(f"v_mov_b32 v{VFA}, 0"), V(f"v_mov_b32 v{VFL}, s{sTOK}"), salu("s_mov_b64 exec, 1"), nop(0),
          raw(f"buffer_store_dword v{VFL}, v{VFA}, s[{SO}:{SO+3}], s{sT0} offen sc1"), salu("s_mov_b64 exec, -1"), label(lab)]
    return o
def qflag_off(dst): return [salu(f"s_and_b32 s{dst}, s2, 255"), salu(f"s_lshl_b32 s{dst}, s{dst}, 7"), salu(f"s_add_u32 s{dst}, s{dst}, {FLGQ}")]

def init_step():
    st = Step("I0")
    qk_mfmas(st, 0, czero=True)
    st.reads = lambda n: rd_k(0, n, n, st.name) if n < 8 else None
    z = [V(f"v_mov_b32 v{ACC+i}, 0") for i in range(96)]
    for i, ins in enumerate(z): st.gap(i // 4, ins)
    post = [nop(7), nop(1)]
    for j in range(3):
        post += rowmax_code(0, j, TMP, TMP2)
        for r in range(4): post.append(V(f"v_sub_f32 v{negm(j)+r}, 0, v{TMP}"))
        for r in range(8): post.append(V(f"v_sub_f32 v{sreg(0,j,0)+r}, v{sreg(0,j,0)+r}, v{TMP}"))
        post.append(V(f"v_mov_b32 v{L0+j}, 0"))
    st.gap(23, *post)
    for j in range(3): sm_half(st, 24 + 4 * j, 0, j, 0, False)
    st.before(BAR, *tick_pre(), wait(vm=[("K", 1), ("V", 0)], lgkm="all"), barrier(), *tick_post())
    place_dma(st, dma_k(4))
    st.gap(47, *adv_kv(True))
    return st

def a_step(kt):
    g = kt
    st = Step(f"A{g}")
    par = kt & 1
    last = kt == 31
    site = kt % 4 + (4 if kt >= 28 else 0)
    if not last: qk_mfmas(st, kt + 1)
    for dt in range(8):
        for j in range(3):
            st.mf[24 + dt * 3 + j] = mfma(acc(j, dt), fr(8 + dt), sreg(par, j, 0))
    st.reads = lambda n: ((None if last else rd_k(g + 1, n, n, st.name)) if n < 8 else rd_v(g, n - 8, n, st.name))
    for j in range(3): sm_half(st, 7 * j, par, j, 1, False)
    st.gap(21, V(f"v_max3_f32 v{TMP}, v{T0}, v{T0+1}, v{T0+2}"))
    st.gap(22, V(f"v_cmp_lt_f32 vcc, s{sTH}, v{TMP}"))
    if last: st.gap(22, nop(3))
    st.gap(23, raw(f"s_cbranch_vccnz L_slow{site}", "branch"), label(f"L_back{site}"))
    if last:
        st.gap(23, nop(1))
        for j in range(3): st.gap(24 + j, V(f"v_add_f32 v{L0+j}, v{L0+j}, v{T0+j}"))
        st.before(BAR, *tick_pre(), wait(lgkm="all"), barrier(), *tick_post())
        st.gap(BAR + 1, V(f"v_lshlrev_b32 v{TMP3}, 4, v{VLANE}"))
    else:
        for j in range(3): sm_half(st, 24 + 7 * j, 1 - par, j, 0, True)
        st.before(BAR, *tick_pre(), wait(vm=([("K", g + 2)] if g + 2 <= 31 else []) + [("V", g + 1)], lgkm="all"), barrier(), *tick_post())
        if kt < 28: place_dma(st, dma_k(g + 5) + dma_v(g + 4))
        if kt % 4 == AFS % 4:
            sf = "" if kt < 28 else "t"
            st.gap(BAR + 2, raw(f"s_cmp_eq_u32 s{sCNT}, s{sSIG}", "salu"), raw(f"s_cbranch_scc1 L_sig{sf}", "branch"), label(f"L_sigback{sf}"))
        st.gap(47, *adv_kv())
    return st

def slow_stub(site):
    r = site % 4
    out = [label(f"L_slow{site}"), salu(f"s_sub_u32 s{sKS1}, s{sU}, {5*8192}")] + tile_off(sKS0, sKS1) + [
           salu(f"s_add_u32 s{sKS1}, s{sKS0}, 4096"),
           raw(f"s_call_b64 s[{sRET}:{sRET+1}], L_rebase{r&1}", "branch")]
    for n in range(8, 16):
        if POS[n] <= 23: out += rd_v(r, n - 8, n, "slow")
    out += [raw("s_waitcnt lgkmcnt(0)"), raw(f"s_branch L_back{site}", "branch")]
    return out
def rebase(par):
    out = [label(f"L_rebase{par}"), raw("s_waitcnt lgkmcnt(0)"), nop(7), nop(7),
           V(f"v_and_b32 v{TMP}, 15, v{VLANE}"), V(f"v_lshlrev_b32 v{TMP}, 8, v{TMP}"),
           V(f"v_lshrrev_b32 v{TMP2}, 4, v{VLANE}"), V(f"v_lshl_add_u32 v{TMP}, v{TMP2}, 4, v{TMP}")]
    for t in range(2):
        for u in range(4): out.append(buf_load(fr(t * 4 + u), 4, TMP, SK, f"s{sKS0 + t}", u * 64, tag="sl"))
    out.append(raw("s_waitcnt vmcnt(0)"))
    for t in range(2):
        for u in range(4):
            for j in range(3): out.append(mfma(sreg(par, j, t), fr(t * 4 + u), qf(j, u), negm(j) if u == 0 else None))
    out += [nop(7), nop(7)]
    for j in range(3):
        out += rowmax_code(par, j, TMP, TMP2)
        out += [V(f"v_max_f32 v{TMP}, 0, v{TMP}"), V(f"v_sub_f32 v{TMP2}, 0, v{TMP}"), V(f"v_exp_f32 v{TMP2}, v{TMP2}")]
        for r in range(4): out.append(V(f"v_sub_f32 v{negm(j)+r}, v{negm(j)+r}, v{TMP}"))
        for pp in range(2):
            for r in range(8): out.append(V(f"v_sub_f32 v{sreg(pp,j,0)+r}, v{sreg(pp,j,0)+r}, v{TMP}"))
        out.append(V(f"v_mul_f32 v{L0+j}, v{L0+j}, v{TMP2}"))
        for r in range(32): out.append(V(f"v_mul_f32 v{acc(j,0)+r}, v{acc(j,0)+r}, v{TMP2}"))
        a = sreg(par, j, 0); tj = T0 + j
        for r in range(8): out.append(V(f"v_exp_f32 v{a+r}, v{a+r}"))
        out.append(nop(0))
        out.append(V(f"v_add_f32 v{tj}, v{a}, v{a+1}"))
        for r in range(2, 8): out.append(V(f"v_add_f32 v{tj}, v{tj}, v{a+r}"))
        for r in range(4): out.append(V(f"v_cvt_pk_bf16_f32 v{a+r}, v{a+2*r}, v{a+2*r+1}"))
    out += [nop(3), raw(f"s_setpc_b64 s[{sRET}:{sRET+1}]", "branch")]
    return out

CPF = int(E("CPF", "1"))
def cpf():
    if not CPF: return []
    o = [raw(f"s_cmp_lg_u32 s{sW}, 3", "salu"), raw("s_cbranch_scc1 L_nocpf", "branch"),
         salu(f"s_lshr_b32 s{sT0}, s2, 3"), raw(f"s_cmp_lg_u32 s{sT0}, {CPF}", "salu"), raw("s_cbranch_scc1 L_nocpf", "branch"),
         raw("s_getpc_b64 s[96:97]"), salu("s_and_b32 s96, s96, 0xffffff00"), salu("s_and_b32 s97, s97, 0xffff"), salu(f"s_mov_b32 s98, {CODESZ}"), salu("s_mov_b32 s99, 0x00020000"),
         V(f"v_lshlrev_b32 v{TMP3}, 7, v{VLANE}")]
    for i in range(6):
        o += [salu(f"s_mov_b32 s{sT0}, {i * 8192}"), raw(f"buffer_load_dword v{TMP4}, v{TMP3}, s[96:99], s{sT0} offen")]
    return o + [label("L_nocpf")]
CODESZ = 40000
def head():
    return [raw("s_cmp_ge_u32 s2, 512", "salu"), raw("s_cbranch_scc1 L_end", "branch"),
            raw("s_load_dwordx16 s[48:63], s[0:1], 0"),
            V(f"v_and_b32 v{VLANE}, 63, v0"), V(f"v_lshrrev_b32 v{TMP}, 6, v0"), nop(0),
            V(f"v_readfirstlane_b32 s{sW}, v{TMP}"),
            salu(f"s_lshr_b32 s{sCLS}, s2, 8"), salu(f"s_xor_b32 s{sCLS}, s{sCLS}, 1"), salu(f"s_mov_b32 s{sTK}, 0"),
            raw(f"s_setprio {PRB}"), raw("s_cmp_lt_u32 s2, 256", "salu"), raw("s_cbranch_scc1 L_pr0", "branch"), raw(f"s_setprio {PRA}"), label("L_pr0"),
            *cpf(), raw("s_memrealtime s[42:43]"), raw("s_waitcnt lgkmcnt(0)"),
            salu(f"s_or_b32 s{sT0}, s2, s{sW}"), raw(f"s_cmp_lg_u32 s{sT0}, 0", "salu"), raw("s_cbranch_scc1 L_start", "branch"),
            *srd(SO, PDBG, PDBG + 1, 256), salu("s_or_b32 s42, s42, 1"), V(f"v_mov_b32 v{VFA}, 0"), V(f"v_mov_b32 v{VFL}, s42"),
            salu("s_mov_b64 exec, 1"), nop(0), raw(f"buffer_store_dword v{VFL}, v{VFA}, s[{SO}:{SO+3}], 0 offen sc1"), salu("s_mov_b64 exec, -1"), nop(1)]
def prologue():
    o = [label("L_start"),
         salu(f"s_and_b32 s{sXC}, s2, 7"), salu(f"s_lshr_b32 s{sV}, s2, 3"), salu(f"s_and_b32 s{sV}, s{sV}, 31"),
         salu(f"s_and_b32 s{sT0}, s{sXC}, 3"), salu(f"s_lshl_b32 s{sT0}, s{sT0}, 2"), salu(f"s_and_b32 s{sB}, s{sV}, 3"), salu(f"s_add_u32 s{sB}, s{sB}, s{sT0}"),
         salu(f"s_lshr_b32 s{sT0}, s{sXC}, 2"), salu(f"s_lshl_b32 s{sT0}, s{sT0}, 3"), salu(f"s_lshr_b32 s{sH}, s{sV}, 2"), salu(f"s_add_u32 s{sH}, s{sH}, s{sT0}"),
         salu(f"s_lshl_b32 s{sT0}, s{sCLS}, 4"), salu(f"s_add_u32 s{sH}, s{sH}, s{sT0}")]
    o += srd(SX, PX, PX + 1, 16 * 192 * 1024 * 2) + srd(SWQ, PWQ, PWQ + 1, 1024 * 4096 * 2)
    o += [salu(f"s_lshl_b32 s{sT0}, s{sB}, 5"), salu(f"s_add_u32 s{sT0}, s{sT0}, s{sH}"), salu(f"s_lshl_b32 s{sT0}, s{sT0}, 18"),
          salu(f"s_add_u32 s{SK}, s{PK}, s{sT0}"), salu(f"s_addc_u32 s{SK+1}, s{PK+1}, 0"),
          salu(f"s_add_u32 s{SV}, s{PV}, s{sT0}"), salu(f"s_addc_u32 s{SV+1}, s{PV+1}, 0")]
    o += srd(SK, SK, SK + 1, 0x40000)[1:] + srd(SV, SV, SV + 1, 0x40000)[1:]
    if AW: o += [salu(f"s_cmp_eq_u32 s{sCLS}, 1"), salu(f"s_cselect_b32 s{SK+2}, 0, s{SK+2}"), salu(f"s_mov_b32 s{SV+2}, s{SK+2}")]
    o += srd(SO, PWS, PWS + 1, WS_BYTES) + srd(SD2, PDBG, PDBG + 1, 256)
    A, B, C, D = 2, 3, 4, 5
    o += [salu(f"s_mul_i32 s{sMK}, s{sW}, {2*KP}"), salu(f"s_mul_i32 s{sMV}, s{sW}, {2*VP}"),
          salu(f"s_mov_b32 s{sTH}, {f32(1024.0)}"), salu(f"s_mov_b32 s{sC}, {f32(math.log2(math.e) / math.sqrt(128.0))}"),
          salu(f"s_lshl_b32 s{sR}, s{sV}, 13"), salu(f"s_mov_b32 s{sKO}, s{sR}"), salu(f"s_mov_b32 s{sVO}, s{sR}"),
          salu(f"s_mov_b32 s{sWO0}, 0"), salu(f"s_mul_i32 s{sMX}, s{sW}, 6144"), salu(f"s_lshl_b32 s{sMW}, s{sW}, 11"),
          salu(f"s_mul_i32 s{sXO}, s{sB}, 192"), salu(f"s_mul_i32 s{sT0}, s{sW}, 48"), salu(f"s_add_u32 s{sXO}, s{sXO}, s{sT0}"),
          salu(f"s_lshl_b32 s{sX0}, s{sXO}, 11"), salu(f"s_add_u32 s{sX0+1}, s{sX0}, 0x8000"), salu(f"s_add_u32 s{sX0+2}, s{sX0}, 0x10000"),
          V(f"v_and_b32 v{A}, 15, v{VLANE}"), V(f"v_lshrrev_b32 v{B}, 4, v{VLANE}"),
          V(f"v_xor_b32 v{C}, v{B}, v{VLANE}"), V(f"v_and_b32 v{C}, 7, v{C}"),
          V(f"v_lshrrev_b32 v{D}, 3, v{VLANE}"), V(f"v_lshlrev_b32 v{D}, 11, v{D}"),
          V(f"v_lshl_add_u32 v{VXD}, v{C}, 4, v{D}"),
          V(f"v_xor_b32 v{VXD+1}, 64, v{VXD}"), V(f"v_add_u32 v{VXD+1}, 0x4000, v{VXD+1}"),
          V(f"v_and_b32 v{C}, 1, v{B}"), V(f"v_lshlrev_b32 v{C}, 2, v{C}"),
          V(f"v_lshrrev_b32 v{D}, 1, v{B}"), V(f"v_lshl_add_u32 v{C}, v{D}, 4, v{C}"),
          salu(f"s_lshl_b32 s{sT0}, s{sW}, 1"), salu(f"s_and_b32 s{sT0}, s{sT0}, 3"),
          salu(f"s_lshr_b32 s{sT1}, s{sW}, 1"), salu(f"s_lshl_b32 s{sT1}, s{sT1}, 3"), salu(f"s_add_u32 s{sT0}, s{sT0}, s{sT1}"),
          V(f"v_add_u32 v{C}, s{sT0}, v{C}"), V(f"v_lshlrev_b32 v{C}, 13, v{C}"),
          salu(f"s_lshl_b32 s{sT0}, s{sW}, 2"), V(f"v_xor_b32 v{D}, s{sT0}, v{A}"),
          V(f"v_lshl_add_u32 v{C}, v{D}, 4, v{C}"),
          salu(f"s_lshl_b32 s{sT0}, s{sH}, 8"),
          V(f"v_add_u32 v{VDW0}, s{sT0}, v{C}"), V(f"v_xor_b32 v{VDW1}, 32, v{VDW0}"), V(f"v_add_u32 v{VDW1}, 0x2000, v{VDW1}")]
    def em(pairs):
        r = []
        for m0i, d in pairs: r += [m0i, nop(0), d]
        return r
    def wl(i): return em(dma_w(i)) + [salu(f"s_add_u32 s{sWO0}, s{sWO0}, 0x40000")]
    o += em(dma_x(0)) + wl(0) + wl(1) + em(dma_x(1)) + wl(2) + wl(3)
    o += [V(f"v_lshrrev_b32 v{C}, 1, v{A}"), V(f"v_xor_b32 v{C}, v{C}, v{B}"),
          V(f"v_lshlrev_b32 v{C}, 4, v{C}"), V(f"v_lshl_add_u32 v{C}, v{A}, 7, v{C}"),
          salu(f"s_add_u32 s{sT0}, s{sMX}, {XBASE}"), V(f"v_add_u32 v{VXR}, s{sT0}, v{C}"), V(f"v_xor_b32 v{VXR+1}, 64, v{VXR}"),
          V(f"v_and_b32 v{C}, 1, v{B}"), V(f"v_lshlrev_b32 v{C}, 2, v{C}"), V(f"v_lshrrev_b32 v{D}, 2, v{A}"), V(f"v_add_u32 v{C}, v{C}, v{D}"),
          V(f"v_lshlrev_b32 v{VWR}, 10, v{C}"),
          V(f"v_lshrrev_b32 v{D}, 1, v{B}"), V(f"v_lshl_add_u32 v{VWR}, v{D}, 9, v{VWR}"),
          V(f"v_lshlrev_b32 v{C}, 1, v{C}"), V(f"v_and_b32 v{D}, 3, v{A}"), V(f"v_xor_b32 v{C}, v{C}, v{D}"),
          V(f"v_lshl_add_u32 v{VWR}, v{C}, 4, v{VWR}"),
          V(f"v_lshrrev_b32 v{D}, 1, v{D}"), V(f"v_lshl_add_u32 v{VWR}, v{D}, 3, v{VWR}")]
    for T in range(2):
        for u in range(4):
            if T or u: o.append(V(f"v_xor_b32 v{VWR + T * 4 + u}, {u * 64 + T * 8}, v{VWR}"))
    o += [V(f"v_lshrrev_b32 v{C}, 2, v{A}"), V(f"v_mul_u32_u24 v{VKR}, {KP}, v{C}"),
          V(f"v_and_b32 v{C}, 3, v{A}"), V(f"v_lshl_add_u32 v{VKR}, v{C}, 8, v{VKR}"),
          V(f"v_xor_b32 v{C}, v{C}, v{B}"), V(f"v_lshl_add_u32 v{VKR}, v{C}, 4, v{VKR}"), V(f"v_add_u32 v{VKR}, {KBIAS}, v{VKR}"),
          V(f"v_and_b32 v{C}, 1, v{B}"), V(f"v_lshlrev_b32 v{C}, 2, v{C}"), V(f"v_lshrrev_b32 v{D}, 2, v{A}"), V(f"v_add_u32 v{C}, v{C}, v{D}"),
          V(f"v_mul_u32_u24 v{C}, {VP}, v{C}"),
          V(f"v_lshrrev_b32 v{D}, 1, v{B}"), V(f"v_lshl_add_u32 v{VVR}, v{D}, 8, v{C}"),
          V(f"v_and_b32 v{D}, 3, v{A}"), V(f"v_lshl_add_u32 v{VVR}, v{D}, 3, v{VVR}"),
          V(f"v_and_b32 v{C}, 3, v{A}"), V(f"v_xor_b32 v{C}, v{C}, v{B}"), V(f"v_and_b32 v{D}, 12, v{A}"), V(f"v_or_b32 v{C}, v{C}, v{D}"),
          V(f"v_lshlrev_b32 v{C}, 4, v{C}"), V(f"v_lshl_add_u32 v{C}, v{B}, 8, v{C}"),
          salu(f"s_lshl_b32 s{sT0}, s{sW}, 11"), V(f"v_add_u32 v{VDK}, s{sT0}, v{C}"),
          V(f"v_lshlrev_b32 v{C}, 4, v{A}"), V(f"v_lshl_add_u32 v{C}, v{B}, 11, v{C}"),
          salu(f"s_lshl_b32 s{sT0}, s{sW}, 9"), V(f"v_add_u32 v{VDV}, s{sT0}, v{C}"),
          wait(vm=[("X", 0)]), *rd_x(0), wait(vm=[("W", 0)], lgkm="all")]
    if BW:
        o += [raw(f"s_cmp_lg_u32 s{sCLS}, 1", "salu"), raw("s_cbranch_scc1 L_bwd", "branch"), raw(f"s_cmp_lg_u32 s{sW}, 0", "salu"), raw("s_cbranch_scc1 L_bwd", "branch"),
              V(f"v_mov_b32 v{VFA}, 0"), salu(f"s_mov_b32 s{sCNT}, 0"), salu(f"s_and_b32 s{sU}, s2, 255"), salu(f"s_lshl_b32 s{sU}, s{sU}, 7"), salu(f"s_add_u32 s{sU}, s{sU}, {FLGP}"),
              label("L_bwl"), raw(f"s_sleep {BWS}"),
              raw(f"buffer_load_dword v{VFL}, v{VFA}, s[{SD2}:{SD2+3}], 0 offen sc1"),
              raw(f"buffer_load_dword v{TMP}, v{VFA}, s[{SO}:{SO+3}], s{sU} offen sc1"), raw("s_waitcnt vmcnt(0)"),
              raw(f"v_readfirstlane_b32 s{sT0}, v{VFL}"), raw(f"v_readfirstlane_b32 s{sT1}, v{TMP}"),
              salu(f"s_add_u32 s{sCNT}, s{sCNT}, 1"), raw(f"s_cmp_ge_u32 s{sCNT}, {BWLIM}", "salu"), raw("s_cbranch_scc1 L_bwd", "branch"), nop(1),
              raw(f"s_cmp_eq_u32 s{sT0}, 0", "salu"), raw("s_cbranch_scc1 L_bwl", "branch"),
              raw(f"s_cmp_lg_u32 s{sT0}, s{sT1}", "salu"), raw("s_cbranch_scc1 L_bwl", "branch"), label("L_bwd")]
    o += [barrier()]
    return o

def a_epilogue(item):
    o = [nop(7), nop(1)]
    o += [salu(f"s_mul_i32 s{sT0}, s{sB}, 12"), salu(f"s_mul_i32 s{sT1}, s{sW}, 3"), salu(f"s_add_u32 s{sT0}, s{sT0}, s{sT1}"),
          salu(f"s_mul_i32 s{sT0}, s{sT0}, {RBS}"), salu(f"s_lshl_b32 s{sT1}, s{sH}, 12"), salu(f"s_add_u32 s{sT0}, s{sT0}, s{sT1}")]
    for j in range(3):
        l = L0 + j
        o += [V(f"v_mov_b32 v{TMP}, v{l}"), nop(1), V(f"v_permlane16_swap_b32 v{l}, v{TMP}"), nop(1), V(f"v_add_f32 v{l}, v{l}, v{TMP}"),
              V(f"v_mov_b32 v{TMP}, v{l}"), nop(1), V(f"v_permlane32_swap_b32 v{l}, v{TMP}"), nop(1), V(f"v_add_f32 v{l}, v{l}, v{TMP}"),
              V(f"v_rcp_f32 v{l}, v{l}"), nop(0)]
        for u in range(4):
            a = acc(j, 2 * u)
            for r in range(8): o.append(V(f"v_mul_f32 v{a+r}, v{a+r}, v{l}"))
            q = SP + (j * 4 + u) * 4
            for r in range(4): o.append(V(f"v_cvt_pk_bf16_f32 v{q+r}, v{a+2*r}, v{a+2*r+1}"))
            o.append(buf_store(q, 4, TMP3, SO, f"s{sT0}", u * 1024, tag="st", flags=[E("OSF0", " sc1 nt"), " sc1"][item]))
        if j < 2: o.append(salu(f"s_add_u32 s{sT0}, s{sT0}, {RBS}"))
    return o

def stamp(i):
    if not STAMP: return []
    return [raw(f"s_memrealtime s[{STB+4*i}:{STB+1+4*i}]"), raw(f"s_memtime s[{STB+2+4*i}:{STB+3+4*i}]")]
def dbg_out():
    o = []
    if TICK:
        o += [salu(f"s_mov_b32 s{SO+2}, 0x20000000"), salu(f"s_lshl_b32 s39, s2, 2"), salu(f"s_add_u32 s39, s39, s24"), salu("s_lshl_b32 s39, s39, 9"),
              salu(f"s_add_u32 s39, s39, {66 << 20}"), V(f"v_lshlrev_b32 v2, 2, v{VLANE}"), nop(4),
              buf_store(0, 1, 2, SO, "s39", 0, tag="dbg"), buf_store(15, 1, 2, SO, "s39", 256, tag="dbg"), nop(1)]
    if STAMP:
        o += [raw("s_waitcnt lgkmcnt(0)"), salu(f"s_mov_b32 s{SO+2}, 0x20000000"),
              salu(f"s_lshl_b32 s39, s2, 2"), salu(f"s_add_u32 s39, s39, s24"), salu("s_lshl_b32 s39, s39, 6"), salu(f"s_add_u32 s39, s39, {64 << 20}"),
              V(f"v_mov_b32 v2, 0"), salu("s_mov_b64 exec, 1")]
        for i in range(7):
            o += [V(f"v_mov_b32 v4, s{STB+4*i}"), V(f"v_mov_b32 v5, s{STB+2+4*i}"), buf_store(4, 2, 2, SO, "s39", 8 * i, tag="dbg"), nop(1)]
    return o

SLW = 8 * VP
ODW, OX0, OWR = 16, 20, 23
def o_rdw(tile, a, n, tagp):
    u, T = a >> 1, a & 1
    base = (tile % 4) * SLW + u * 64
    return [ds_read("ds_read_b64_tr_b16", fr(n), 2, OWR + T, base, tag=(tagp, n)),
            ds_read("ds_read_b64_tr_b16", fr(n) + 2, 2, OWR + T, base + 512, tag=(tagp, n))]
def o_dmaw(i):
    s = (i % 4) * SLW
    return [(salu(f"s_add_u32 m0, s{sM0}, {s + e * VP}"), buf_dma(ODW + e, SV if E("NOW") else SWO, f"s{sWO0}", 0, tag=("OW", i), flags=E("OWF", ""))) for e in range(4)]
def o_xl(ps, half, j):
    return buf_load(xb(ps % 4, half, j), 4, OX0 + j, SV if E("NOX") else SO, f"s{sXO}", half * 1024, tag=("OX", ps, half), flags=OLF)
def o_step(ps):
    st = Step(f"O{ps}")
    st.pos = POSP
    buf = ps % 4
    for half in range(2):
        t = 2 * ps + half; o = 24 * half
        for a in range(8):
            for j in range(3): st.mf[o + a * 3 + j] = mfma(acc(j, a), fr(half * 8 + a), xb(buf, half, j))
        st.before(o, wait(vm=[("OX", ps, half)]))
        if half == 1: st.before(o + 12, *tick_pre(), wait(vm=[("OW", t + 1)], lgkm="all"), barrier(), *tick_post())
        else: st.before(o + 12, wait(vm=[("OW", t + 1)], lgkm="all"), barrier())
        place_dma(st, o_dmaw(t + 4), [o + 13, o + 15, o + 17, o + 19])
        st.gap(o + 22, salu(f"s_add_u32 s{sWO0}, s{sWO0}, {0x210000 if (t + 4) % 32 == 31 else 0x10000}"))
    st.reads = lambda n: o_rdw(2 * ps + (n >> 3), n & 7, n, st.name)
    if (ps & 15) + 3 < 16:
        for k, g in enumerate([1, 4, 7, 25, 28, 31]): st.gap(g, o_xl(ps + 3, k // 3, k % 3))
        st.gap(33, salu(f"s_add_u32 s{sXO}, s{sXO}, 2048"))
    return st
def wtouch():
    return [salu(f"s_lshl_b32 s{sT0}, s{sPH}, 4"), salu(f"s_lshl_b32 s{sT1}, s{sKH}, 3"), salu(f"s_add_u32 s{sT0}, s{sT0}, s{sT1}"),
            salu(f"s_and_b32 s{sT1}, s{sV}, 7"), salu(f"s_add_u32 s{sT0}, s{sT0}, s{sT1}"), salu(f"s_lshl_b32 s{sT0}, s{sT0}, 1"),
            salu(f"s_add_u32 s{sT0}, s{sT0}, s{sMH}"), salu(f"s_lshl_b32 s{sT0}, s{sT0}, 17"),
            salu(f"s_lshl_b32 s{sT1}, s{sNB}, 8"), salu(f"s_add_u32 s{sT0}, s{sT0}, s{sT1}"), V(f"v_lshlrev_b32 v{TMP3}, 11, v{VLANE}"),
            raw(buf_load(TMP, 1, TMP3, SWO, f"s{sT0}", 0, flags=WTF).text), raw(buf_load(TMP2, 1, TMP3, SWO, f"s{sT0}", 128, flags=WTF).text)]
def b_setup():
    A, B, C, D = 2, 3, 4, 5
    o = []
    o += srd(SWO, PWO, PWO + 1, 4096 * 1024 * 2) + srd(SOUT, POUT, POUT + 1, 3072 * 1024 * 2)
    o += [salu(f"s_and_b32 s{sT0}, s{sXC}, 3"), salu(f"s_lshl_b32 s{sT0}, s{sT0}, 3"), salu(f"s_and_b32 s{sMG}, s{sV}, 7"), salu(f"s_add_u32 s{sMG}, s{sMG}, s{sT0}"),
          salu(f"s_lshr_b32 s{sT0}, s{sXC}, 2"), salu(f"s_lshl_b32 s{sT0}, s{sT0}, 2"), salu(f"s_lshr_b32 s{sNB}, s{sV}, 3"), salu(f"s_add_u32 s{sNB}, s{sNB}, s{sT0}"),
          salu(f"s_and_b32 s{sMH}, s{sW}, 1"), salu(f"s_lshr_b32 s{sKH}, s{sW}, 1"), salu(f"s_mov_b32 s{sPH}, 0"),
          salu(f"s_mul_i32 s{sM0}, s{sKH}, {4*SLW}"), salu(f"s_mul_i32 s{sT0}, s{sMH}, {4*VP}"), salu(f"s_add_u32 s{sM0}, s{sM0}, s{sT0}"),
          salu(f"s_lshl_b32 s{sWO0}, s{sKH}, 21"),
          salu(f"s_mul_i32 s{sXO}, s{sMG}, 6"), salu(f"s_mul_i32 s{sT0}, s{sMH}, 3"), salu(f"s_add_u32 s{sXO}, s{sXO}, s{sT0}"),
          salu(f"s_mul_i32 s{sXO}, s{sXO}, {RBS}"), salu(f"s_lshl_b32 s{sT0}, s{sKH}, 15"), salu(f"s_add_u32 s{sXO}, s{sXO}, s{sT0}"), *([salu(f"s_add_u32 s{sXO}, s{sXO}, {OXOFF}")] if OXOFF else []),
          V(f"v_and_b32 v{A}, 15, v{VLANE}"), V(f"v_lshrrev_b32 v{B}, 4, v{VLANE}"),
          V(f"v_lshlrev_b32 v{OX0}, 4, v{VLANE}"), V(f"v_add_u32 v{OX0+1}, {RBS}, v{OX0}"), V(f"v_add_u32 v{OX0+2}, {2*RBS}, v{OX0}"),
          V(f"v_lshlrev_b32 v{C}, 14, v{B}"), V(f"v_lshl_add_u32 v{C}, v{A}, 4, v{C}"),
          salu(f"s_lshl_b32 s{sT0}, s{sMH}, 13"), salu(f"s_lshl_b32 s{sT1}, s{sNB}, 8"), salu(f"s_add_u32 s{sT0}, s{sT0}, s{sT1}"),
          V(f"v_add_u32 v{ODW}, s{sT0}, v{C}"), V(f"v_add_u32 v{ODW+1}, 0x800, v{ODW}"),
          V(f"v_add_u32 v{ODW+2}, 0x1000, v{ODW}"), V(f"v_add_u32 v{ODW+3}, 0x1800, v{ODW}"),
          V(f"v_and_b32 v{C}, 1, v{B}"), V(f"v_lshlrev_b32 v{C}, 2, v{C}"), V(f"v_lshrrev_b32 v{D}, 2, v{A}"), V(f"v_add_u32 v{C}, v{C}, v{D}"),
          V(f"v_mul_u32_u24 v{C}, {VP}, v{C}"),
          V(f"v_lshrrev_b32 v{D}, 1, v{B}"), V(f"v_lshl_add_u32 v{C}, v{D}, 8, v{C}"),
          V(f"v_and_b32 v{D}, 3, v{A}"), V(f"v_lshl_add_u32 v{C}, v{D}, 4, v{C}"),
          salu(f"s_mul_i32 s{sT0}, s{sKH}, {4*SLW}"), V(f"v_add_u32 v{C}, s{sT0}, v{C}"),
          V(f"v_lshrrev_b32 v{D}, 1, v{D}"), V(f"v_lshl_add_u32 v{OWR}, v{D}, 3, v{C}"),
          V(f"v_xor_b32 v{D}, 1, v{D}"), V(f"v_lshl_add_u32 v{OWR+1}, v{D}, 3, v{C}")]
    for i in range(4):
        for m0i, d in o_dmaw(i): o += [m0i, nop(0), d]
        o.append(salu(f"s_add_u32 s{sWO0}, s{sWO0}, 0x10000"))
    o += [V(f"v_mov_b32 v{ACC+i}, 0") for i in range(96)]
    o += [wait(vm=["st"]), barrier()] + publish_cnt("L_pub0", None) + [raw(f"s_setprio {PRO}")] + stamp(2)
    if WT == 2: o += wtouch()
    if S2 >= 0:
        o += [raw(f"s_cmp_lg_u32 s{sW}, 0", "salu"), raw("s_cbranch_scc1 L_owd", "branch"),
              V(f"v_mov_b32 v{VFA}, 0"), salu(f"s_mov_b32 s{sCNT}, 0"), salu(f"s_lshl_b32 s{sT1}, s2, 7"), salu(f"s_add_u32 s{sT1}, s{sT1}, {FLGA}"),
              label("L_owl"), raw(f"buffer_load_dword v{VFL}, v{VFA}, s[{SO}:{SO+3}], s{sT1} offen sc1"), raw("s_waitcnt vmcnt(0)"),
              raw(f"v_readfirstlane_b32 s{sT0}, v{VFL}"), salu(f"s_add_u32 s{sCNT}, s{sCNT}, 1"), nop(2),
              raw(f"s_cmp_eq_u32 s{sT0}, s{sTOK}", "salu"), raw("s_cbranch_scc1 L_owd", "branch"),
              raw(f"s_cmp_ge_u32 s{sCNT}, {AWLIM}", "salu"), raw("s_cbranch_scc1 L_owd", "branch"), raw(f"s_sleep {AWS}"), raw("s_branch L_owl", "branch"),
              label("L_owd")]
    o += [wait(vm=[("OW", 0)]), barrier()]
    return o
def b_poll(ph):
    o = []
    if WT in (1, 2):
        o = [raw(f"s_cmp_eq_u32 s{sPH}, 0", "salu"), raw("s_cbranch_scc1 L_nowt", "branch")] + wtouch() + [label("L_nowt")]
    o += [raw(f"s_cmp_lg_u32 s{sW}, 0", "salu"), raw("s_cbranch_scc1 L_bpd", "branch"),
         salu(f"s_lshr_b32 s{sT0}, s{sMG}, 1"), salu(f"s_lshl_b32 s{sT1}, s{sPH}, 4"), salu(f"s_add_u32 s{sT0}, s{sT0}, s{sT1}"), salu(f"s_lshl_b32 s{sT0}, s{sT0}, 8"),
         salu(f"s_add_u32 s{sT0}, s{sT0}, {FLGO}"),
         V(f"v_and_b32 v{VFA}, 15, v{VLANE}"), V(f"v_lshlrev_b32 v{VFA}, 2, v{VFA}"), salu(f"s_mov_b32 s{sCNT}, 0"), label("L_bpl"),
         raw(f"buffer_load_dword v{VFL}, v{VFA}, s[{SO}:{SO+3}], s{sT0} offen sc1"), raw("s_waitcnt vmcnt(0)"),
         raw(f"v_cmp_ne_u32 vcc, s{sTOK}, v{VFL}"), nop(3), raw("s_cbranch_vccz L_bpd", "branch"),
         salu(f"s_add_u32 s{sCNT}, s{sCNT}, 1"), raw(f"s_cmp_ge_u32 s{sCNT}, {1 << 17}"), raw("s_cbranch_scc1 L_bpd", "branch"),
         *[raw(f"s_sleep {PSLEEP}")] * PSN, raw("s_branch L_bpl", "branch"),
         label("L_bpd"), barrier()]
    post = []
    for k in range(3):
        post += [o_xl(16 * ph + k, h, j) for h in range(2) for j in range(3)] + [salu(f"s_add_u32 s{sXO}, s{sXO}, 2048")]
    return o, post
def b_epi(kh):
    keep = [2 * kh, 2 * kh + 1]; send = [2 - 2 * kh, 3 - 2 * kh]
    o = []; idx = 0
    for j in range(3):
        for u in send:
            for T in range(2):
                o.append(ds_write("ds_write_b128", TMP, acc(j, 2 * u + T), 4, idx * 1024, tag="w")); idx += 1
    o += [wait(lgkm="all"), barrier()]
    idx = 0; RB = SP
    for j in range(3):
        for u in keep:
            for T in range(2):
                o.append(ds_read("ds_read_b128", RB + idx * 4, 4, TMP2, idx * 1024, tag=("r", idx))); idx += 1
    idx = 0; QB = QR
    for j in range(3):
        for ui, u in enumerate(keep):
            o.append(wait(lgkm=[("r", idx), ("r", idx + 1)]))
            a = acc(j, 2 * u)
            for r in range(8): o.append(V(f"v_add_f32 v{a+r}, v{a+r}, v{RB+idx*4+r}"))
            q = QB + (j * 2 + ui) * 4
            for r in range(4): o.append(V(f"v_cvt_pk_bf16_f32 v{q+r}, v{a+2*r}, v{a+2*r+1}"))
            idx += 2
    o += [salu("s_mov_b32 exec_lo, 0"), nop(0)]
    for k in range(6):
        q = QB + k * 4
        o += [V(f"v_swap_b32 v{q}, v{q+2}"), V(f"v_swap_b32 v{q+1}, v{q+3}")]
    o += [salu("s_mov_b32 exec_lo, -1"), nop(1)]
    for j in range(3):
        for ui, u in enumerate(keep):
            o.append(buf_store(QB + (j * 2 + ui) * 4, 4, TMP3, SOUT, f"s{sT0}", u * 64, tag="st", flags=OUTF))
        if j < 2: o.append(salu(f"s_add_u32 s{sT0}, s{sT0}, 0x8000"))
    return o

def flat(l): return [x for s in l for x in s]
def check(full, what):
    errs, _, _ = resolve_waits(full)
    errs += check_hazards(full)
    if errs:
        print("\n".join(errs[:40]), file=sys.stderr); raise SystemExit(f"{what}: generation errors: {len(errs)}")

def gen():
    hd = head(); pro = prologue()
    steps = [p_step(ps) for ps in range(16)] + [init_step()] + [a_step(kt) for kt in range(32)]
    lin, _ = link(steps)
    qfin = q_finalize() + [wait(vm=["tok"]), label("L_tok"), V(f"v_readfirstlane_b32 s{sTOK}, v{VFL}"), nop(3), raw(f"s_cmp_eq_u32 s{sTOK}, 0", "salu"),
                           raw("s_cbranch_scc1 L_tokslow", "branch")]
    epi = [a_epilogue(0), a_epilogue(1)]
    P = flat(lin[:16])
    I0, A0 = lin[16], lin[17:49]
    import copy
    front = hd + pro + P + qfin + I0 + flat(A0)
    check(front + epi[1], "round 1")
    osteps = [o_step(ps) for ps in range(33)]
    olin, early = link(osteps, early_first=False); olin = olin[:-1]
    bs = b_setup()
    polls = [b_poll(0), b_poll(1)]
    phsw = [salu(f"s_add_u32 s{sXO}, s{sXO}, 0x8000")]
    bmid = [wait(vm="all", lgkm="all"), nop(7), nop(1), barrier(),
            salu(f"s_mul_i32 s{sT0}, s{sW}, 12288"), V(f"v_lshlrev_b32 v{TMP2}, 4, v{VLANE}"), V(f"v_add_u32 v{TMP}, s{sT0}, v{TMP2}"),
            salu(f"s_xor_b32 s{sT1}, s{sW}, 2"), salu(f"s_mul_i32 s{sT1}, s{sT1}, 12288"), V(f"v_add_u32 v{TMP2}, s{sT1}, v{TMP2}"),
            V(f"v_and_b32 v{TMP3}, 15, v{VLANE}"), V(f"v_lshlrev_b32 v{TMP3}, 11, v{TMP3}"), V(f"v_lshrrev_b32 v2, 4, v{VLANE}"),
            V(f"v_lshl_add_u32 v{TMP3}, v2, 4, v{TMP3}"),
            salu(f"s_mul_i32 s{sT0}, s{sMG}, 96"), salu(f"s_mul_i32 s{sT1}, s{sMH}, 48"), salu(f"s_add_u32 s{sT0}, s{sT0}, s{sT1}"),
            salu(f"s_lshl_b32 s{sT0}, s{sT0}, 11"), salu(f"s_lshl_b32 s{sT1}, s{sNB}, 8"), salu(f"s_add_u32 s{sT0}, s{sT0}, s{sT1}"),
            salu(f"s_cmp_lg_u32 s{sKH}, 0"), raw("s_cbranch_scc1 L_bepi1", "branch")]
    be = [b_epi(0), b_epi(1)]
    for e in be:
        pre = [copy.copy(x) for x in front]
        fullb = pre + epi[0] + bs + early + polls[0][0] + polls[0][1] + flat(olin[:16]) + phsw + polls[1][0] + polls[1][1] + flat(olin[16:]) + bmid + e
        check(fullb, "role B")
    subs = []
    for s in range(8): subs += slow_stub(s)
    for par in range(2):
        rb = rebase(par)
        errs = check_hazards(rb); assert not errs, errs
        subs += rb
    out = hd[:2] + stamp(0) + hd[2:] + pro + P + stamp(1) + qfin
    if PRB2 >= 0: out += [raw(f"s_cmp_eq_u32 s{sCLS}, 0", "salu"), raw("s_cbranch_scc1 L_pr1", "branch"), raw(f"s_setprio {PRB2}"), label("L_pr1")]
    assert S2 < 0 or S2 % 4 == AFS % 4
    out += [salu(f"s_cmp_eq_u32 s{sCLS}, 1"), salu(f"s_cselect_b32 s{sSIG}, {7 - S2 // 4 if S2 >= 0 else -1}, {7 - AFS // 4}")]
    if AW: out += [raw(f"s_cmp_eq_u32 s{sCLS}, 1", "salu"), raw("s_cbranch_scc1 L_aw", "branch"), label("L_awback")]
    out += I0
    out += [salu(f"s_mov_b32 s{sCNT}, 7"), label("L_aloop")]
    out += fold([flat(A0[4 * i:4 * i + 4]) for i in range(7)])
    out += [salu(f"s_sub_u32 s{sCNT}, s{sCNT}, 1"), salu(f"s_cmp_lg_u32 s{sCNT}, 0"), raw("s_cbranch_scc1 L_aloop", "branch")]
    out += flat(A0[28:])
    out += [raw(f"s_cmp_eq_u32 s{sCLS}, 0", "salu"), raw("s_cbranch_scc1 L_B", "branch")]
    out += stamp(5) + epi[1] + [raw("s_waitcnt vmcnt(0)"), barrier()] + publish_cnt("L_finpub", None) + stamp(6) + dbg_out() + [raw("s_endpgm")]
    if AW:
        for sf in ("", "t"):
            out += [label(f"L_sig{sf}"), raw(f"s_cmp_lg_u32 s{sW}, 0", "salu"), raw(f"s_cbranch_scc1 L_sigback{sf}", "branch"),
                    salu(f"s_xor_b32 s{sT0}, s2, 256"), salu(f"s_lshl_b32 s{sT0}, s{sT0}, 7"), salu(f"s_add_u32 s{sT0}, s{sT0}, {FLGA}"),
                    V(f"v_mov_b32 v{VFA}, 0"), V(f"v_mov_b32 v{VFL}, s{sTOK}"), salu("s_mov_b64 exec, 1"), nop(0),
                    raw(f"buffer_store_dword v{VFL}, v{VFA}, s[{SO}:{SO+3}], s{sT0} offen sc1"), salu("s_mov_b64 exec, -1"), raw(f"s_branch L_sigback{sf}", "branch")]
        def kvl(names):
            r = []
            for it in names.split():
                for m0i, d in (dma_k if it[0] == "K" else dma_v)(int(it[1])): r += [m0i, nop(0), raw(d.text)]
                r += adv_simple(sKO if it[0] == "K" else sVO)
            return r
        seq = "K0 V0 K1 V1 K2 V2 K3 V3".split()
        out += [label("L_aw"), raw("s_waitcnt vmcnt(0) lgkmcnt(0)"), barrier(),
                salu(f"s_mov_b32 s{SK+2}, 0x40000"), salu(f"s_mov_b32 s{SV+2}, 0x40000"), salu(f"s_mov_b32 s{sKO}, s{sR}"), salu(f"s_mov_b32 s{sVO}, s{sR}")]
        out += kvl(" ".join(seq[:APRE]))
        out += [raw(f"s_cmp_lg_u32 s{sW}, 0", "salu"), raw("s_cbranch_scc1 L_awd", "branch"),
                V(f"v_mov_b32 v{VFA}, 0"), salu(f"s_mov_b32 s{sCNT}, 0"), salu(f"s_lshl_b32 s{sT1}, s2, 7"), salu(f"s_add_u32 s{sT1}, s{sT1}, {FLGA}"),
                label("L_awl"), raw(f"buffer_load_dword v{VFL}, v{VFA}, s[{SO}:{SO+3}], s{sT1} offen sc1"), raw("s_waitcnt vmcnt(0)"),
                raw(f"v_readfirstlane_b32 s{sT0}, v{VFL}"), salu(f"s_add_u32 s{sCNT}, s{sCNT}, 1"), nop(2),
                raw(f"s_cmp_eq_u32 s{sT0}, s{sTOK}", "salu"), raw("s_cbranch_scc1 L_awd", "branch"),
                raw(f"s_cmp_ge_u32 s{sCNT}, {AWLIM}", "salu"), raw("s_cbranch_scc1 L_awd", "branch"), raw(f"s_sleep {AWS}"), raw("s_branch L_awl", "branch"),
                label("L_awd"), barrier()]
        out += kvl(" ".join(seq[APRE:]))
        out += [raw("s_waitcnt vmcnt(14)"), barrier()]
        out += [raw(x.text) for n in range(8) if POS[n] < 0 for x in rd_k(0, n, n, "aw")] + [raw("s_branch L_awback", "branch")]
    out += [label("L_tokslow"), raw("s_sleep 8"), raw(f"buffer_load_dword v{VFL}, v{VFA}, s[{SD2}:{SD2+3}], 0 offen sc1"), raw("s_waitcnt vmcnt(0)"),
            raw("s_branch L_tok", "branch")]
    out += [label("L_B")] + ([raw(f"s_setprio {PRE}")] if PRE >= 0 else []) + epi[0] + bs + early + [label("L_phase")]
    out += fold([polls[0][0], polls[1][0]])
    if STAMP:
        out += [raw(f"s_cmp_lg_u32 s{sPH}, 0", "salu"), raw("s_cbranch_scc1 L_sb5", "branch")] + stamp(3) + [label("L_sb5")] + stamp(5)
    out += fold([polls[0][1], polls[1][1]])
    out += [salu(f"s_mov_b32 s{sCNT}, 3"), label("L_oloop")]
    out += fold([flat(olin[16 * ph + 4 * i: 16 * ph + 4 * i + 4]) for ph in range(2) for i in range(3)])
    out += [salu(f"s_sub_u32 s{sCNT}, s{sCNT}, 1"), salu(f"s_cmp_lg_u32 s{sCNT}, 0"), raw("s_cbranch_scc1 L_oloop", "branch")]
    out += fold([flat(olin[12:16]), flat(olin[28:32])])
    out += [raw(f"s_cmp_lg_u32 s{sPH}, 0", "salu"), raw("s_cbranch_scc1 L_bfin", "branch")] + stamp(4) + phsw
    out += [salu(f"s_mov_b32 s{sPH}, 1"), raw("s_branch L_phase", "branch"), label("L_bfin")]
    fin = stamp(6) + dbg_out() + [raw("s_endpgm")]
    out += bmid + be[0] + fin + [label("L_bepi1")] + be[1] + fin
    out += [label("L_end"), raw("s_endpgm")]
    out += subs
    return out

HDR = open("standalone__mha_block_cached__near_ridge.s.ref").read().split("; Override")[0]
def main(path):
    name = "standalone__mha_block_cached__near_ridge_kernel"
    s = HDR + f"; @launch kernel={name} grid=(512,1,1) block=(256,1,1) lds={LDS_BYTES}\n"
    s += f"; RBS={RBS}\n"
    s += '.amdgcn_target "amdgcn-amd-amdhsa--gfx950"\n.text\n'
    s += f".globl {name}\n.p2align 8\n.type {name},@function\n{name}:\n{emit(gen())}\n"
    s += f""".section .rodata,"a"
.p2align 6
.amdhsa_kernel {name}
  .amdhsa_next_free_vgpr 256
  .amdhsa_next_free_sgpr 102
  .amdhsa_accum_offset 256
  .amdhsa_group_segment_fixed_size 0
  .amdhsa_kernarg_size 64
  .amdhsa_user_sgpr_count 2
  .amdhsa_user_sgpr_kernarg_segment_ptr 1
  .amdhsa_system_sgpr_workgroup_id_x 1
.end_amdhsa_kernel
"""
    open(path, "w").write(s)
if __name__ == "__main__":
    STAMP = "--stamp" in sys.argv
    main([a for a in sys.argv[1:] if not a.startswith("--")][0])
```

```python
import sys, math, struct, os
from asmlib import *

def flat(l): return [x for s in l for x in s]
def f32(x): return struct.unpack("<I", struct.pack("<f", x))[0]
V = valu
SLOT = 8704
KP, VP = 1088, 1056
L0, T0, TMP, TMP2 = 1, 4, 7, 8
VKR, VVR, VDK, VDV = 9, 10, 11, 12
VLANE = 13
TMP3, TMP4 = 14, 15
NM = 16
VDW0, VDW1, VXD, VWR, VXR = 16, 17, 18, 20, 60
FR = 28
VFA, VFL = 62, 63
SP = 64
QR = 112
ACC = 160
def acc(j, dt): return ACC + (j * 8 + dt) * 4
def qf(j, u): return QR + (j * 4 + u) * 4
def sreg(par, j, t): return SP + par * 24 + j * 8 + t * 4
def negm(j): return NM + 4 * j
def fr(n): return FR + 4 * (n % 8)
def xb(buf, half, j): return SP + buf * 24 + (half * 3 + j) * 4
def xf(st, half, j): return SP + (st % 2) * 24 + (half * 3 + j) * 4
SX, SWQ, SK, SV, SO = 4, 8, 12, 16, 20
SDBG = SWQ
SWO, SOUT = SX, SK
sW, sB, sH = 24, 25, 26
sXO, sWO0, sITEM, sKO, sVO, sCNT, sMK, sMV, sTH, sC = 27, 28, 29, 30, 31, 32, 33, 34, 35, 36
sQOK = sWO0
sPUB = sWO0
sT0, sT1, sU = 37, 38, 39
sRET = 40
sKS0, sKS1 = 44, 45
sXC, sV = 46, 47
PX, PK, PV, PWQ, PWO, POUT, PDBG, PWS = 48, 50, 52, 54, 56, 58, 60, 62
sX0 = 64
sMX, sMW, sTK, sR, sCLS = 67, 68, 69, 70, 71
STB = 72
sMG, sNB, sMH, sKH, sM0, sPH = 44, 45, 33, 34, 67, 29

POS = {0: -12, 1: -11, 2: -10, 3: -9, 4: -8, 5: -6, 6: -3, 7: 3}
for n in range(8, 16): POS[n] = 3 * n - 18
POSP = dict(POS)
for n in range(8, 16): POSP[n] = 24 + POS[n - 8]
BAR = 36
DMA_GAPS = [37, 40, 43, 46]

class Step:
    def __init__(self, name):
        self.name = name; self.mf = [None] * 48; self.gaps = {}; self.pre = {}; self.reads = None; self.pos = POS
    def gap(self, m, *ins): self.gaps.setdefault(m, []).extend(ins)
    def before(self, m, *ins): self.pre.setdefault(m, []).extend(ins)

WSL = 8192
XBASE = 4 * WSL
XSL = 24576
LDS_BYTES = XBASE + 2 * XSL
ABORT = 9 * SLOT
def w_slot(i): return (i % 4) * WSL
def x_slot(i): return XBASE + (i % 2) * XSL
KS = [4 * SLOT, 6 * SLOT, 8 * SLOT, 1 * SLOT]
VS = [5 * SLOT, 7 * SLOT, 0, 2 * SLOT]
KBIAS = SLOT
def k_slot(i): return KS[i % 4]
def v_slot(i): return VS[i % 4]
QOFF = 32 << 20
FLGQ = QOFF + 256 * 49152
FLGO = FLGQ + 65536
FLGP = FLGO + 32 * 256
FLGA = FLGP + 32768
WS_BYTES = FLGA + 65536
OXOFF = int(os.environ.get("OXOFF", "0"))
if OXOFF: WS_BYTES = 256 << 20
sTOK = 3

E = os.environ.get
TICK = int(E("TICK", "0"))
STAMP = False
KVFLAGS = E("KVF", " nt")
PRA, PRB, PRO, PRB2 = int(E("PRA", "2")), int(E("PRB", "1")), int(E("PRO", "0")), int(E("PRB2", "-1"))
PSLEEP = int(E("PSLEEP", "24"))
PSN = int(E("PSN", "1"))
QLIMIT = int(E("QLIMIT", "64"))
OLF = E("OLF", " sc1")
OUTF = E("OUTF", "")
WT = int(E("WT", "12"))
WTF = E("WTF", "")
QPOS = int(E("QPOS", "27"))
RBS = 0x20000 + int(E("RPAD", "0"))
BW = int(E("BW", "1"))
PFS = int(E("PFS", "12"))
BWLIM = int(E("BWLIM", "16"))
BWS = int(E("BWS", "8"))
SD2 = 96
WTI = int(E("WTI", "4"))
WTC = int(E("WTC", "1"))
OSL = int(E("OSL", "8"))
sBIT, sFO = 30, 31
S2 = int(E("S2", "-1"))
sSIG = 66
AW = int(E("AW", "1"))
AFS = int(E("AFS", "26"))
AWLIM = int(E("AWLIM", "48"))
AWS = int(E("AWS", "8"))
APRE = int(E("APRE", "3"))
FORCE_SLOW = int(E("FORCE_SLOW", "0"))

def rd_w(tile, a, n, tagp):
    u, T = a >> 1, a & 1
    base = w_slot(tile); va = VWR + T * 4 + u
    return [ds_read("ds_read_b64_tr_b16", fr(n), 2, va, base, tag=(tagp, n)),
            ds_read("ds_read_b64_tr_b16", fr(n) + 2, 2, va, base + 256, tag=(tagp, n))]
def rd_k(tile, a, n, tagp):
    t, u = a >> 2, a & 3
    return [ds_read("ds_read_b128", fr(n), 4, VKR, k_slot(tile) - KBIAS + t * 4 * KP + u * 64, tag=(tagp, n))]
def rd_v(tile, dt, n, tagp):
    base = v_slot(tile) + dt * 32
    return [ds_read("ds_read_b64_tr_b16", fr(n), 2, VVR, base, tag=(tagp, n)),
            ds_read("ds_read_b64_tr_b16", fr(n) + 2, 2, VVR, base + 512, tag=(tagp, n))]
def adv_simple(r): return [salu(f"s_add_u32 s{r}, s{r}, 0x2000"), salu(f"s_and_b32 s{r}, s{r}, 0x3ffff")]
def tile_off(dst, src):
    return [salu(f"s_and_b32 s{sT0}, s{src}, 0xc0000"), salu(f"s_add_u32 s{dst}, s{src}, s{sR}"), salu(f"s_lshl_b32 s{sT0}, s{sT0}, 4"),
            salu(f"s_and_b32 s{dst}, s{dst}, 0x3ffff"), salu(f"s_or_b32 s{dst}, s{dst}, s{sT0}")]
def adv_kv(first=False):
    return [salu(f"s_mov_b32 s{sVO}, s{sKO}"),
            salu(f"s_mov_b32 s{sU}, {5*8192}") if first else salu(f"s_add_u32 s{sU}, s{sU}, 0x2000")] + tile_off(sKO, sU)
def tick_pre(): return [raw("s_memtime s[100:101]"), raw("s_memrealtime s[42:43]")] if TICK else []
def tick_post():
    return [raw(f"s_mov_b32 m0, s{sTK}"), nop(0), raw(f"v_writelane_b32 v0, s100, m0"), raw(f"v_writelane_b32 v15, s42, m0"),
            raw(f"s_add_u32 s{sTK}, s{sTK}, 1"), raw(f"s_and_b32 s{sTK}, s{sTK}, 63") if TICK == 1 else raw(f"s_min_u32 s{sTK}, s{sTK}, 63")] if TICK else []
def dma_k(i):
    s = k_slot(i)
    return [(salu(f"s_add_u32 m0, s{sMK}, {s}"), buf_dma(VDK, SK, f"s{sKO}", 0, tag=("K", i), flags=KVFLAGS)),
            (salu(f"s_add_u32 m0, s{sMK}, {s + KP - 1024}"), buf_dma(VDK, SK, f"s{sKO}", 1024, tag=("K", i), flags=KVFLAGS))]
def dma_v(i):
    s = v_slot(i)
    return [(salu(f"s_add_u32 m0, s{sMV}, {s}"), buf_dma(VDV, SV, f"s{sVO}", 0, tag=("V", i), flags=KVFLAGS)),
            (salu(f"s_add_u32 m0, s{sMV}, {s + VP - 256}"), buf_dma(VDV, SV, f"s{sVO}", 256, tag=("V", i), flags=KVFLAGS))]
def dma_w(i):
    s = w_slot(i); so = f"s{sWO0}"
    return [(salu(f"s_add_u32 m0, s{sMW}, {s}"), buf_dma(VDW0, SWQ, so, 0, tag=("W", i))),
            (salu(f"s_add_u32 m0, s{sMW}, {s + 1024}"), buf_dma(VDW1, SWQ, so, 0, tag=("W", i)))]
def dma_x(t):
    s = x_slot(t)
    return [(salu(f"s_add_u32 m0, s{sMX}, {s + e * 1024 - t * 128}"), buf_dma(VXD + (e & 1), SX, f"s{sX0 + (e >> 1)}", t * 128, tag=("X", t))) for e in range(6)]
def rd_x(t):
    return [ds_read("ds_read_b128", xf(t, half, j), 4, VXR + half, x_slot(t) - XBASE + j * 2048, tag=("x", t)) for half in range(2) for j in range(3)]
def place_dma(st, pairs, gaps=None):
    assert len(pairs) <= len(gaps or DMA_GAPS)
    for (m0i, d), g in zip(pairs, gaps or DMA_GAPS):
        st.before(g, m0i)
        if st.mf[g] is None: st.before(g, nop(0))
        st.gap(g, d)
def sm_half(st, g0, par, j, t, first_l):
    a = sreg(par, j, t); p = sreg(par, j, 0) + 2 * t; tj = T0 + j; lj = L0 + j
    for r in range(4): st.gap(g0 + r, V(f"v_exp_f32 v{a+r}, v{a+r}"))
    if t == 0:
        if first_l: st.gap(g0 + 4, V(f"v_add_f32 v{lj}, v{lj}, v{tj}"))
        st.gap(g0 + 4, V(f"v_add_f32 v{tj}, v{a}, v{a+1}"))
    else:
        st.gap(g0 + 4, V(f"v_add_f32 v{tj}, v{tj}, v{a}"), V(f"v_add_f32 v{tj}, v{tj}, v{a+1}"))
    st.gap(g0 + 5, V(f"v_cvt_pk_bf16_f32 v{p}, v{a}, v{a+1}"), V(f"v_add_f32 v{tj}, v{tj}, v{a+2}"))
    st.gap(g0 + 6, V(f"v_add_f32 v{tj}, v{tj}, v{a+3}"), V(f"v_cvt_pk_bf16_f32 v{p+1}, v{a+2}, v{a+3}"))

def link(steps, early_first=True):
    early = []
    for i, st in enumerate(steps):
        for n in range(16):
            if st.reads is None: continue
            r = st.reads(n)
            if r is None: continue
            p = st.pos[n]
            if p < 0:
                if i == 0:
                    if early_first: st.before(0, *r)
                    else: early += r
                else: steps[i - 1].gap(48 + p, *r)
            else: st.gap(p, *r)
    out = []
    for st in steps:
        if st.reads is not None:
            for n in range(0, 16, 2):
                if st.reads(n) is None: continue
                st.pre.setdefault(3 * n, []).append(wait(lgkm=[(st.name, n), (st.name, n + 1)]))
        out.append(interleave(st.mf, st.gaps, st.pre))
    return out, early

def p_step(ps):
    st = Step(f"P{ps}")
    st.pos = POSP
    if ps + 1 <= 15:
        st.gap(3, wait(vm=[("X", ps + 1)]))
        for j, r in enumerate(rd_x(ps + 1)): st.gap(4 + j, r)
    for half in range(2):
        t = 2 * ps + half
        o = 24 * half
        for a in range(8):
            for j in range(3):
                st.mf[o + a * 3 + j] = mfma(acc(j, a), fr(half * 8 + a), xf(ps, half, j), 'z' if t == 0 else None)
        need = [("W", t + 1)] if t < 31 else [("K", 0)]
        if half == 1 and TICK != 3: st.before(o + 12, *tick_pre(), wait(vm=need, lgkm="all"), barrier(), *tick_post())
        else: st.before(o + 12, wait(vm=need, lgkm="all"), barrier())
        d = []; post = []
        if t + 4 <= 31:
            d += dma_w(t + 4); post.append(salu(f"s_add_u32 s{sWO0}, s{sWO0}, 0x40000"))
        kv = {26: "K0", 27: "V0", 28: "K1 V1", 29: "K2 V2", 30: "K3", 31: "V3"}.get(t, "")
        for it in kv.split():
            if it[0] == "K": d += dma_k(int(it[1])); post += adv_simple(sKO)
            else: d += dma_v(int(it[1])); post += adv_simple(sVO)
        place_dma(st, d, [o + 13, o + 15, o + 17, o + 19])
        st.gap(o + 22, *post)
    if ps + 3 <= 15: place_dma(st, dma_x(ps + 3), [18, 21, 24, 27, 30, 33])
    if ps == 5:
        st.gap(1, V(f"v_mov_b32 v{VFA}, 0"))
        st.gap(11, buf_load(VFL, 1, VFA, SD2, 0, 0, tag="tok", flags=" sc1"))
    if ps == PFS and BW:
        st.gap(1, wait(vm=["tok"]), salu(f"s_or_b32 s{sT0}, s{sCLS}, s{sW}"), raw(f"s_cmp_lg_u32 s{sT0}, 0", "salu"), raw("s_cbranch_scc1 L_nopf", "branch"),
               salu(f"s_and_b32 s{sT0}, s2, 255"), salu(f"s_lshl_b32 s{sT0}, s{sT0}, 7"), salu(f"s_add_u32 s{sT0}, s{sT0}, {FLGP}"), salu("s_mov_b64 exec, 1"), nop(0),
               raw(f"buffer_store_dword v{VFL}, v{VFA}, s[{SO}:{SO+3}], s{sT0} offen sc1"), salu("s_mov_b64 exec, -1"), label("L_nopf"))
    st.reads = lambda n: rd_w(2 * ps + (n >> 3), n & 7, n, st.name)
    if ps == 0: place_dma(st, dma_x(2), [0, 1, 2, 9, 10, 11])
    return st

def qk_mfmas(st, kt1, czero=False):
    par = kt1 & 1
    for t in range(2):
        for u in range(4):
            for j in range(3):
                c = None
                if u == 0: c = 'z' if czero else negm(j)
                st.mf[t * 12 + u * 3 + j] = mfma(sreg(par, j, t), fr(t * 4 + u), qf(j, u), c)
def rowmax_code(par, j, dst, tmp):
    a = sreg(par, j, 0)
    return [V(f"v_max3_f32 v{dst}, v{a}, v{a+1}, v{a+2}"), V(f"v_max3_f32 v{dst}, v{dst}, v{a+3}, v{a+4}"),
            V(f"v_max3_f32 v{dst}, v{dst}, v{a+5}, v{a+6}"), V(f"v_max_f32 v{dst}, v{dst}, v{a+7}"),
            V(f"v_mov_b32 v{tmp}, v{dst}"), nop(1), V(f"v_permlane16_swap_b32 v{dst}, v{tmp}"), nop(1),
            V(f"v_max_f32 v{dst}, v{dst}, v{tmp}"), V(f"v_mov_b32 v{tmp}, v{dst}"), nop(1),
            V(f"v_permlane32_swap_b32 v{dst}, v{tmp}"), nop(1), V(f"v_max_f32 v{dst}, v{dst}, v{tmp}")]
def q_finalize():
    out = [nop(7), nop(1)]
    for j in range(3):
        for dt in range(8):
            for r in range(4): out.append(V(f"v_mul_f32 v{acc(j,dt)+r}, s{sC}, v{acc(j,dt)+r}"))
    for j in range(3):
        for u in range(4):
            q = qf(j, u); a0 = acc(j, 2 * u); a1 = acc(j, 2 * u + 1)
            out += [V(f"v_cvt_pk_bf16_f32 v{q}, v{a0}, v{a0+1}"), V(f"v_cvt_pk_bf16_f32 v{q+1}, v{a0+2}, v{a0+3}"),
                    V(f"v_cvt_pk_bf16_f32 v{q+2}, v{a1}, v{a1+1}"), V(f"v_cvt_pk_bf16_f32 v{q+3}, v{a1+2}, v{a1+3}")]
    out += [salu("s_mov_b32 exec_lo, 0"), nop(0)]
    for j in range(3):
        for u in range(4):
            q = qf(j, u)
            out += [V(f"v_swap_b32 v{q}, v{q+2}"), V(f"v_swap_b32 v{q+1}, v{q+3}")]
    out += [salu("s_mov_b32 exec_lo, -1"), nop(1)]
    return out
def srd(s, lo, hi, nbytes):
    return [salu(f"s_mov_b32 s{s}, s{lo}"), salu(f"s_and_b32 s{s+1}, s{hi}, 0xffff"),
            salu(f"s_mov_b32 s{s+2}, {nbytes}"), salu(f"s_mov_b32 s{s+3}, 0x00020000")]
def q_soff(dst):
    return [salu(f"s_and_b32 s{dst}, s2, 255"), salu(f"s_lshl_b32 s{dst}, s{dst}, 2"), salu(f"s_add_u32 s{dst}, s{dst}, s{sW}"),
            salu(f"s_mul_i32 s{dst}, s{dst}, 12288"), salu(f"s_add_u32 s{dst}, s{dst}, {QOFF}")]
def q_loads(tag):
    o = []
    for i in range(12):
        so = [sXO, sKS0, sKS1][i >> 2]
        o.append(buf_load(QR + 4 * i, 4, TMP3, SO, f"s{so}", (i & 3) * 1024, tag=tag, flags=" sc1"))
    return o
def q_addr():
    return q_soff(sXO) + [salu(f"s_add_u32 s{sKS0}, s{sXO}, 4096"), salu(f"s_add_u32 s{sKS1}, s{sXO}, 8192"), V(f"v_lshlrev_b32 v{TMP3}, 4, v{VLANE}")]
def publish_cnt(lab, hreg_round):
    o = [raw(f"s_cmp_lg_u32 s{sW}, 0", "salu"), raw(f"s_cbranch_scc1 {lab}", "branch")]
    if hreg_round is None: o += [salu(f"s_and_b32 s{sT0}, s{sH}, 16"), salu(f"s_add_u32 s{sT0}, s{sT0}, s{sB}"), salu(f"s_lshl_b32 s{sT0}, s{sT0}, 8")]
    else: o += [salu(f"s_lshl_b32 s{sT0}, s{sB}, 8")]
    o += [salu(f"s_and_b32 s{sT1}, s{sH}, 15"), salu(f"s_lshl_b32 s{sT1}, s{sT1}, 2"), salu(f"s_add_u32 s{sT0}, s{sT0}, s{sT1}"),
          salu(f"s_add_u32 s{sT0}, s{sT0}, {FLGO}"),
          V(f"v_mov_b32 v{VFA}, 0"), V(f"v_mov_b32 v{VFL}, s{sTOK}"), salu("s_mov_b64 exec, 1"), nop(0),
          raw(f"buffer_store_dword v{VFL}, v{VFA}, s[{SO}:{SO+3}], s{sT0} offen sc1"), salu("s_mov_b64 exec, -1"), label(lab)]
    return o
def qflag_off(dst): return [salu(f"s_and_b32 s{dst}, s2, 255"), salu(f"s_lshl_b32 s{dst}, s{dst}, 7"), salu(f"s_add_u32 s{dst}, s{dst}, {FLGQ}")]

def init_step():
    st = Step("I0")
    qk_mfmas(st, 0, czero=True)
    st.reads = lambda n: rd_k(0, n, n, st.name) if n < 8 else None
    z = [V(f"v_mov_b32 v{ACC+i}, 0") for i in range(96)]
    for i, ins in enumerate(z): st.gap(i // 4, ins)
    post = [nop(7), nop(1)]
    for j in range(3):
        post += rowmax_code(0, j, TMP, TMP2)
        for r in range(4): post.append(V(f"v_sub_f32 v{negm(j)+r}, 0, v{TMP}"))
        for r in range(8): post.append(V(f"v_sub_f32 v{sreg(0,j,0)+r}, v{sreg(0,j,0)+r}, v{TMP}"))
        post.append(V(f"v_mov_b32 v{L0+j}, 0"))
    st.gap(23, *post)
    for j in range(3): sm_half(st, 24 + 4 * j, 0, j, 0, False)
    st.before(BAR, *tick_pre(), wait(vm=[("K", 1), ("V", 0)], lgkm="all"), barrier(), *tick_post())
    place_dma(st, dma_k(4))
    st.gap(47, *adv_kv(True))
    return st

def a_step(kt):
    g = kt
    st = Step(f"A{g}")
    par = kt & 1
    last = kt == 31
    site = kt % 4 + (4 if kt >= 28 else 0)
    if not last: qk_mfmas(st, kt + 1)
    for dt in range(8):
        for j in range(3):
            st.mf[24 + dt * 3 + j] = mfma(acc(j, dt), fr(8 + dt), sreg(par, j, 0))
    st.reads = lambda n: ((None if last else rd_k(g + 1, n, n, st.name)) if n < 8 else rd_v(g, n - 8, n, st.name))
    for j in range(3): sm_half(st, 7 * j, par, j, 1, False)
    st.gap(21, V(f"v_max3_f32 v{TMP}, v{T0}, v{T0+1}, v{T0+2}"))
    st.gap(22, V(f"v_cmp_lt_f32 vcc, s{sTH}, v{TMP}"))
    if last: st.gap(22, nop(3))
    st.gap(23, raw(f"s_cbranch_vccnz L_slow{site}", "branch"), label(f"L_back{site}"))
    if last:
        st.gap(23, nop(1))
        for j in range(3): st.gap(24 + j, V(f"v_add_f32 v{L0+j}, v{L0+j}, v{T0+j}"))
        st.before(BAR, *tick_pre(), wait(lgkm="all"), barrier(), *tick_post())
        st.gap(BAR + 1, V(f"v_lshlrev_b32 v{TMP3}, 4, v{VLANE}"))
    else:
        for j in range(3): sm_half(st, 24 + 7 * j, 1 - par, j, 0, True)
        st.before(BAR, *tick_pre(), wait(vm=([("K", g + 2)] if g + 2 <= 31 else []) + [("V", g + 1)], lgkm="all"), barrier(), *tick_post())
        if kt < 28: place_dma(st, dma_k(g + 5) + dma_v(g + 4))
        if kt % 4 == AFS % 4:
            sf = "" if kt < 28 else "t"
            st.gap(BAR + 2, raw(f"s_cmp_eq_u32 s{sCNT}, s{sSIG}", "salu"), raw(f"s_cbranch_scc1 L_sig{sf}", "branch"), label(f"L_sigback{sf}"))
        st.gap(47, *adv_kv())
    return st

def slow_stub(site):
    r = site % 4
    out = [label(f"L_slow{site}"), salu(f"s_sub_u32 s{sKS1}, s{sU}, {5*8192}")] + tile_off(sKS0, sKS1) + [
           salu(f"s_add_u32 s{sKS1}, s{sKS0}, 4096"),
           raw(f"s_call_b64 s[{sRET}:{sRET+1}], L_rebase{r&1}", "branch")]
    for n in range(8, 16):
        if POS[n] <= 23: out += rd_v(r, n - 8, n, "slow")
    out += [raw("s_waitcnt lgkmcnt(0)"), raw(f"s_branch L_back{site}", "branch")]
    return out
def rebase(par):
    out = [label(f"L_rebase{par}"), raw("s_waitcnt lgkmcnt(0)"), nop(7), nop(7),
           V(f"v_and_b32 v{TMP}, 15, v{VLANE}"), V(f"v_lshlrev_b32 v{TMP}, 8, v{TMP}"),
           V(f"v_lshrrev_b32 v{TMP2}, 4, v{VLANE}"), V(f"v_lshl_add_u32 v{TMP}, v{TMP2}, 4, v{TMP}")]
    for t in range(2):
        for u in range(4): out.append(buf_load(fr(t * 4 + u), 4, TMP, SK, f"s{sKS0 + t}", u * 64, tag="sl"))
    out.append(raw("s_waitcnt vmcnt(0)"))
    for t in range(2):
        for u in range(4):
            for j in range(3): out.append(mfma(sreg(par, j, t), fr(t * 4 + u), qf(j, u), negm(j) if u == 0 else None))
    out += [nop(7), nop(7)]
    for j in range(3):
        out += rowmax_code(par, j, TMP, TMP2)
        out += [V(f"v_max_f32 v{TMP}, 0, v{TMP}"), V(f"v_sub_f32 v{TMP2}, 0, v{TMP}"), V(f"v_exp_f32 v{TMP2}, v{TMP2}")]
        for r in range(4): out.append(V(f"v_sub_f32 v{negm(j)+r}, v{negm(j)+r}, v{TMP}"))
        for pp in range(2):
            for r in range(8): out.append(V(f"v_sub_f32 v{sreg(pp,j,0)+r}, v{sreg(pp,j,0)+r}, v{TMP}"))
        out.append(V(f"v_mul_f32 v{L0+j}, v{L0+j}, v{TMP2}"))
        for r in range(32): out.append(V(f"v_mul_f32 v{acc(j,0)+r}, v{acc(j,0)+r}, v{TMP2}"))
        a = sreg(par, j, 0); tj = T0 + j
        for r in range(8): out.append(V(f"v_exp_f32 v{a+r}, v{a+r}"))
        out.append(nop(0))
        out.append(V(f"v_add_f32 v{tj}, v{a}, v{a+1}"))
        for r in range(2, 8): out.append(V(f"v_add_f32 v{tj}, v{tj}, v{a+r}"))
        for r in range(4): out.append(V(f"v_cvt_pk_bf16_f32 v{a+r}, v{a+2*r}, v{a+2*r+1}"))
    out += [nop(3), raw(f"s_setpc_b64 s[{sRET}:{sRET+1}]", "branch")]
    return out

CPF = int(E("CPF", "1"))
def cpf():
    if not CPF: return []
    o = [raw(f"s_cmp_lg_u32 s{sW}, 3", "salu"), raw("s_cbranch_scc1 L_nocpf", "branch"),
         salu(f"s_lshr_b32 s{sT0}, s2, 3"), raw(f"s_cmp_lg_u32 s{sT0}, {CPF}", "salu"), raw("s_cbranch_scc1 L_nocpf", "branch"),
         raw("s_getpc_b64 s[96:97]"), salu("s_and_b32 s96, s96, 0xffffff00"), salu("s_and_b32 s97, s97, 0xffff"), salu(f"s_mov_b32 s98, {CODESZ}"), salu("s_mov_b32 s99, 0x00020000"),
         V(f"v_lshlrev_b32 v{TMP3}, 7, v{VLANE}")]
    for i in range(6):
        o += [salu(f"s_mov_b32 s{sT0}, {i * 8192}"), raw(f"buffer_load_dword v{TMP4}, v{TMP3}, s[96:99], s{sT0} offen")]
    return o + [label("L_nocpf")]
CODESZ = 40000
def head():
    return [raw("s_cmp_ge_u32 s2, 512", "salu"), raw("s_cbranch_scc1 L_end", "branch"),
            raw("s_load_dwordx16 s[48:63], s[0:1], 0"),
            V(f"v_and_b32 v{VLANE}, 63, v0"), V(f"v_lshrrev_b32 v{TMP}, 6, v0"), nop(0),
            V(f"v_readfirstlane_b32 s{sW}, v{TMP}"),
            salu(f"s_lshr_b32 s{sCLS}, s2, 8"), salu(f"s_xor_b32 s{sCLS}, s{sCLS}, 1"), salu(f"s_mov_b32 s{sTK}, 0"),
            raw(f"s_setprio {PRB}"), raw("s_cmp_lt_u32 s2, 256", "salu"), raw("s_cbranch_scc1 L_pr0", "branch"), raw(f"s_setprio {PRA}"), label("L_pr0"),
            *cpf(), raw("s_memrealtime s[42:43]"), raw("s_waitcnt lgkmcnt(0)"),
            salu(f"s_or_b32 s{sT0}, s2, s{sW}"), raw(f"s_cmp_lg_u32 s{sT0}, 0", "salu"), raw("s_cbranch_scc1 L_start", "branch"),
            *srd(SO, PDBG, PDBG + 1, 256), salu("s_or_b32 s42, s42, 1"), V(f"v_mov_b32 v{VFA}, 0"), V(f"v_mov_b32 v{VFL}, s42"),
            salu("s_mov_b64 exec, 1"), nop(0), raw(f"buffer_store_dword v{VFL}, v{VFA}, s[{SO}:{SO+3}], 0 offen sc1"), salu("s_mov_b64 exec, -1"), nop(1)]
def prologue():
    o = [label("L_start"),
         salu(f"s_and_b32 s{sXC}, s2, 7"), salu(f"s_lshr_b32 s{sV}, s2, 3"), salu(f"s_and_b32 s{sV}, s{sV}, 31"),
         salu(f"s_and_b32 s{sT0}, s{sXC}, 3"), salu(f"s_lshl_b32 s{sT0}, s{sT0}, 2"), salu(f"s_and_b32 s{sB}, s{sV}, 3"), salu(f"s_add_u32 s{sB}, s{sB}, s{sT0}"),
         salu(f"s_lshr_b32 s{sT0}, s{sXC}, 2"), salu(f"s_lshl_b32 s{sT0}, s{sT0}, 3"), salu(f"s_lshr_b32 s{sH}, s{sV}, 2"), salu(f"s_add_u32 s{sH}, s{sH}, s{sT0}"),
         salu(f"s_lshl_b32 s{sT0}, s{sCLS}, 4"), salu(f"s_add_u32 s{sH}, s{sH}, s{sT0}")]
    o += srd(SX, PX, PX + 1, 16 * 192 * 1024 * 2) + srd(SWQ, PWQ, PWQ + 1, 1024 * 4096 * 2)
    o += [salu(f"s_lshl_b32 s{sT0}, s{sB}, 5"), salu(f"s_add_u32 s{sT0}, s{sT0}, s{sH}"), salu(f"s_lshl_b32 s{sT0}, s{sT0}, 18"),
          salu(f"s_add_u32 s{SK}, s{PK}, s{sT0}"), salu(f"s_addc_u32 s{SK+1}, s{PK+1}, 0"),
          salu(f"s_add_u32 s{SV}, s{PV}, s{sT0}"), salu(f"s_addc_u32 s{SV+1}, s{PV+1}, 0")]
    o += srd(SK, SK, SK + 1, 0x40000)[1:] + srd(SV, SV, SV + 1, 0x40000)[1:]
    if AW: o += [salu(f"s_cmp_eq_u32 s{sCLS}, 1"), salu(f"s_cselect_b32 s{SK+2}, 0, s{SK+2}"), salu(f"s_mov_b32 s{SV+2}, s{SK+2}")]
    o += srd(SO, PWS, PWS + 1, WS_BYTES) + srd(SD2, PDBG, PDBG + 1, 256)
    A, B, C, D = 2, 3, 4, 5
    o += [salu(f"s_mul_i32 s{sMK}, s{sW}, {2*KP}"), salu(f"s_mul_i32 s{sMV}, s{sW}, {2*VP}"),
          salu(f"s_mov_b32 s{sTH}, {f32(1024.0)}"), salu(f"s_mov_b32 s{sC}, {f32(math.log2(math.e) / math.sqrt(128.0))}"),
          salu(f"s_lshl_b32 s{sR}, s{sV}, 13"), salu(f"s_mov_b32 s{sKO}, s{sR}"), salu(f"s_mov_b32 s{sVO}, s{sR}"),
          salu(f"s_mov_b32 s{sWO0}, 0"), salu(f"s_mul_i32 s{sMX}, s{sW}, 6144"), salu(f"s_lshl_b32 s{sMW}, s{sW}, 11"),
          salu(f"s_mul_i32 s{sXO}, s{sB}, 192"), salu(f"s_mul_i32 s{sT0}, s{sW}, 48"), salu(f"s_add_u32 s{sXO}, s{sXO}, s{sT0}"),
          salu(f"s_lshl_b32 s{sX0}, s{sXO}, 11"), salu(f"s_add_u32 s{sX0+1}, s{sX0}, 0x8000"), salu(f"s_add_u32 s{sX0+2}, s{sX0}, 0x10000"),
          V(f"v_and_b32 v{A}, 15, v{VLANE}"), V(f"v_lshrrev_b32 v{B}, 4, v{VLANE}"),
          V(f"v_xor_b32 v{C}, v{B}, v{VLANE}"), V(f"v_and_b32 v{C}, 7, v{C}"),
          V(f"v_lshrrev_b32 v{D}, 3, v{VLANE}"), V(f"v_lshlrev_b32 v{D}, 11, v{D}"),
          V(f"v_lshl_add_u32 v{VXD}, v{C}, 4, v{D}"),
          V(f"v_xor_b32 v{VXD+1}, 64, v{VXD}"), V(f"v_add_u32 v{VXD+1}, 0x4000, v{VXD+1}"),
          V(f"v_and_b32 v{C}, 1, v{B}"), V(f"v_lshlrev_b32 v{C}, 2, v{C}"),
          V(f"v_lshrrev_b32 v{D}, 1, v{B}"), V(f"v_lshl_add_u32 v{C}, v{D}, 4, v{C}"),
          salu(f"s_lshl_b32 s{sT0}, s{sW}, 1"), salu(f"s_and_b32 s{sT0}, s{sT0}, 3"),
          salu(f"s_lshr_b32 s{sT1}, s{sW}, 1"), salu(f"s_lshl_b32 s{sT1}, s{sT1}, 3"), salu(f"s_add_u32 s{sT0}, s{sT0}, s{sT1}"),
          V(f"v_add_u32 v{C}, s{sT0}, v{C}"), V(f"v_lshlrev_b32 v{C}, 13, v{C}"),
          salu(f"s_lshl_b32 s{sT0}, s{sW}, 2"), V(f"v_xor_b32 v{D}, s{sT0}, v{A}"),
          V(f"v_lshl_add_u32 v{C}, v{D}, 4, v{C}"),
          salu(f"s_lshl_b32 s{sT0}, s{sH}, 8"),
          V(f"v_add_u32 v{VDW0}, s{sT0}, v{C}"), V(f"v_xor_b32 v{VDW1}, 32, v{VDW0}"), V(f"v_add_u32 v{VDW1}, 0x2000, v{VDW1}")]
    def em(pairs):
        r = []
        for m0i, d in pairs: r += [m0i, nop(0), d]
        return r
    def wl(i): return em(dma_w(i)) + [salu(f"s_add_u32 s{sWO0}, s{sWO0}, 0x40000")]
    o += em(dma_x(0)) + wl(0) + wl(1) + em(dma_x(1)) + wl(2) + wl(3)
    o += [V(f"v_lshrrev_b32 v{C}, 1, v{A}"), V(f"v_xor_b32 v{C}, v{C}, v{B}"),
          V(f"v_lshlrev_b32 v{C}, 4, v{C}"), V(f"v_lshl_add_u32 v{C}, v{A}, 7, v{C}"),
          salu(f"s_add_u32 s{sT0}, s{sMX}, {XBASE}"), V(f"v_add_u32 v{VXR}, s{sT0}, v{C}"), V(f"v_xor_b32 v{VXR+1}, 64, v{VXR}"),
          V(f"v_and_b32 v{C}, 1, v{B}"), V(f"v_lshlrev_b32 v{C}, 2, v{C}"), V(f"v_lshrrev_b32 v{D}, 2, v{A}"), V(f"v_add_u32 v{C}, v{C}, v{D}"),
          V(f"v_lshlrev_b32 v{VWR}, 10, v{C}"),
          V(f"v_lshrrev_b32 v{D}, 1, v{B}"), V(f"v_lshl_add_u32 v{VWR}, v{D}, 9, v{VWR}"),
          V(f"v_lshlrev_b32 v{C}, 1, v{C}"), V(f"v_and_b32 v{D}, 3, v{A}"), V(f"v_xor_b32 v{C}, v{C}, v{D}"),
          V(f"v_lshl_add_u32 v{VWR}, v{C}, 4, v{VWR}"),
          V(f"v_lshrrev_b32 v{D}, 1, v{D}"), V(f"v_lshl_add_u32 v{VWR}, v{D}, 3, v{VWR}")]
    for T in range(2):
        for u in range(4):
            if T or u: o.append(V(f"v_xor_b32 v{VWR + T * 4 + u}, {u * 64 + T * 8}, v{VWR}"))
    o += [V(f"v_lshrrev_b32 v{C}, 2, v{A}"), V(f"v_mul_u32_u24 v{VKR}, {KP}, v{C}"),
          V(f"v_and_b32 v{C}, 3, v{A}"), V(f"v_lshl_add_u32 v{VKR}, v{C}, 8, v{VKR}"),
          V(f"v_xor_b32 v{C}, v{C}, v{B}"), V(f"v_lshl_add_u32 v{VKR}, v{C}, 4, v{VKR}"), V(f"v_add_u32 v{VKR}, {KBIAS}, v{VKR}"),
          V(f"v_and_b32 v{C}, 1, v{B}"), V(f"v_lshlrev_b32 v{C}, 2, v{C}"), V(f"v_lshrrev_b32 v{D}, 2, v{A}"), V(f"v_add_u32 v{C}, v{C}, v{D}"),
          V(f"v_mul_u32_u24 v{C}, {VP}, v{C}"),
          V(f"v_lshrrev_b32 v{D}, 1, v{B}"), V(f"v_lshl_add_u32 v{VVR}, v{D}, 8, v{C}"),
          V(f"v_and_b32 v{D}, 3, v{A}"), V(f"v_lshl_add_u32 v{VVR}, v{D}, 3, v{VVR}"),
          V(f"v_and_b32 v{C}, 3, v{A}"), V(f"v_xor_b32 v{C}, v{C}, v{B}"), V(f"v_and_b32 v{D}, 12, v{A}"), V(f"v_or_b32 v{C}, v{C}, v{D}"),
          V(f"v_lshlrev_b32 v{C}, 4, v{C}"), V(f"v_lshl_add_u32 v{C}, v{B}, 8, v{C}"),
          salu(f"s_lshl_b32 s{sT0}, s{sW}, 11"), V(f"v_add_u32 v{VDK}, s{sT0}, v{C}"),
          V(f"v_lshlrev_b32 v{C}, 4, v{A}"), V(f"v_lshl_add_u32 v{C}, v{B}, 11, v{C}"),
          salu(f"s_lshl_b32 s{sT0}, s{sW}, 9"), V(f"v_add_u32 v{VDV}, s{sT0}, v{C}"),
          wait(vm=[("X", 0)]), *rd_x(0), wait(vm=[("W", 0)], lgkm="all")]
    if WT & 4 and not WTI:
        o += [raw(f"s_cmp_lg_u32 s{sCLS}, 1", "salu"), raw("s_cbranch_scc1 L_nowt", "branch")] + srd(92, PWO, PWO + 1, 4096 * 1024 * 2) + [
              salu(f"s_lshl_b32 s{sT0}, s2, 2"), salu(f"s_add_u32 s{sT0}, s{sT0}, s{sW}"), salu(f"s_lshl_b32 s{sT0}, s{sT0}, 13"),
              V(f"v_lshlrev_b32 v{TMP3}, 7, v{VLANE}"), raw(buf_load(VFL, 1, TMP3, 92, f"s{sT0}", 0, flags=WTF).text), label("L_nowt")]
    if BW:
        o += [raw(f"s_cmp_lg_u32 s{sCLS}, 1", "salu"), raw("s_cbranch_scc1 L_bwd", "branch"), raw(f"s_cmp_lg_u32 s{sW}, 0", "salu"), raw("s_cbranch_scc1 L_bwd", "branch"),
              V(f"v_mov_b32 v{VFA}, 0"), salu(f"s_mov_b32 s{sCNT}, 0"), salu(f"s_and_b32 s{sU}, s2, 255"), salu(f"s_lshl_b32 s{sU}, s{sU}, 7"), salu(f"s_add_u32 s{sU}, s{sU}, {FLGP}"),
              label("L_bwl"), raw(f"s_sleep {BWS}"),
              *([raw(f"s_cmp_lg_u32 s{sCNT}, {WTI}", "salu"), raw("s_cbranch_scc1 L_nowt", "branch")] + srd(92, PWO, PWO + 1, 4096 * 1024 * 2) + [
                salu(f"s_lshl_b32 s{sT0}, s2, 15"), V(f"v_lshlrev_b32 v{TMP3}, 7, v{VLANE}")] +
                flat([[raw(buf_load(TMP2, 1, TMP3, 92, f"s{sT0}", 0, flags=WTF).text), salu(f"s_add_u32 s{sT0}, s{sT0}, 8192")] for i in range(4)]) +
                [label("L_nowt")] if WT & 4 and WTI else []),
              raw(f"buffer_load_dword v{VFL}, v{VFA}, s[{SD2}:{SD2+3}], 0 offen sc1"),
              raw(f"buffer_load_dword v{TMP}, v{VFA}, s[{SO}:{SO+3}], s{sU} offen sc1"), raw("s_waitcnt vmcnt(0)"),
              raw(f"v_readfirstlane_b32 s{sT0}, v{VFL}"), raw(f"v_readfirstlane_b32 s{sT1}, v{TMP}"),
              salu(f"s_add_u32 s{sCNT}, s{sCNT}, 1"), raw(f"s_cmp_ge_u32 s{sCNT}, {BWLIM}", "salu"), raw("s_cbranch_scc1 L_bwd", "branch"), nop(1),
              raw(f"s_cmp_eq_u32 s{sT0}, 0", "salu"), raw("s_cbranch_scc1 L_bwl", "branch"),
              raw(f"s_cmp_lg_u32 s{sT0}, s{sT1}", "salu"), raw("s_cbranch_scc1 L_bwl", "branch"), label("L_bwd")]
    o += [barrier()]
    return o

def a_epilogue(item):
    o = [nop(7), nop(1)]
    o += [salu(f"s_mul_i32 s{sT0}, s{sB}, 12"), salu(f"s_mul_i32 s{sT1}, s{sW}, 3"), salu(f"s_add_u32 s{sT0}, s{sT0}, s{sT1}"),
          salu(f"s_mul_i32 s{sT0}, s{sT0}, {RBS}"), salu(f"s_lshl_b32 s{sT1}, s{sH}, 12"), salu(f"s_add_u32 s{sT0}, s{sT0}, s{sT1}")]
    for j in range(3):
        l = L0 + j
        o += [V(f"v_mov_b32 v{TMP}, v{l}"), nop(1), V(f"v_permlane16_swap_b32 v{l}, v{TMP}"), nop(1), V(f"v_add_f32 v{l}, v{l}, v{TMP}"),
              V(f"v_mov_b32 v{TMP}, v{l}"), nop(1), V(f"v_permlane32_swap_b32 v{l}, v{TMP}"), nop(1), V(f"v_add_f32 v{l}, v{l}, v{TMP}"),
              V(f"v_rcp_f32 v{l}, v{l}"), nop(0)]
        for u in range(4):
            a = acc(j, 2 * u)
            for r in range(8): o.append(V(f"v_mul_f32 v{a+r}, v{a+r}, v{l}"))
            q = SP + (j * 4 + u) * 4
            for r in range(4): o.append(V(f"v_cvt_pk_bf16_f32 v{q+r}, v{a+2*r}, v{a+2*r+1}"))
            o.append(buf_store(q, 4, TMP3, SO, f"s{sT0}", u * 1024, tag="st", flags=[E("OSF0", " sc1 nt"), " sc1"][item]))
        if j < 2: o.append(salu(f"s_add_u32 s{sT0}, s{sT0}, {RBS}"))
    return o

def stamp(i):
    if not STAMP: return []
    return [raw(f"s_memrealtime s[{STB+4*i}:{STB+1+4*i}]"), raw(f"s_memtime s[{STB+2+4*i}:{STB+3+4*i}]")]
def dbg_out():
    o = []
    if TICK:
        o += [salu(f"s_mov_b32 s{SO+2}, 0x20000000"), salu(f"s_lshl_b32 s39, s2, 2"), salu(f"s_add_u32 s39, s39, s24"), salu("s_lshl_b32 s39, s39, 9"),
              salu(f"s_add_u32 s39, s39, {66 << 20}"), V(f"v_lshlrev_b32 v2, 2, v{VLANE}"), nop(4),
              buf_store(0, 1, 2, SO, "s39", 0, tag="dbg"), buf_store(15, 1, 2, SO, "s39", 256, tag="dbg"), nop(1)]
    if STAMP:
        o += [raw("s_waitcnt lgkmcnt(0)"), salu(f"s_mov_b32 s{SO+2}, 0x20000000"),
              salu(f"s_lshl_b32 s39, s2, 2"), salu(f"s_add_u32 s39, s39, s24"), salu("s_lshl_b32 s39, s39, 6"), salu(f"s_add_u32 s39, s39, {64 << 20}"),
              V(f"v_mov_b32 v2, 0"), salu("s_mov_b64 exec, 1")]
        for i in range(7):
            o += [V(f"v_mov_b32 v4, s{STB+4*i}"), V(f"v_mov_b32 v5, s{STB+2+4*i}"), buf_store(4, 2, 2, SO, "s39", 8 * i, tag="dbg"), nop(1)]
    return o

SLW = 8 * VP
ODW, OX0, OWR = 16, 20, 23
OFA = 25
def o_rdw(tile, a, n, tagp):
    u, T = a >> 1, a & 1
    base = (tile % 4) * SLW + u * 64
    return [ds_read("ds_read_b64_tr_b16", fr(n), 2, OWR + T, base, tag=(tagp, n)),
            ds_read("ds_read_b64_tr_b16", fr(n) + 2, 2, OWR + T, base + 512, tag=(tagp, n))]
def o_dmaw(i):
    s = (i % 4) * SLW
    return [(salu(f"s_add_u32 m0, s{sM0}, {s + e * VP}"), buf_dma(ODW + e, SV if E("NOW") else SWO, f"s{sWO0}", 0, tag=("OW", i), flags=E("OWF", ""))) for e in range(4)]
def o_xl(ps, half, j):
    return buf_load(xb(ps % 4, half, j), 4, OX0 + j, SV if E("NOX") else SO, f"s{sXO}", half * 1024, tag=("OX", ps, half), flags=OLF)
def flag_load(tag=None):
    i = buf_load(VFL, 1, VFA, SO, f"s{sFO}", 0, tag=tag, flags=" sc1")
    return i if tag else raw(i.text)
def o_step(ps):
    st = Step(f"O{ps}")
    st.pos = POSP
    buf = ps % 4
    r = ps % 4
    for half in range(2):
        t = 2 * ps + half; o = 24 * half
        for a in range(8):
            for j in range(3): st.mf[o + a * 3 + j] = mfma(acc(j, a), fr(half * 8 + a), xb(buf, half, j))
        st.before(o, wait(vm=[("OX", ps, half)]))
        w = wait(vm=[("OW", t + 1)] if t < 63 else [], lgkm="all")
        if half == 1: st.before(o + 12, *tick_pre(), w, barrier(), *tick_post())
        else: st.before(o + 12, w, barrier())
        if t + 4 <= 63:
            place_dma(st, o_dmaw(t + 4), [o + 13, o + 15, o + 17, o + 19])
            if r == 1 and half == 1 and ps < 28:
                st.gap(o + 22, salu(f"s_cmp_eq_u32 s{sCNT}, 4"), salu(f"s_cselect_b32 s{sT0}, 33, 1"), salu(f"s_lshl_b32 s{sT0}, s{sT0}, 16"), salu(f"s_add_u32 s{sWO0}, s{sWO0}, s{sT0}"))
            else: st.gap(o + 22, salu(f"s_add_u32 s{sWO0}, s{sWO0}, 0x10000"))
    st.reads = lambda n: o_rdw(2 * ps + (n >> 3), n & 7, n, st.name)
    if ps < 28:
        if r & 1:
            if r == 1:
                st.before(0, salu(f"s_cmp_eq_u32 s{sCNT}, 4"), salu(f"s_cselect_b32 s{sT0}, 8, 0"), salu(f"s_add_u32 s{sBIT}, s{sBIT}, s{sT0}"),
                          salu(f"s_lshl_b32 s{sT0}, s{sT0}, 12"), salu(f"s_add_u32 s{sXO}, s{sXO}, s{sT0}"))
            st.gap(0, raw(f"s_bitcmp1_b32 vcc_lo, s{sBIT}", "salu"), raw(f"s_cbranch_scc0 L_os{r}", "branch"), label(f"L_osback{r}"),
                   salu(f"s_add_u32 s{sBIT}, s{sBIT}, 1"), flag_load(("FL", ps)))
        else:
            st.gap(44, wait(vm=[("FL", ps - 1)]), V(f"v_cmp_eq_u32 vcc, s{sTOK}, v{VFL}"))
            if r == 0 and WT & 2:
                st.gap(40, raw(f"s_cmp_eq_u32 s{sCNT}, {7 - WTC}", "salu"), raw("s_cbranch_scc1 L_wt1", "branch"), label("L_wt1back"))
    if ps + 3 < 32:
        for k, g in enumerate([1, 4, 7, 25, 28, 31]): st.gap(g, o_xl(ps + 3, k // 3, k % 3))
        st.gap(33, salu(f"s_add_u32 s{sXO}, s{sXO}, 2048"))
    return st
def o_stub(r):
    return [label(f"L_os{r}"), salu(f"s_mov_b32 s{sT1}, 0"), label(f"L_osl{r}"), flag_load(), raw("s_waitcnt vmcnt(0)"),
            raw(f"v_cmp_eq_u32 vcc, s{sTOK}, v{VFL}"), salu(f"s_add_u32 s{sT1}, s{sT1}, 1"), nop(3),
            raw(f"s_bitcmp1_b32 vcc_lo, s{sBIT}", "salu"), raw(f"s_cbranch_scc1 L_osback{r}", "branch"),
            raw(f"s_cmp_ge_u32 s{sT1}, {1 << 18}"), raw(f"s_cbranch_scc1 L_osback{r}", "branch"), raw(f"s_sleep {OSL}"), raw(f"s_branch L_osl{r}", "branch")]
def wtouch():
    return [salu(f"s_lshl_b32 s{sT0}, s{sPH}, 4"), salu(f"s_lshl_b32 s{sT1}, s{sKH}, 3"), salu(f"s_add_u32 s{sT0}, s{sT0}, s{sT1}"),
            salu(f"s_and_b32 s{sT1}, s{sV}, 7"), salu(f"s_add_u32 s{sT0}, s{sT0}, s{sT1}"), salu(f"s_lshl_b32 s{sT0}, s{sT0}, 1"),
            salu(f"s_add_u32 s{sT0}, s{sT0}, s{sMH}"), salu(f"s_lshl_b32 s{sT0}, s{sT0}, 17"),
            salu(f"s_lshl_b32 s{sT1}, s{sNB}, 8"), salu(f"s_add_u32 s{sT0}, s{sT0}, s{sT1}"), V(f"v_lshlrev_b32 v{TMP3}, 11, v{VLANE}"),
            raw(buf_load(TMP, 1, TMP3, SWO, f"s{sT0}", 0, flags=WTF).text), raw(buf_load(TMP2, 1, TMP3, SWO, f"s{sT0}", 128, flags=WTF).text)]
def wt_fin():
    if not WT & 8: return []
    return srd(SWO, PWO, PWO + 1, 4096 * 1024 * 2) + [
        salu(f"s_lshr_b32 s{sT0}, s{sXC}, 2"), salu(f"s_lshl_b32 s{sT0}, s{sT0}, 2"), salu(f"s_lshr_b32 s{sNB}, s{sV}, 3"), salu(f"s_add_u32 s{sNB}, s{sNB}, s{sT0}"),
        salu(f"s_and_b32 s{sMH}, s{sW}, 1"), salu(f"s_lshr_b32 s{sKH}, s{sW}, 1"), salu(f"s_mov_b32 s{sPH}, 1")] + wtouch() + [raw("s_waitcnt vmcnt(0)")]
def b_setup():
    A, B, C, D = 2, 3, 4, 5
    o = []
    o += srd(SWO, PWO, PWO + 1, 4096 * 1024 * 2) + srd(SOUT, POUT, POUT + 1, 3072 * 1024 * 2)
    o += [salu(f"s_and_b32 s{sT0}, s{sXC}, 3"), salu(f"s_lshl_b32 s{sT0}, s{sT0}, 3"), salu(f"s_and_b32 s{sMG}, s{sV}, 7"), salu(f"s_add_u32 s{sMG}, s{sMG}, s{sT0}"),
          salu(f"s_lshr_b32 s{sT0}, s{sXC}, 2"), salu(f"s_lshl_b32 s{sT0}, s{sT0}, 2"), salu(f"s_lshr_b32 s{sNB}, s{sV}, 3"), salu(f"s_add_u32 s{sNB}, s{sNB}, s{sT0}"),
          salu(f"s_and_b32 s{sMH}, s{sW}, 1"), salu(f"s_lshr_b32 s{sKH}, s{sW}, 1"), salu(f"s_mov_b32 s{sPH}, 0"),
          salu(f"s_mul_i32 s{sM0}, s{sKH}, {4*SLW}"), salu(f"s_mul_i32 s{sT0}, s{sMH}, {4*VP}"), salu(f"s_add_u32 s{sM0}, s{sM0}, s{sT0}"),
          salu(f"s_lshl_b32 s{sWO0}, s{sKH}, 21"),
          salu(f"s_mul_i32 s{sXO}, s{sMG}, 6"), salu(f"s_mul_i32 s{sT0}, s{sMH}, 3"), salu(f"s_add_u32 s{sXO}, s{sXO}, s{sT0}"),
          salu(f"s_mul_i32 s{sXO}, s{sXO}, {RBS}"), salu(f"s_lshl_b32 s{sT0}, s{sKH}, 15"), salu(f"s_add_u32 s{sXO}, s{sXO}, s{sT0}"), *([salu(f"s_add_u32 s{sXO}, s{sXO}, {OXOFF}")] if OXOFF else []),
          V(f"v_and_b32 v{A}, 15, v{VLANE}"), V(f"v_lshrrev_b32 v{B}, 4, v{VLANE}"),
          V(f"v_lshlrev_b32 v{OX0}, 4, v{VLANE}"), V(f"v_add_u32 v{OX0+1}, {RBS}, v{OX0}"), V(f"v_add_u32 v{OX0+2}, {2*RBS}, v{OX0}"),
          V(f"v_lshlrev_b32 v{C}, 14, v{B}"), V(f"v_lshl_add_u32 v{C}, v{A}, 4, v{C}"),
          salu(f"s_lshl_b32 s{sT0}, s{sMH}, 13"), salu(f"s_lshl_b32 s{sT1}, s{sNB}, 8"), salu(f"s_add_u32 s{sT0}, s{sT0}, s{sT1}"),
          V(f"v_add_u32 v{ODW}, s{sT0}, v{C}"), V(f"v_add_u32 v{ODW+1}, 0x800, v{ODW}"),
          V(f"v_add_u32 v{ODW+2}, 0x1000, v{ODW}"), V(f"v_add_u32 v{ODW+3}, 0x1800, v{ODW}"),
          V(f"v_and_b32 v{C}, 1, v{B}"), V(f"v_lshlrev_b32 v{C}, 2, v{C}"), V(f"v_lshrrev_b32 v{D}, 2, v{A}"), V(f"v_add_u32 v{C}, v{C}, v{D}"),
          V(f"v_mul_u32_u24 v{C}, {VP}, v{C}"),
          V(f"v_lshrrev_b32 v{D}, 1, v{B}"), V(f"v_lshl_add_u32 v{C}, v{D}, 8, v{C}"),
          V(f"v_and_b32 v{D}, 3, v{A}"), V(f"v_lshl_add_u32 v{C}, v{D}, 4, v{C}"),
          salu(f"s_mul_i32 s{sT0}, s{sKH}, {4*SLW}"), V(f"v_add_u32 v{C}, s{sT0}, v{C}"),
          V(f"v_lshrrev_b32 v{D}, 1, v{D}"), V(f"v_lshl_add_u32 v{OWR}, v{D}, 3, v{C}"),
          V(f"v_xor_b32 v{D}, 1, v{D}"), V(f"v_lshl_add_u32 v{OWR+1}, v{D}, 3, v{C}")]
    for i in range(4):
        for m0i, d in o_dmaw(i): o += [m0i, nop(0), d]
        o.append(salu(f"s_add_u32 s{sWO0}, s{sWO0}, 0x10000"))
    o += [V(f"v_mov_b32 v{ACC+i}, 0") for i in range(96)]
    o += [wait(vm=["st"]), barrier()] + publish_cnt("L_pub0", None) + [raw(f"s_setprio {PRO}")] + stamp(2)
    if WT & 1: o += wtouch()
    o += [salu(f"s_mov_b32 s{sPH}, 1"),
          V(f"v_and_b32 v{C}, 1, v{B}"), V(f"v_lshlrev_b32 v{C}, 12, v{C}"), V(f"v_lshl_add_u32 v{OFA}, v{A}, 2, v{C}"),
          salu(f"s_lshr_b32 s{sFO}, s{sMG}, 1"), salu(f"s_lshl_b32 s{sFO}, s{sFO}, 8"), salu(f"s_add_u32 s{sFO}, s{sFO}, {FLGO}"),
          salu(f"s_lshl_b32 s{sBIT}, s{sKH}, 3")]
    if S2 >= 0:
        o += [raw(f"s_cmp_lg_u32 s{sW}, 0", "salu"), raw("s_cbranch_scc1 L_owd", "branch"),
              V(f"v_mov_b32 v{VFA}, 0"), salu(f"s_mov_b32 s{sCNT}, 0"), salu(f"s_lshl_b32 s{sT1}, s2, 7"), salu(f"s_add_u32 s{sT1}, s{sT1}, {FLGA}"),
              label("L_owl"), raw(f"buffer_load_dword v{VFL}, v{VFA}, s[{SO}:{SO+3}], s{sT1} offen sc1"), raw("s_waitcnt vmcnt(0)"),
              raw(f"v_readfirstlane_b32 s{sT0}, v{VFL}"), salu(f"s_add_u32 s{sCNT}, s{sCNT}, 1"), nop(2),
              raw(f"s_cmp_eq_u32 s{sT0}, s{sTOK}", "salu"), raw("s_cbranch_scc1 L_owd", "branch"),
              raw(f"s_cmp_ge_u32 s{sCNT}, {AWLIM}", "salu"), raw("s_cbranch_scc1 L_owd", "branch"), raw(f"s_sleep {AWS}"), raw("s_branch L_owl", "branch"),
              label("L_owd")]
    o += [wait(vm=[("OW", 0)]), barrier()]
    return o
def b_poll():
    o = [V(f"v_mov_b32 v{VFA}, v{OFA}"), salu(f"s_mov_b32 s{sCNT}, 0"), label("L_bpl"), flag_load(), raw("s_waitcnt vmcnt(0)"),
         raw(f"v_cmp_eq_u32 vcc, s{sTOK}, v{VFL}"), salu(f"s_add_u32 s{sCNT}, s{sCNT}, 1"), nop(3),
         raw(f"s_lshr_b32 s{sT0}, vcc_lo, s{sBIT}"), raw(f"s_and_b32 s{sT0}, s{sT0}, 3"), raw(f"s_cmp_eq_u32 s{sT0}, 3"), raw("s_cbranch_scc1 L_bpd", "branch"),
         raw(f"s_cmp_ge_u32 s{sCNT}, {1 << 17}"), raw("s_cbranch_scc1 L_bpd", "branch"),
         raw(f"s_sleep {PSLEEP}"), raw("s_branch L_bpl", "branch"),
         label("L_bpd"), salu(f"s_add_u32 s{sBIT}, s{sBIT}, 2")] + stamp(3) + [flag_load(("FL", -1))]
    for k in range(3):
        o += [o_xl(k, h, j) for h in range(2) for j in range(3)] + [salu(f"s_add_u32 s{sXO}, s{sXO}, 2048")]
    return o + [wait(vm=[("OX", 2, 1)])]
def b_epi(kh):
    keep = [2 * kh, 2 * kh + 1]; send = [2 - 2 * kh, 3 - 2 * kh]
    o = []; idx = 0
    for j in range(3):
        for u in send:
            for T in range(2):
                o.append(ds_write("ds_write_b128", TMP, acc(j, 2 * u + T), 4, idx * 1024, tag="w")); idx += 1
    o += [wait(lgkm="all"), barrier()]
    idx = 0; RB = SP
    for j in range(3):
        for u in keep:
            for T in range(2):
                o.append(ds_read("ds_read_b128", RB + idx * 4, 4, TMP2, idx * 1024, tag=("r", idx))); idx += 1
    idx = 0; QB = QR
    for j in range(3):
        for ui, u in enumerate(keep):
            o.append(wait(lgkm=[("r", idx), ("r", idx + 1)]))
            a = acc(j, 2 * u)
            for r in range(8): o.append(V(f"v_add_f32 v{a+r}, v{a+r}, v{RB+idx*4+r}"))
            q = QB + (j * 2 + ui) * 4
            for r in range(4): o.append(V(f"v_cvt_pk_bf16_f32 v{q+r}, v{a+2*r}, v{a+2*r+1}"))
            idx += 2
    o += [salu("s_mov_b32 exec_lo, 0"), nop(0)]
    for k in range(6):
        q = QB + k * 4
        o += [V(f"v_swap_b32 v{q}, v{q+2}"), V(f"v_swap_b32 v{q+1}, v{q+3}")]
    o += [salu("s_mov_b32 exec_lo, -1"), nop(1)]
    for j in range(3):
        for ui, u in enumerate(keep):
            o.append(buf_store(QB + (j * 2 + ui) * 4, 4, TMP3, SOUT, f"s{sT0}", u * 64, tag="st", flags=OUTF))
        if j < 2: o.append(salu(f"s_add_u32 s{sT0}, s{sT0}, 0x8000"))
    return o

def check(full, what):
    errs, _, _ = resolve_waits(full)
    errs += check_hazards(full)
    if errs:
        print("\n".join(errs[:40]), file=sys.stderr); raise SystemExit(f"{what}: generation errors: {len(errs)}")

def gen():
    hd = head(); pro = prologue()
    steps = [p_step(ps) for ps in range(16)] + [init_step()] + [a_step(kt) for kt in range(32)]
    lin, _ = link(steps)
    qfin = q_finalize() + [wait(vm=["tok"]), label("L_tok"), V(f"v_readfirstlane_b32 s{sTOK}, v{VFL}"), nop(3), raw(f"s_cmp_eq_u32 s{sTOK}, 0", "salu"),
                           raw("s_cbranch_scc1 L_tokslow", "branch")]
    epi = [a_epilogue(0), a_epilogue(1)]
    P = flat(lin[:16])
    I0, A0 = lin[16], lin[17:49]
    import copy
    front = hd + pro + P + qfin + I0 + flat(A0)
    check(front + epi[1], "round 1")
    osteps = [o_step(ps) for ps in range(32)]
    olin, early = link(osteps, early_first=False)
    bs = b_setup(); bp = b_poll()
    bmid = [wait(vm="all", lgkm="all"), nop(7), nop(1), barrier(),
            salu(f"s_mul_i32 s{sT0}, s{sW}, 12288"), V(f"v_lshlrev_b32 v{TMP2}, 4, v{VLANE}"), V(f"v_add_u32 v{TMP}, s{sT0}, v{TMP2}"),
            salu(f"s_xor_b32 s{sT1}, s{sW}, 2"), salu(f"s_mul_i32 s{sT1}, s{sT1}, 12288"), V(f"v_add_u32 v{TMP2}, s{sT1}, v{TMP2}"),
            V(f"v_and_b32 v{TMP3}, 15, v{VLANE}"), V(f"v_lshlrev_b32 v{TMP3}, 11, v{TMP3}"), V(f"v_lshrrev_b32 v2, 4, v{VLANE}"),
            V(f"v_lshl_add_u32 v{TMP3}, v2, 4, v{TMP3}"),
            salu(f"s_mul_i32 s{sT0}, s{sMG}, 96"), salu(f"s_mul_i32 s{sT1}, s{sMH}, 48"), salu(f"s_add_u32 s{sT0}, s{sT0}, s{sT1}"),
            salu(f"s_lshl_b32 s{sT0}, s{sT0}, 11"), salu(f"s_lshl_b32 s{sT1}, s{sNB}, 8"), salu(f"s_add_u32 s{sT0}, s{sT0}, s{sT1}"),
            salu(f"s_cmp_lg_u32 s{sKH}, 0"), raw("s_cbranch_scc1 L_bepi1", "branch")]
    be = [b_epi(0), b_epi(1)]
    for e in be:
        pre = [copy.copy(x) for x in front]
        fullb = pre + epi[0] + bs + early + bp + flat(olin) + bmid + e
        check(fullb, "role B")
    subs = []
    for s in range(8): subs += slow_stub(s)
    for par in range(2):
        rb = rebase(par)
        errs = check_hazards(rb); assert not errs, errs
        subs += rb
    out = hd[:2] + stamp(0) + hd[2:] + pro + P + stamp(1) + qfin
    if PRB2 >= 0: out += [raw(f"s_cmp_eq_u32 s{sCLS}, 0", "salu"), raw("s_cbranch_scc1 L_pr1", "branch"), raw(f"s_setprio {PRB2}"), label("L_pr1")]
    assert S2 < 0 or S2 % 4 == AFS % 4
    out += [salu(f"s_cmp_eq_u32 s{sCLS}, 1"), salu(f"s_cselect_b32 s{sSIG}, {7 - S2 // 4 if S2 >= 0 else -1}, {7 - AFS // 4}")]
    if AW: out += [raw(f"s_cmp_eq_u32 s{sCLS}, 1", "salu"), raw("s_cbranch_scc1 L_aw", "branch"), label("L_awback")]
    out += I0
    out += [salu(f"s_mov_b32 s{sCNT}, 7"), label("L_aloop")]
    out += fold([flat(A0[4 * i:4 * i + 4]) for i in range(7)])
    out += [salu(f"s_sub_u32 s{sCNT}, s{sCNT}, 1"), salu(f"s_cmp_lg_u32 s{sCNT}, 0"), raw("s_cbranch_scc1 L_aloop", "branch")]
    out += flat(A0[28:])
    out += [raw(f"s_cmp_eq_u32 s{sCLS}, 0", "salu"), raw("s_cbranch_scc1 L_B", "branch")]
    out += stamp(5) + epi[1] + [raw("s_waitcnt vmcnt(0)"), barrier()] + publish_cnt("L_finpub", None) + stamp(6) + wt_fin() + dbg_out() + [raw("s_endpgm")]
    if AW:
        for sf in ("", "t"):
            out += [label(f"L_sig{sf}"), raw(f"s_cmp_lg_u32 s{sW}, 0", "salu"), raw(f"s_cbranch_scc1 L_sigback{sf}", "branch"),
                    salu(f"s_xor_b32 s{sT0}, s2, 256"), salu(f"s_lshl_b32 s{sT0}, s{sT0}, 7"), salu(f"s_add_u32 s{sT0}, s{sT0}, {FLGA}"),
                    V(f"v_mov_b32 v{VFA}, 0"), V(f"v_mov_b32 v{VFL}, s{sTOK}"), salu("s_mov_b64 exec, 1"), nop(0),
                    raw(f"buffer_store_dword v{VFL}, v{VFA}, s[{SO}:{SO+3}], s{sT0} offen sc1"), salu("s_mov_b64 exec, -1"), raw(f"s_branch L_sigback{sf}", "branch")]
        def kvl(names):
            r = []
            for it in names.split():
                for m0i, d in (dma_k if it[0] == "K" else dma_v)(int(it[1])): r += [m0i, nop(0), raw(d.text)]
                r += adv_simple(sKO if it[0] == "K" else sVO)
            return r
        seq = "K0 V0 K1 V1 K2 V2 K3 V3".split()
        out += [label("L_aw"), raw("s_waitcnt vmcnt(0) lgkmcnt(0)"), barrier(),
                salu(f"s_mov_b32 s{SK+2}, 0x40000"), salu(f"s_mov_b32 s{SV+2}, 0x40000"), salu(f"s_mov_b32 s{sKO}, s{sR}"), salu(f"s_mov_b32 s{sVO}, s{sR}")]
        out += kvl(" ".join(seq[:APRE]))
        out += [raw(f"s_cmp_lg_u32 s{sW}, 0", "salu"), raw("s_cbranch_scc1 L_awd", "branch"),
                V(f"v_mov_b32 v{VFA}, 0"), salu(f"s_mov_b32 s{sCNT}, 0"), salu(f"s_lshl_b32 s{sT1}, s2, 7"), salu(f"s_add_u32 s{sT1}, s{sT1}, {FLGA}"),
                label("L_awl"), raw(f"buffer_load_dword v{VFL}, v{VFA}, s[{SO}:{SO+3}], s{sT1} offen sc1"), raw("s_waitcnt vmcnt(0)"),
                raw(f"v_readfirstlane_b32 s{sT0}, v{VFL}"), salu(f"s_add_u32 s{sCNT}, s{sCNT}, 1"), nop(2),
                raw(f"s_cmp_eq_u32 s{sT0}, s{sTOK}", "salu"), raw("s_cbranch_scc1 L_awd", "branch"),
                raw(f"s_cmp_ge_u32 s{sCNT}, {AWLIM}", "salu"), raw("s_cbranch_scc1 L_awd", "branch"), raw(f"s_sleep {AWS}"), raw("s_branch L_awl", "branch"),
                label("L_awd"), barrier()]
        out += kvl(" ".join(seq[APRE:]))
        out += [raw("s_waitcnt vmcnt(14)"), barrier()]
        out += [raw(x.text) for n in range(8) if POS[n] < 0 for x in rd_k(0, n, n, "aw")] + [raw("s_branch L_awback", "branch")]
    out += [label("L_tokslow"), raw("s_sleep 8"), raw(f"buffer_load_dword v{VFL}, v{VFA}, s[{SD2}:{SD2+3}], 0 offen sc1"), raw("s_waitcnt vmcnt(0)"),
            raw("s_branch L_tok", "branch")]
    out += [label("L_B")] + epi[0] + bs + early + bp
    out += [salu(f"s_mov_b32 s{sCNT}, 7"), label("L_oloop")]
    out += fold([flat(olin[4 * i: 4 * i + 4]) for i in range(7)])
    out += [salu(f"s_sub_u32 s{sCNT}, s{sCNT}, 1"), salu(f"s_cmp_lg_u32 s{sCNT}, 0"), raw("s_cbranch_scc1 L_oloop", "branch")]
    out += stamp(4) + flat(olin[28:32])
    fin = stamp(6) + dbg_out() + [raw("s_endpgm")]
    out += bmid + be[0] + fin + [label("L_bepi1")] + be[1] + fin
    out += o_stub(1) + o_stub(3)
    if WT & 2: out += [label("L_wt1")] + wtouch() + [raw("s_branch L_wt1back", "branch")]
    out += [label("L_end"), raw("s_endpgm")]
    out += subs
    return out

HDR = open("standalone__mha_block_cached__near_ridge.s.ref").read().split("; Override")[0]
def main(path):
    name = "standalone__mha_block_cached__near_ridge_kernel"
    s = HDR + f"; @launch kernel={name} grid=(512,1,1) block=(256,1,1) lds={LDS_BYTES}\n"
    s += f"; RBS={RBS}\n"
    s += '.amdgcn_target "amdgcn-amd-amdhsa--gfx950"\n.text\n'
    s += f".globl {name}\n.p2align 8\n.type {name},@function\n{name}:\n{emit(gen())}\n"
    s += f""".section .rodata,"a"
.p2align 6
.amdhsa_kernel {name}
  .amdhsa_next_free_vgpr 256
  .amdhsa_next_free_sgpr 102
  .amdhsa_accum_offset 256
  .amdhsa_group_segment_fixed_size 0
  .amdhsa_kernarg_size 64
  .amdhsa_user_sgpr_count 2
  .amdhsa_user_sgpr_kernarg_segment_ptr 1
  .amdhsa_system_sgpr_workgroup_id_x 1
.end_amdhsa_kernel
"""
    open(path, "w").write(s)
if __name__ == "__main__":
    STAMP = "--stamp" in sys.argv
    main([a for a in sys.argv[1:] if not a.startswith("--")][0])
```

```python
import sys, math, struct, os
from asmlib import *

def f32(x): return struct.unpack("<I", struct.pack("<f", x))[0]
V = valu
SLOT = 8704
KP, VP = 1088, 1056
L0, T0, TMP, TMP2 = 1, 4, 7, 8
VKR, VVR, VDK, VDV = 9, 10, 11, 12
VLANE = 13
TMP3, TMP4 = 14, 15
NM = 16
VDW0, VDW1, VXD, VWR, VXR = 16, 17, 18, 20, 60
FR = 28
VFA, VFL = 62, 63
SP = 64
QR = 112
ACC = 160
def acc(j, dt): return ACC + (j * 8 + dt) * 4
def qf(j, u): return QR + (j * 4 + u) * 4
def sreg(par, j, t): return SP + par * 24 + j * 8 + t * 4
def negm(j): return NM + 4 * j
def fr(n): return FR + 4 * (n % 8)
def xb(buf, half, j): return SP + buf * 24 + (half * 3 + j) * 4
def xf(st, half, j): return SP + (st % 2) * 24 + (half * 3 + j) * 4
SX, SWQ, SK, SV, SO = 4, 8, 12, 16, 20
SDBG = SWQ
SWO, SOUT = SX, SK
sW, sB, sH = 24, 25, 26
sXO, sWO0, sITEM, sKO, sVO, sCNT, sMK, sMV, sTH, sC = 27, 28, 29, 30, 31, 32, 33, 34, 35, 36
sQOK = sWO0
sPUB = sWO0
sT0, sT1, sU = 37, 38, 39
sRET = 40
sKS0, sKS1 = 44, 45
sXC, sV = 46, 47
PX, PK, PV, PWQ, PWO, POUT, PDBG, PWS = 48, 50, 52, 54, 56, 58, 60, 62
sX0 = 64
sMX, sMW, sTK, sR, sCLS = 67, 68, 69, 70, 71
STB = 72
sMG, sNB, sMH, sKH, sM0, sPH = 44, 45, 33, 34, 67, 29

POS = {0: -12, 1: -11, 2: -10, 3: -9, 4: -8, 5: -6, 6: -3, 7: 3}
for n in range(8, 16): POS[n] = 3 * n - 18
POSP = dict(POS)
for n in range(8, 16): POSP[n] = 24 + POS[n - 8]
BAR = 36
DMA_GAPS = [37, 40, 43, 46]

class Step:
    def __init__(self, name):
        self.name = name; self.mf = [None] * 48; self.gaps = {}; self.pre = {}; self.reads = None; self.pos = POS
    def gap(self, m, *ins): self.gaps.setdefault(m, []).extend(ins)
    def before(self, m, *ins): self.pre.setdefault(m, []).extend(ins)

WSL = 8192
XBASE = 4 * WSL
XSL = 24576
LDS_BYTES = XBASE + 2 * XSL
ABORT = 9 * SLOT
def w_slot(i): return (i % 4) * WSL
def x_slot(i): return XBASE + (i % 2) * XSL
KS = [4 * SLOT, 6 * SLOT, 8 * SLOT, 1 * SLOT]
VS = [5 * SLOT, 7 * SLOT, 0, 2 * SLOT]
KBIAS = SLOT
def k_slot(i): return KS[i % 4]
def v_slot(i): return VS[i % 4]
QOFF = 32 << 20
FLGQ = QOFF + 256 * 49152
FLGO = FLGQ + 65536
FLGP = FLGO + 32 * 256
FLGA = FLGP + 32768
WS_BYTES = FLGA + 65536
OXOFF = int(os.environ.get("OXOFF", "0"))
if OXOFF: WS_BYTES = 256 << 20
sTOK = 3

E = os.environ.get
TICK = int(E("TICK", "0"))
STAMP = False
KVFLAGS = E("KVF", " nt")
PRA, PRB, PRO, PRB2 = int(E("PRA", "2")), int(E("PRB", "1")), int(E("PRO", "0")), int(E("PRB2", "-1"))
PSLEEP = int(E("PSLEEP", "24"))
PSN = int(E("PSN", "1"))
QLIMIT = int(E("QLIMIT", "64"))
OLF = E("OLF", " sc1")
OUTF = E("OUTF", "")
WT = int(E("WT", "1"))
WTF = E("WTF", "")
QPOS = int(E("QPOS", "27"))
RBS = 0x20000 + int(E("RPAD", "0"))
BW = int(E("BW", "1"))
PFS = int(E("PFS", "12"))
BWLIM = int(E("BWLIM", "32"))
BWS = int(E("BWS", "8"))
SD2 = 96
DL = [int(v) for v in E("DL", "").split(",") if v]
sV2 = 29
PA = int(E("PA", "-1"))
PRE = int(E("PRE", "-1"))
S2 = int(E("S2", "-1"))
sSIG = 66
AW = int(E("AW", "1"))
AFS = int(E("AFS", "26"))
AWLIM = int(E("AWLIM", "48"))
AWS = int(E("AWS", "8"))
APRE = int(E("APRE", "3"))
FORCE_SLOW = int(E("FORCE_SLOW", "0"))

def rd_w(tile, a, n, tagp):
    u, T = a >> 1, a & 1
    base = w_slot(tile); va = VWR + T * 4 + u
    return [ds_read("ds_read_b64_tr_b16", fr(n), 2, va, base, tag=(tagp, n)),
            ds_read("ds_read_b64_tr_b16", fr(n) + 2, 2, va, base + 256, tag=(tagp, n))]
def rd_k(tile, a, n, tagp):
    t, u = a >> 2, a & 3
    return [ds_read("ds_read_b128", fr(n), 4, VKR, k_slot(tile) - KBIAS + t * 4 * KP + u * 64, tag=(tagp, n))]
def rd_v(tile, dt, n, tagp):
    base = v_slot(tile) + dt * 32
    return [ds_read("ds_read_b64_tr_b16", fr(n), 2, VVR, base, tag=(tagp, n)),
            ds_read("ds_read_b64_tr_b16", fr(n) + 2, 2, VVR, base + 512, tag=(tagp, n))]
def adv_simple(r): return [salu(f"s_add_u32 s{r}, s{r}, 0x2000"), salu(f"s_and_b32 s{r}, s{r}, 0x3ffff")]
def tile_off(dst, src):
    return [salu(f"s_and_b32 s{sT0}, s{src}, 0xc0000"), salu(f"s_add_u32 s{dst}, s{src}, s{sR}"), salu(f"s_lshl_b32 s{sT0}, s{sT0}, 4"),
            salu(f"s_and_b32 s{dst}, s{dst}, 0x3ffff"), salu(f"s_or_b32 s{dst}, s{dst}, s{sT0}")]
def adv_kv(first=False):
    return ([salu(f"s_mov_b32 s{sV2}, s{sVO}")] if DL else []) + [salu(f"s_mov_b32 s{sVO}, s{sKO}"),
            salu(f"s_mov_b32 s{sU}, {5*8192}") if first else salu(f"s_add_u32 s{sU}, s{sU}, 0x2000")] + tile_off(sKO, sU)
def tick_pre(): return [raw("s_memtime s[100:101]"), raw("s_memrealtime s[42:43]")] if TICK else []
def tick_post():
    return [raw(f"s_mov_b32 m0, s{sTK}"), nop(0), raw(f"v_writelane_b32 v0, s100, m0"), raw(f"v_writelane_b32 v15, s42, m0"),
            raw(f"s_add_u32 s{sTK}, s{sTK}, 1"), raw(f"s_and_b32 s{sTK}, s{sTK}, 63") if TICK == 1 else raw(f"s_min_u32 s{sTK}, s{sTK}, 63")] if TICK else []
def dma_k(i, sKO=sKO):
    s = k_slot(i)
    return [(salu(f"s_add_u32 m0, s{sMK}, {s}"), buf_dma(VDK, SK, f"s{sKO}", 0, tag=("K", i), flags=KVFLAGS)),
            (salu(f"s_add_u32 m0, s{sMK}, {s + KP - 1024}"), buf_dma(VDK, SK, f"s{sKO}", 1024, tag=("K", i), flags=KVFLAGS))]
def dma_v(i, sVO=sVO):
    s = v_slot(i)
    return [(salu(f"s_add_u32 m0, s{sMV}, {s}"), buf_dma(VDV, SV, f"s{sVO}", 0, tag=("V", i), flags=KVFLAGS)),
            (salu(f"s_add_u32 m0, s{sMV}, {s + VP - 256}"), buf_dma(VDV, SV, f"s{sVO}", 256, tag=("V", i), flags=KVFLAGS))]
def dma_w(i):
    s = w_slot(i); so = f"s{sWO0}"
    return [(salu(f"s_add_u32 m0, s{sMW}, {s}"), buf_dma(VDW0, SWQ, so, 0, tag=("W", i))),
            (salu(f"s_add_u32 m0, s{sMW}, {s + 1024}"), buf_dma(VDW1, SWQ, so, 0, tag=("W", i)))]
def dma_x(t):
    s = x_slot(t)
    return [(salu(f"s_add_u32 m0, s{sMX}, {s + e * 1024 - t * 128}"), buf_dma(VXD + (e & 1), SX, f"s{sX0 + (e >> 1)}", t * 128, tag=("X", t))) for e in range(6)]
def rd_x(t):
    return [ds_read("ds_read_b128", xf(t, half, j), 4, VXR + half, x_slot(t) - XBASE + j * 2048, tag=("x", t)) for half in range(2) for j in range(3)]
def place_dma(st, pairs, gaps=None):
    assert len(pairs) <= len(gaps or DMA_GAPS)
    for (m0i, d), g in zip(pairs, gaps or DMA_GAPS):
        st.before(g, m0i)
        if st.mf[g] is None: st.before(g, nop(0))
        st.gap(g, d)
def sm_half(st, g0, par, j, t, first_l):
    a = sreg(par, j, t); p = sreg(par, j, 0) + 2 * t; tj = T0 + j; lj = L0 + j
    for r in range(4): st.gap(g0 + r, V(f"v_exp_f32 v{a+r}, v{a+r}"))
    if t == 0:
        if first_l: st.gap(g0 + 4, V(f"v_add_f32 v{lj}, v{lj}, v{tj}"))
        st.gap(g0 + 4, V(f"v_add_f32 v{tj}, v{a}, v{a+1}"))
    else:
        st.gap(g0 + 4, V(f"v_add_f32 v{tj}, v{tj}, v{a}"), V(f"v_add_f32 v{tj}, v{tj}, v{a+1}"))
    st.gap(g0 + 5, V(f"v_cvt_pk_bf16_f32 v{p}, v{a}, v{a+1}"), V(f"v_add_f32 v{tj}, v{tj}, v{a+2}"))
    st.gap(g0 + 6, V(f"v_add_f32 v{tj}, v{tj}, v{a+3}"), V(f"v_cvt_pk_bf16_f32 v{p+1}, v{a+2}, v{a+3}"))

def link(steps, early_first=True):
    early = []
    for i, st in enumerate(steps):
        for n in range(16):
            if st.reads is None: continue
            r = st.reads(n)
            if r is None: continue
            p = st.pos[n]
            if p < 0:
                if i == 0:
                    if early_first: st.before(0, *r)
                    else: early += r
                else: steps[i - 1].gap(48 + p, *r)
            else: st.gap(p, *r)
    out = []
    for st in steps:
        if st.reads is not None:
            for n in range(0, 16, 2):
                if st.reads(n) is None: continue
                st.pre.setdefault(3 * n, []).append(wait(lgkm=[(st.name, n), (st.name, n + 1)]))
        out.append(interleave(st.mf, st.gaps, st.pre))
    return out, early

def p_step(ps):
    st = Step(f"P{ps}")
    st.pos = POSP
    if ps + 1 <= 15:
        st.gap(3, wait(vm=[("X", ps + 1)]))
        for j, r in enumerate(rd_x(ps + 1)): st.gap(4 + j, r)
    for half in range(2):
        t = 2 * ps + half
        o = 24 * half
        for a in range(8):
            for j in range(3):
                st.mf[o + a * 3 + j] = mfma(acc(j, a), fr(half * 8 + a), xf(ps, half, j), 'z' if t == 0 else None)
        need = [("W", t + 1)] if t < 31 else [("K", 0)]
        if half == 1 and TICK != 3: st.before(o + 12, *tick_pre(), wait(vm=need, lgkm="all"), barrier(), *tick_post())
        else: st.before(o + 12, wait(vm=need, lgkm="all"), barrier())
        d = []; post = []
        if t + 4 <= 31:
            d += dma_w(t + 4); post.append(salu(f"s_add_u32 s{sWO0}, s{sWO0}, 0x40000"))
        kv = {26: "K0", 27: "V0", 28: "K1 V1", 29: "K2 V2", 30: "K3", 31: "" if DL else "V3"}.get(t, "")
        for it in kv.split():
            if it[0] == "K": d += dma_k(int(it[1])); post += adv_simple(sKO)
            else: d += dma_v(int(it[1])); post += adv_simple(sVO)
        place_dma(st, d, [o + 13, o + 15, o + 17, o + 19])
        st.gap(o + 22, *post)
    if ps + 3 <= 15: place_dma(st, dma_x(ps + 3), [18, 21, 24, 27, 30, 33])
    if ps == 5:
        st.gap(1, V(f"v_mov_b32 v{VFA}, 0"))
        st.gap(11, buf_load(VFL, 1, VFA, SD2, 0, 0, tag="tok", flags=" sc1"))
    if ps == PFS and BW and PA < 0:
        st.gap(1, wait(vm=["tok"]), salu(f"s_or_b32 s{sT0}, s{sCLS}, s{sW}"), raw(f"s_cmp_lg_u32 s{sT0}, 0", "salu"), raw("s_cbranch_scc1 L_nopf", "branch"),
               salu(f"s_and_b32 s{sT0}, s2, 255"), salu(f"s_lshl_b32 s{sT0}, s{sT0}, 7"), salu(f"s_add_u32 s{sT0}, s{sT0}, {FLGP}"), salu("s_mov_b64 exec, 1"), nop(0),
               raw(f"buffer_store_dword v{VFL}, v{VFA}, s[{SO}:{SO+3}], s{sT0} offen sc1"), salu("s_mov_b64 exec, -1"), label("L_nopf"))
    st.reads = lambda n: rd_w(2 * ps + (n >> 3), n & 7, n, st.name)
    if ps == 0: place_dma(st, dma_x(2), [0, 1, 2, 9, 10, 11])
    return st

def qk_mfmas(st, kt1, czero=False):
    par = kt1 & 1
    for t in range(2):
        for u in range(4):
            for j in range(3):
                c = None
                if u == 0: c = 'z' if czero else negm(j)
                st.mf[t * 12 + u * 3 + j] = mfma(sreg(par, j, t), fr(t * 4 + u), qf(j, u), c)
def rowmax_code(par, j, dst, tmp):
    a = sreg(par, j, 0)
    return [V(f"v_max3_f32 v{dst}, v{a}, v{a+1}, v{a+2}"), V(f"v_max3_f32 v{dst}, v{dst}, v{a+3}, v{a+4}"),
            V(f"v_max3_f32 v{dst}, v{dst}, v{a+5}, v{a+6}"), V(f"v_max_f32 v{dst}, v{dst}, v{a+7}"),
            V(f"v_mov_b32 v{tmp}, v{dst}"), nop(1), V(f"v_permlane16_swap_b32 v{dst}, v{tmp}"), nop(1),
            V(f"v_max_f32 v{dst}, v{dst}, v{tmp}"), V(f"v_mov_b32 v{tmp}, v{dst}"), nop(1),
            V(f"v_permlane32_swap_b32 v{dst}, v{tmp}"), nop(1), V(f"v_max_f32 v{dst}, v{dst}, v{tmp}")]
def q_finalize():
    out = [nop(7), nop(1)]
    for j in range(3):
        for dt in range(8):
            for r in range(4): out.append(V(f"v_mul_f32 v{acc(j,dt)+r}, s{sC}, v{acc(j,dt)+r}"))
    for j in range(3):
        for u in range(4):
            q = qf(j, u); a0 = acc(j, 2 * u); a1 = acc(j, 2 * u + 1)
            out += [V(f"v_cvt_pk_bf16_f32 v{q}, v{a0}, v{a0+1}"), V(f"v_cvt_pk_bf16_f32 v{q+1}, v{a0+2}, v{a0+3}"),
                    V(f"v_cvt_pk_bf16_f32 v{q+2}, v{a1}, v{a1+1}"), V(f"v_cvt_pk_bf16_f32 v{q+3}, v{a1+2}, v{a1+3}")]
    out += [salu("s_mov_b32 exec_lo, 0"), nop(0)]
    for j in range(3):
        for u in range(4):
            q = qf(j, u)
            out += [V(f"v_swap_b32 v{q}, v{q+2}"), V(f"v_swap_b32 v{q+1}, v{q+3}")]
    out += [salu("s_mov_b32 exec_lo, -1"), nop(1)]
    return out
def srd(s, lo, hi, nbytes):
    return [salu(f"s_mov_b32 s{s}, s{lo}"), salu(f"s_and_b32 s{s+1}, s{hi}, 0xffff"),
            salu(f"s_mov_b32 s{s+2}, {nbytes}"), salu(f"s_mov_b32 s{s+3}, 0x00020000")]
def q_soff(dst):
    return [salu(f"s_and_b32 s{dst}, s2, 255"), salu(f"s_lshl_b32 s{dst}, s{dst}, 2"), salu(f"s_add_u32 s{dst}, s{dst}, s{sW}"),
            salu(f"s_mul_i32 s{dst}, s{dst}, 12288"), salu(f"s_add_u32 s{dst}, s{dst}, {QOFF}")]
def q_loads(tag):
    o = []
    for i in range(12):
        so = [sXO, sKS0, sKS1][i >> 2]
        o.append(buf_load(QR + 4 * i, 4, TMP3, SO, f"s{so}", (i & 3) * 1024, tag=tag, flags=" sc1"))
    return o
def q_addr():
    return q_soff(sXO) + [salu(f"s_add_u32 s{sKS0}, s{sXO}, 4096"), salu(f"s_add_u32 s{sKS1}, s{sXO}, 8192"), V(f"v_lshlrev_b32 v{TMP3}, 4, v{VLANE}")]
def publish_cnt(lab, hreg_round):
    o = [raw(f"s_cmp_lg_u32 s{sW}, 0", "salu"), raw(f"s_cbranch_scc1 {lab}", "branch")]
    if hreg_round is None: o += [salu(f"s_and_b32 s{sT0}, s{sH}, 16"), salu(f"s_add_u32 s{sT0}, s{sT0}, s{sB}"), salu(f"s_lshl_b32 s{sT0}, s{sT0}, 8")]
    else: o += [salu(f"s_lshl_b32 s{sT0}, s{sB}, 8")]
    o += [salu(f"s_and_b32 s{sT1}, s{sH}, 15"), salu(f"s_lshl_b32 s{sT1}, s{sT1}, 2"), salu(f"s_add_u32 s{sT0}, s{sT0}, s{sT1}"),
          salu(f"s_add_u32 s{sT0}, s{sT0}, {FLGO}"),
          V(f"v_mov_b32 v{VFA}, 0"), V(f"v_mov_b32 v{VFL}, s{sTOK}"), salu("s_mov_b64 exec, 1"), nop(0),
          raw(f"buffer_store_dword v{VFL}, v{VFA}, s[{SO}:{SO+3}], s{sT0} offen sc1"), salu("s_mov_b64 exec, -1"), label(lab)]
    return o
def qflag_off(dst): return [salu(f"s_and_b32 s{dst}, s2, 255"), salu(f"s_lshl_b32 s{dst}, s{dst}, 7"), salu(f"s_add_u32 s{dst}, s{dst}, {FLGQ}")]

def init_step():
    st = Step("I0")
    qk_mfmas(st, 0, czero=True)
    st.reads = lambda n: rd_k(0, n, n, st.name) if n < 8 else None
    z = [V(f"v_mov_b32 v{ACC+i}, 0") for i in range(96)]
    for i, ins in enumerate(z): st.gap(i // 4, ins)
    post = [nop(7), nop(1)]
    for j in range(3):
        post += rowmax_code(0, j, TMP, TMP2)
        for r in range(4): post.append(V(f"v_sub_f32 v{negm(j)+r}, 0, v{TMP}"))
        for r in range(8): post.append(V(f"v_sub_f32 v{sreg(0,j,0)+r}, v{sreg(0,j,0)+r}, v{TMP}"))
        post.append(V(f"v_mov_b32 v{L0+j}, 0"))
    st.gap(23, *post)
    for j in range(3): sm_half(st, 24 + 4 * j, 0, j, 0, False)
    st.before(BAR, *tick_pre(), wait(vm=[("K", 1), ("V", 0)], lgkm="all"), barrier(), *tick_post())
    if not DL: place_dma(st, dma_k(4))
    st.gap(47, *adv_kv(True))
    return st

def a_step(kt):
    g = kt
    st = Step(f"A{g}")
    par = kt & 1
    last = kt == 31
    site = kt % 4 + (4 if kt >= 28 else 0)
    if not last: qk_mfmas(st, kt + 1)
    for dt in range(8):
        for j in range(3):
            st.mf[24 + dt * 3 + j] = mfma(acc(j, dt), fr(8 + dt), sreg(par, j, 0))
    st.reads = lambda n: ((None if last else rd_k(g + 1, n, n, st.name)) if n < 8 else rd_v(g, n - 8, n, st.name))
    for j in range(3): sm_half(st, 7 * j, par, j, 1, False)
    st.gap(21, V(f"v_max3_f32 v{TMP}, v{T0}, v{T0+1}, v{T0+2}"))
    st.gap(22, V(f"v_cmp_lt_f32 vcc, s{sTH}, v{TMP}"))
    if last: st.gap(22, nop(3))
    st.gap(23, raw(f"s_cbranch_vccnz L_slow{site}", "branch"), label(f"L_back{site}"))
    if last:
        st.gap(23, nop(1))
        for j in range(3): st.gap(24 + j, V(f"v_add_f32 v{L0+j}, v{L0+j}, v{T0+j}"))
        st.before(BAR, *tick_pre(), wait(lgkm="all"), barrier(), *tick_post())
        st.gap(BAR + 1, V(f"v_lshlrev_b32 v{TMP3}, 4, v{VLANE}"))
    else:
        for j in range(3): sm_half(st, 24 + 7 * j, 1 - par, j, 0, True)
        st.before(BAR, *tick_pre(), wait(vm=([("K", g + 2)] if g + 2 <= 31 else []) + [("V", g + 1)], lgkm="all"), barrier(), *tick_post())
        if DL:
            if kt <= 28: place_dma(st, (dma_k(g + 4, sVO) if kt < 28 else []) + dma_v(g + 3, sV2), DL)
        elif kt < 28: place_dma(st, dma_k(g + 5) + dma_v(g + 4))
        if PA >= 0 and kt % 4 == PA % 4 and kt < 28:
            st.gap(BAR + 3, raw(f"s_cmp_eq_u32 s{sCNT}, {7 - PA // 4}", "salu"), raw("s_cbranch_scc1 L_sigp", "branch"), label("L_sigpback"))
        if kt % 4 == AFS % 4:
            sf = "" if kt < 28 else "t"
            st.gap(BAR + 2, raw(f"s_cmp_eq_u32 s{sCNT}, s{sSIG}", "salu"), raw(f"s_cbranch_scc1 L_sig{sf}", "branch"), label(f"L_sigback{sf}"))
        st.gap(47, *adv_kv())
    return st

def slow_stub(site):
    r = site % 4
    out = [label(f"L_slow{site}"), salu(f"s_sub_u32 s{sKS1}, s{sU}, {5*8192}")] + tile_off(sKS0, sKS1) + [
           salu(f"s_add_u32 s{sKS1}, s{sKS0}, 4096"),
           raw(f"s_call_b64 s[{sRET}:{sRET+1}], L_rebase{r&1}", "branch")]
    for n in range(8, 16):
        if POS[n] <= 23: out += rd_v(r, n - 8, n, "slow")
    out += [raw("s_waitcnt lgkmcnt(0)"), raw(f"s_branch L_back{site}", "branch")]
    return out
def rebase(par):
    out = [label(f"L_rebase{par}"), raw("s_waitcnt lgkmcnt(0)"), nop(7), nop(7),
           V(f"v_and_b32 v{TMP}, 15, v{VLANE}"), V(f"v_lshlrev_b32 v{TMP}, 8, v{TMP}"),
           V(f"v_lshrrev_b32 v{TMP2}, 4, v{VLANE}"), V(f"v_lshl_add_u32 v{TMP}, v{TMP2}, 4, v{TMP}")]
    for t in range(2):
        for u in range(4): out.append(buf_load(fr(t * 4 + u), 4, TMP, SK, f"s{sKS0 + t}", u * 64, tag="sl"))
    out.append(raw("s_waitcnt vmcnt(0)"))
    for t in range(2):
        for u in range(4):
            for j in range(3): out.append(mfma(sreg(par, j, t), fr(t * 4 + u), qf(j, u), negm(j) if u == 0 else None))
    out += [nop(7), nop(7)]
    for j in range(3):
        out += rowmax_code(par, j, TMP, TMP2)
        out += [V(f"v_max_f32 v{TMP}, 0, v{TMP}"), V(f"v_sub_f32 v{TMP2}, 0, v{TMP}"), V(f"v_exp_f32 v{TMP2}, v{TMP2}")]
        for r in range(4): out.append(V(f"v_sub_f32 v{negm(j)+r}, v{negm(j)+r}, v{TMP}"))
        for pp in range(2):
            for r in range(8): out.append(V(f"v_sub_f32 v{sreg(pp,j,0)+r}, v{sreg(pp,j,0)+r}, v{TMP}"))
        out.append(V(f"v_mul_f32 v{L0+j}, v{L0+j}, v{TMP2}"))
        for r in range(32): out.append(V(f"v_mul_f32 v{acc(j,0)+r}, v{acc(j,0)+r}, v{TMP2}"))
        a = sreg(par, j, 0); tj = T0 + j
        for r in range(8): out.append(V(f"v_exp_f32 v{a+r}, v{a+r}"))
        out.append(nop(0))
        out.append(V(f"v_add_f32 v{tj}, v{a}, v{a+1}"))
        for r in range(2, 8): out.append(V(f"v_add_f32 v{tj}, v{tj}, v{a+r}"))
        for r in range(4): out.append(V(f"v_cvt_pk_bf16_f32 v{a+r}, v{a+2*r}, v{a+2*r+1}"))
    out += [nop(3), raw(f"s_setpc_b64 s[{sRET}:{sRET+1}]", "branch")]
    return out

CPF = int(E("CPF", "1"))
def cpf():
    if not CPF: return []
    o = [raw(f"s_cmp_lg_u32 s{sW}, 3", "salu"), raw("s_cbranch_scc1 L_nocpf", "branch"),
         salu(f"s_lshr_b32 s{sT0}, s2, 3"), raw(f"s_cmp_lg_u32 s{sT0}, {CPF}", "salu"), raw("s_cbranch_scc1 L_nocpf", "branch"),
         raw("s_getpc_b64 s[96:97]"), salu("s_and_b32 s96, s96, 0xffffff00"), salu("s_and_b32 s97, s97, 0xffff"), salu(f"s_mov_b32 s98, {CODESZ}"), salu("s_mov_b32 s99, 0x00020000"),
         V(f"v_lshlrev_b32 v{TMP3}, 7, v{VLANE}")]
    for i in range(6):
        o += [salu(f"s_mov_b32 s{sT0}, {i * 8192}"), raw(f"buffer_load_dword v{TMP4}, v{TMP3}, s[96:99], s{sT0} offen")]
    return o + [label("L_nocpf")]
CODESZ = 40000
def head():
    return [raw("s_cmp_ge_u32 s2, 512", "salu"), raw("s_cbranch_scc1 L_end", "branch"),
            raw("s_load_dwordx16 s[48:63], s[0:1], 0"),
            V(f"v_and_b32 v{VLANE}, 63, v0"), V(f"v_lshrrev_b32 v{TMP}, 6, v0"), nop(0),
            V(f"v_readfirstlane_b32 s{sW}, v{TMP}"),
            salu(f"s_lshr_b32 s{sCLS}, s2, 8"), salu(f"s_xor_b32 s{sCLS}, s{sCLS}, 1"), salu(f"s_mov_b32 s{sTK}, 0"),
            raw(f"s_setprio {PRB}"), raw("s_cmp_lt_u32 s2, 256", "salu"), raw("s_cbranch_scc1 L_pr0", "branch"), raw(f"s_setprio {PRA}"), label("L_pr0"),
            *cpf(), raw("s_memrealtime s[42:43]"), raw("s_waitcnt lgkmcnt(0)"),
            salu(f"s_or_b32 s{sT0}, s2, s{sW}"), raw(f"s_cmp_lg_u32 s{sT0}, 0", "salu"), raw("s_cbranch_scc1 L_start", "branch"),
            *srd(SO, PDBG, PDBG + 1, 256), salu("s_or_b32 s42, s42, 1"), V(f"v_mov_b32 v{VFA}, 0"), V(f"v_mov_b32 v{VFL}, s42"),
            salu("s_mov_b64 exec, 1"), nop(0), raw(f"buffer_store_dword v{VFL}, v{VFA}, s[{SO}:{SO+3}], 0 offen sc1"), salu("s_mov_b64 exec, -1"), nop(1)]
def prologue():
    o = [label("L_start"),
         salu(f"s_and_b32 s{sXC}, s2, 7"), salu(f"s_lshr_b32 s{sV}, s2, 3"), salu(f"s_and_b32 s{sV}, s{sV}, 31"),
         salu(f"s_and_b32 s{sT0}, s{sXC}, 3"), salu(f"s_lshl_b32 s{sT0}, s{sT0}, 2"), salu(f"s_and_b32 s{sB}, s{sV}, 3"), salu(f"s_add_u32 s{sB}, s{sB}, s{sT0}"),
         salu(f"s_lshr_b32 s{sT0}, s{sXC}, 2"), salu(f"s_lshl_b32 s{sT0}, s{sT0}, 3"), salu(f"s_lshr_b32 s{sH}, s{sV}, 2"), salu(f"s_add_u32 s{sH}, s{sH}, s{sT0}"),
         salu(f"s_lshl_b32 s{sT0}, s{sCLS}, 4"), salu(f"s_add_u32 s{sH}, s{sH}, s{sT0}")]
    o += srd(SX, PX, PX + 1, 16 * 192 * 1024 * 2) + srd(SWQ, PWQ, PWQ + 1, 1024 * 4096 * 2)
    o += [salu(f"s_lshl_b32 s{sT0}, s{sB}, 5"), salu(f"s_add_u32 s{sT0}, s{sT0}, s{sH}"), salu(f"s_lshl_b32 s{sT0}, s{sT0}, 18"),
          salu(f"s_add_u32 s{SK}, s{PK}, s{sT0}"), salu(f"s_addc_u32 s{SK+1}, s{PK+1}, 0"),
          salu(f"s_add_u32 s{SV}, s{PV}, s{sT0}"), salu(f"s_addc_u32 s{SV+1}, s{PV+1}, 0")]
    o += srd(SK, SK, SK + 1, 0x40000)[1:] + srd(SV, SV, SV + 1, 0x40000)[1:]
    if AW: o += [salu(f"s_cmp_eq_u32 s{sCLS}, 1"), salu(f"s_cselect_b32 s{SK+2}, 0, s{SK+2}"), salu(f"s_mov_b32 s{SV+2}, s{SK+2}")]
    o += srd(SO, PWS, PWS + 1, WS_BYTES) + srd(SD2, PDBG, PDBG + 1, 256)
    A, B, C, D = 2, 3, 4, 5
    o += [salu(f"s_mul_i32 s{sMK}, s{sW}, {2*KP}"), salu(f"s_mul_i32 s{sMV}, s{sW}, {2*VP}"),
          salu(f"s_mov_b32 s{sTH}, {f32(1024.0)}"), salu(f"s_mov_b32 s{sC}, {f32(math.log2(math.e) / math.sqrt(128.0))}"),
          salu(f"s_lshl_b32 s{sR}, s{sV}, 13"), salu(f"s_mov_b32 s{sKO}, s{sR}"), salu(f"s_mov_b32 s{sVO}, s{sR}"),
          salu(f"s_mov_b32 s{sWO0}, 0"), salu(f"s_mul_i32 s{sMX}, s{sW}, 6144"), salu(f"s_lshl_b32 s{sMW}, s{sW}, 11"),
          salu(f"s_mul_i32 s{sXO}, s{sB}, 192"), salu(f"s_mul_i32 s{sT0}, s{sW}, 48"), salu(f"s_add_u32 s{sXO}, s{sXO}, s{sT0}"),
          salu(f"s_lshl_b32 s{sX0}, s{sXO}, 11"), salu(f"s_add_u32 s{sX0+1}, s{sX0}, 0x8000"), salu(f"s_add_u32 s{sX0+2}, s{sX0}, 0x10000"),
          V(f"v_and_b32 v{A}, 15, v{VLANE}"), V(f"v_lshrrev_b32 v{B}, 4, v{VLANE}"),
          V(f"v_xor_b32 v{C}, v{B}, v{VLANE}"), V(f"v_and_b32 v{C}, 7, v{C}"),
          V(f"v_lshrrev_b32 v{D}, 3, v{VLANE}"), V(f"v_lshlrev_b32 v{D}, 11, v{D}"),
          V(f"v_lshl_add_u32 v{VXD}, v{C}, 4, v{D}"),
          V(f"v_xor_b32 v{VXD+1}, 64, v{VXD}"), V(f"v_add_u32 v{VXD+1}, 0x4000, v{VXD+1}"),
          V(f"v_and_b32 v{C}, 1, v{B}"), V(f"v_lshlrev_b32 v{C}, 2, v{C}"),
          V(f"v_lshrrev_b32 v{D}, 1, v{B}"), V(f"v_lshl_add_u32 v{C}, v{D}, 4, v{C}"),
          salu(f"s_lshl_b32 s{sT0}, s{sW}, 1"), salu(f"s_and_b32 s{sT0}, s{sT0}, 3"),
          salu(f"s_lshr_b32 s{sT1}, s{sW}, 1"), salu(f"s_lshl_b32 s{sT1}, s{sT1}, 3"), salu(f"s_add_u32 s{sT0}, s{sT0}, s{sT1}"),
          V(f"v_add_u32 v{C}, s{sT0}, v{C}"), V(f"v_lshlrev_b32 v{C}, 13, v{C}"),
          salu(f"s_lshl_b32 s{sT0}, s{sW}, 2"), V(f"v_xor_b32 v{D}, s{sT0}, v{A}"),
          V(f"v_lshl_add_u32 v{C}, v{D}, 4, v{C}"),
          salu(f"s_lshl_b32 s{sT0}, s{sH}, 8"),
          V(f"v_add_u32 v{VDW0}, s{sT0}, v{C}"), V(f"v_xor_b32 v{VDW1}, 32, v{VDW0}"), V(f"v_add_u32 v{VDW1}, 0x2000, v{VDW1}")]
    def em(pairs):
        r = []
        for m0i, d in pairs: r += [m0i, nop(0), d]
        return r
    def wl(i): return em(dma_w(i)) + [salu(f"s_add_u32 s{sWO0}, s{sWO0}, 0x40000")]
    o += em(dma_x(0)) + wl(0) + wl(1) + em(dma_x(1)) + wl(2) + wl(3)
    o += [V(f"v_lshrrev_b32 v{C}, 1, v{A}"), V(f"v_xor_b32 v{C}, v{C}, v{B}"),
          V(f"v_lshlrev_b32 v{C}, 4, v{C}"), V(f"v_lshl_add_u32 v{C}, v{A}, 7, v{C}"),
          salu(f"s_add_u32 s{sT0}, s{sMX}, {XBASE}"), V(f"v_add_u32 v{VXR}, s{sT0}, v{C}"), V(f"v_xor_b32 v{VXR+1}, 64, v{VXR}"),
          V(f"v_and_b32 v{C}, 1, v{B}"), V(f"v_lshlrev_b32 v{C}, 2, v{C}"), V(f"v_lshrrev_b32 v{D}, 2, v{A}"), V(f"v_add_u32 v{C}, v{C}, v{D}"),
          V(f"v_lshlrev_b32 v{VWR}, 10, v{C}"),
          V(f"v_lshrrev_b32 v{D}, 1, v{B}"), V(f"v_lshl_add_u32 v{VWR}, v{D}, 9, v{VWR}"),
          V(f"v_lshlrev_b32 v{C}, 1, v{C}"), V(f"v_and_b32 v{D}, 3, v{A}"), V(f"v_xor_b32 v{C}, v{C}, v{D}"),
          V(f"v_lshl_add_u32 v{VWR}, v{C}, 4, v{VWR}"),
          V(f"v_lshrrev_b32 v{D}, 1, v{D}"), V(f"v_lshl_add_u32 v{VWR}, v{D}, 3, v{VWR}")]
    for T in range(2):
        for u in range(4):
            if T or u: o.append(V(f"v_xor_b32 v{VWR + T * 4 + u}, {u * 64 + T * 8}, v{VWR}"))
    o += [V(f"v_lshrrev_b32 v{C}, 2, v{A}"), V(f"v_mul_u32_u24 v{VKR}, {KP}, v{C}"),
          V(f"v_and_b32 v{C}, 3, v{A}"), V(f"v_lshl_add_u32 v{VKR}, v{C}, 8, v{VKR}"),
          V(f"v_xor_b32 v{C}, v{C}, v{B}"), V(f"v_lshl_add_u32 v{VKR}, v{C}, 4, v{VKR}"), V(f"v_add_u32 v{VKR}, {KBIAS}, v{VKR}"),
          V(f"v_and_b32 v{C}, 1, v{B}"), V(f"v_lshlrev_b32 v{C}, 2, v{C}"), V(f"v_lshrrev_b32 v{D}, 2, v{A}"), V(f"v_add_u32 v{C}, v{C}, v{D}"),
          V(f"v_mul_u32_u24 v{C}, {VP}, v{C}"),
          V(f"v_lshrrev_b32 v{D}, 1, v{B}"), V(f"v_lshl_add_u32 v{VVR}, v{D}, 8, v{C}"),
          V(f"v_and_b32 v{D}, 3, v{A}"), V(f"v_lshl_add_u32 v{VVR}, v{D}, 3, v{VVR}"),
          V(f"v_and_b32 v{C}, 3, v{A}"), V(f"v_xor_b32 v{C}, v{C}, v{B}"), V(f"v_and_b32 v{D}, 12, v{A}"), V(f"v_or_b32 v{C}, v{C}, v{D}"),
          V(f"v_lshlrev_b32 v{C}, 4, v{C}"), V(f"v_lshl_add_u32 v{C}, v{B}, 8, v{C}"),
          salu(f"s_lshl_b32 s{sT0}, s{sW}, 11"), V(f"v_add_u32 v{VDK}, s{sT0}, v{C}"),
          V(f"v_lshlrev_b32 v{C}, 4, v{A}"), V(f"v_lshl_add_u32 v{C}, v{B}, 11, v{C}"),
          salu(f"s_lshl_b32 s{sT0}, s{sW}, 9"), V(f"v_add_u32 v{VDV}, s{sT0}, v{C}"),
          wait(vm=[("X", 0)]), *rd_x(0), wait(vm=[("W", 0)], lgkm="all")]
    if BW:
        o += [raw(f"s_cmp_lg_u32 s{sCLS}, 1", "salu"), raw("s_cbranch_scc1 L_bwd", "branch"), raw(f"s_cmp_lg_u32 s{sW}, 0", "salu"), raw("s_cbranch_scc1 L_bwd", "branch"),
              V(f"v_mov_b32 v{VFA}, 0"), salu(f"s_mov_b32 s{sCNT}, 0"), salu(f"s_and_b32 s{sU}, s2, 255"), salu(f"s_lshl_b32 s{sU}, s{sU}, 7"), salu(f"s_add_u32 s{sU}, s{sU}, {FLGP}"),
              label("L_bwl"), raw(f"s_sleep {BWS}"),
              raw(f"buffer_load_dword v{VFL}, v{VFA}, s[{SD2}:{SD2+3}], 0 offen sc1"),
              raw(f"buffer_load_dword v{TMP}, v{VFA}, s[{SO}:{SO+3}], s{sU} offen sc1"), raw("s_waitcnt vmcnt(0)"),
              raw(f"v_readfirstlane_b32 s{sT0}, v{VFL}"), raw(f"v_readfirstlane_b32 s{sT1}, v{TMP}"),
              salu(f"s_add_u32 s{sCNT}, s{sCNT}, 1"), raw(f"s_cmp_ge_u32 s{sCNT}, {BWLIM}", "salu"), raw("s_cbranch_scc1 L_bwd", "branch"), nop(1),
              raw(f"s_cmp_eq_u32 s{sT0}, 0", "salu"), raw("s_cbranch_scc1 L_bwl", "branch"),
              raw(f"s_cmp_lg_u32 s{sT0}, s{sT1}", "salu"), raw("s_cbranch_scc1 L_bwl", "branch"), label("L_bwd")]
    o += [barrier()]
    return o

def a_epilogue(item):
    o = [nop(7), nop(1)]
    o += [salu(f"s_mul_i32 s{sT0}, s{sB}, 12"), salu(f"s_mul_i32 s{sT1}, s{sW}, 3"), salu(f"s_add_u32 s{sT0}, s{sT0}, s{sT1}"),
          salu(f"s_mul_i32 s{sT0}, s{sT0}, {RBS}"), salu(f"s_lshl_b32 s{sT1}, s{sH}, 12"), salu(f"s_add_u32 s{sT0}, s{sT0}, s{sT1}")]
    for j in range(3):
        l = L0 + j
        o += [V(f"v_mov_b32 v{TMP}, v{l}"), nop(1), V(f"v_permlane16_swap_b32 v{l}, v{TMP}"), nop(1), V(f"v_add_f32 v{l}, v{l}, v{TMP}"),
              V(f"v_mov_b32 v{TMP}, v{l}"), nop(1), V(f"v_permlane32_swap_b32 v{l}, v{TMP}"), nop(1), V(f"v_add_f32 v{l}, v{l}, v{TMP}"),
              V(f"v_rcp_f32 v{l}, v{l}"), nop(0)]
        for u in range(4):
            a = acc(j, 2 * u)
            for r in range(8): o.append(V(f"v_mul_f32 v{a+r}, v{a+r}, v{l}"))
            q = SP + (j * 4 + u) * 4
            for r in range(4): o.append(V(f"v_cvt_pk_bf16_f32 v{q+r}, v{a+2*r}, v{a+2*r+1}"))
            o.append(buf_store(q, 4, TMP3, SO, f"s{sT0}", u * 1024, tag="st", flags=[E("OSF0", " sc1 nt"), " sc1"][item]))
        if j < 2: o.append(salu(f"s_add_u32 s{sT0}, s{sT0}, {RBS}"))
    return o

def stamp(i):
    if not STAMP: return []
    return [raw(f"s_memrealtime s[{STB+4*i}:{STB+1+4*i}]"), raw(f"s_memtime s[{STB+2+4*i}:{STB+3+4*i}]")]
def dbg_out():
    o = []
    if TICK:
        o += [salu(f"s_mov_b32 s{SO+2}, 0x20000000"), salu(f"s_lshl_b32 s39, s2, 2"), salu(f"s_add_u32 s39, s39, s24"), salu("s_lshl_b32 s39, s39, 9"),
              salu(f"s_add_u32 s39, s39, {66 << 20}"), V(f"v_lshlrev_b32 v2, 2, v{VLANE}"), nop(4),
              buf_store(0, 1, 2, SO, "s39", 0, tag="dbg"), buf_store(15, 1, 2, SO, "s39", 256, tag="dbg"), nop(1)]
    if STAMP:
        o += [raw("s_waitcnt lgkmcnt(0)"), salu(f"s_mov_b32 s{SO+2}, 0x20000000"),
              salu(f"s_lshl_b32 s39, s2, 2"), salu(f"s_add_u32 s39, s39, s24"), salu("s_lshl_b32 s39, s39, 6"), salu(f"s_add_u32 s39, s39, {64 << 20}"),
              V(f"v_mov_b32 v2, 0"), salu("s_mov_b64 exec, 1")]
        for i in range(7):
            o += [V(f"v_mov_b32 v4, s{STB+4*i}"), V(f"v_mov_b32 v5, s{STB+2+4*i}"), buf_store(4, 2, 2, SO, "s39", 8 * i, tag="dbg"), nop(1)]
    return o

SLW = 8 * VP
ODW, OX0, OWR = 16, 20, 23
def o_rdw(tile, a, n, tagp):
    u, T = a >> 1, a & 1
    base = (tile % 4) * SLW + u * 64
    return [ds_read("ds_read_b64_tr_b16", fr(n), 2, OWR + T, base, tag=(tagp, n)),
            ds_read("ds_read_b64_tr_b16", fr(n) + 2, 2, OWR + T, base + 512, tag=(tagp, n))]
def o_dmaw(i):
    s = (i % 4) * SLW
    return [(salu(f"s_add_u32 m0, s{sM0}, {s + e * VP}"), buf_dma(ODW + e, SV if E("NOW") else SWO, f"s{sWO0}", 0, tag=("OW", i), flags=E("OWF", ""))) for e in range(4)]
def o_xl(ps, half, j):
    return buf_load(xb(ps % 4, half, j), 4, OX0 + j, SV if E("NOX") else SO, f"s{sXO}", half * 1024, tag=("OX", ps, half), flags=OLF)
def o_step(ps):
    st = Step(f"O{ps}")
    st.pos = POSP
    buf = ps % 4
    for half in range(2):
        t = 2 * ps + half; o = 24 * half
        for a in range(8):
            for j in range(3): st.mf[o + a * 3 + j] = mfma(acc(j, a), fr(half * 8 + a), xb(buf, half, j))
        st.before(o, wait(vm=[("OX", ps, half)]))
        if half == 1: st.before(o + 12, *tick_pre(), wait(vm=[("OW", t + 1)], lgkm="all"), barrier(), *tick_post())
        else: st.before(o + 12, wait(vm=[("OW", t + 1)], lgkm="all"), barrier())
        place_dma(st, o_dmaw(t + 4), [o + 13, o + 15, o + 17, o + 19])
        st.gap(o + 22, salu(f"s_add_u32 s{sWO0}, s{sWO0}, {0x210000 if (t + 4) % 32 == 31 else 0x10000}"))
    st.reads = lambda n: o_rdw(2 * ps + (n >> 3), n & 7, n, st.name)
    if (ps & 15) + 3 < 16:
        for k, g in enumerate([1, 4, 7, 25, 28, 31]): st.gap(g, o_xl(ps + 3, k // 3, k % 3))
        st.gap(33, salu(f"s_add_u32 s{sXO}, s{sXO}, 2048"))
    return st
def wtouch():
    return [salu(f"s_lshl_b32 s{sT0}, s{sPH}, 4"), salu(f"s_lshl_b32 s{sT1}, s{sKH}, 3"), salu(f"s_add_u32 s{sT0}, s{sT0}, s{sT1}"),
            salu(f"s_and_b32 s{sT1}, s{sV}, 7"), salu(f"s_add_u32 s{sT0}, s{sT0}, s{sT1}"), salu(f"s_lshl_b32 s{sT0}, s{sT0}, 1"),
            salu(f"s_add_u32 s{sT0}, s{sT0}, s{sMH}"), salu(f"s_lshl_b32 s{sT0}, s{sT0}, 17"),
            salu(f"s_lshl_b32 s{sT1}, s{sNB}, 8"), salu(f"s_add_u32 s{sT0}, s{sT0}, s{sT1}"), V(f"v_lshlrev_b32 v{TMP3}, 11, v{VLANE}"),
            raw(buf_load(TMP, 1, TMP3, SWO, f"s{sT0}", 0, flags=WTF).text), raw(buf_load(TMP2, 1, TMP3, SWO, f"s{sT0}", 128, flags=WTF).text)]
def b_setup():
    A, B, C, D = 2, 3, 4, 5
    o = []
    o += srd(SWO, PWO, PWO + 1, 4096 * 1024 * 2) + srd(SOUT, POUT, POUT + 1, 3072 * 1024 * 2)
    o += [salu(f"s_and_b32 s{sT0}, s{sXC}, 3"), salu(f"s_lshl_b32 s{sT0}, s{sT0}, 3"), salu(f"s_and_b32 s{sMG}, s{sV}, 7"), salu(f"s_add_u32 s{sMG}, s{sMG}, s{sT0}"),
          salu(f"s_lshr_b32 s{sT0}, s{sXC}, 2"), salu(f"s_lshl_b32 s{sT0}, s{sT0}, 2"), salu(f"s_lshr_b32 s{sNB}, s{sV}, 3"), salu(f"s_add_u32 s{sNB}, s{sNB}, s{sT0}"),
          salu(f"s_and_b32 s{sMH}, s{sW}, 1"), salu(f"s_lshr_b32 s{sKH}, s{sW}, 1"), salu(f"s_mov_b32 s{sPH}, 0"),
          salu(f"s_mul_i32 s{sM0}, s{sKH}, {4*SLW}"), salu(f"s_mul_i32 s{sT0}, s{sMH}, {4*VP}"), salu(f"s_add_u32 s{sM0}, s{sM0}, s{sT0}"),
          salu(f"s_lshl_b32 s{sWO0}, s{sKH}, 21"),
          salu(f"s_mul_i32 s{sXO}, s{sMG}, 6"), salu(f"s_mul_i32 s{sT0}, s{sMH}, 3"), salu(f"s_add_u32 s{sXO}, s{sXO}, s{sT0}"),
          salu(f"s_mul_i32 s{sXO}, s{sXO}, {RBS}"), salu(f"s_lshl_b32 s{sT0}, s{sKH}, 15"), salu(f"s_add_u32 s{sXO}, s{sXO}, s{sT0}"), *([salu(f"s_add_u32 s{sXO}, s{sXO}, {OXOFF}")] if OXOFF else []),
          V(f"v_and_b32 v{A}, 15, v{VLANE}"), V(f"v_lshrrev_b32 v{B}, 4, v{VLANE}"),
          V(f"v_lshlrev_b32 v{OX0}, 4, v{VLANE}"), V(f"v_add_u32 v{OX0+1}, {RBS}, v{OX0}"), V(f"v_add_u32 v{OX0+2}, {2*RBS}, v{OX0}"),
          V(f"v_lshlrev_b32 v{C}, 14, v{B}"), V(f"v_lshl_add_u32 v{C}, v{A}, 4, v{C}"),
          salu(f"s_lshl_b32 s{sT0}, s{sMH}, 13"), salu(f"s_lshl_b32 s{sT1}, s{sNB}, 8"), salu(f"s_add_u32 s{sT0}, s{sT0}, s{sT1}"),
          V(f"v_add_u32 v{ODW}, s{sT0}, v{C}"), V(f"v_add_u32 v{ODW+1}, 0x800, v{ODW}"),
          V(f"v_add_u32 v{ODW+2}, 0x1000, v{ODW}"), V(f"v_add_u32 v{ODW+3}, 0x1800, v{ODW}"),
          V(f"v_and_b32 v{C}, 1, v{B}"), V(f"v_lshlrev_b32 v{C}, 2, v{C}"), V(f"v_lshrrev_b32 v{D}, 2, v{A}"), V(f"v_add_u32 v{C}, v{C}, v{D}"),
          V(f"v_mul_u32_u24 v{C}, {VP}, v{C}"),
          V(f"v_lshrrev_b32 v{D}, 1, v{B}"), V(f"v_lshl_add_u32 v{C}, v{D}, 8, v{C}"),
          V(f"v_and_b32 v{D}, 3, v{A}"), V(f"v_lshl_add_u32 v{C}, v{D}, 4, v{C}"),
          salu(f"s_mul_i32 s{sT0}, s{sKH}, {4*SLW}"), V(f"v_add_u32 v{C}, s{sT0}, v{C}"),
          V(f"v_lshrrev_b32 v{D}, 1, v{D}"), V(f"v_lshl_add_u32 v{OWR}, v{D}, 3, v{C}"),
          V(f"v_xor_b32 v{D}, 1, v{D}"), V(f"v_lshl_add_u32 v{OWR+1}, v{D}, 3, v{C}")]
    for i in range(4):
        for m0i, d in o_dmaw(i): o += [m0i, nop(0), d]
        o.append(salu(f"s_add_u32 s{sWO0}, s{sWO0}, 0x10000"))
    o += [V(f"v_mov_b32 v{ACC+i}, 0") for i in range(96)]
    o += [wait(vm=["st"]), barrier()] + publish_cnt("L_pub0", None) + [raw(f"s_setprio {PRO}")] + stamp(2)
    if WT == 2: o += wtouch()
    if S2 >= 0:
        o += [raw(f"s_cmp_lg_u32 s{sW}, 0", "salu"), raw("s_cbranch_scc1 L_owd", "branch"),
              V(f"v_mov_b32 v{VFA}, 0"), salu(f"s_mov_b32 s{sCNT}, 0"), salu(f"s_lshl_b32 s{sT1}, s2, 7"), salu(f"s_add_u32 s{sT1}, s{sT1}, {FLGA}"),
              label("L_owl"), raw(f"buffer_load_dword v{VFL}, v{VFA}, s[{SO}:{SO+3}], s{sT1} offen sc1"), raw("s_waitcnt vmcnt(0)"),
              raw(f"v_readfirstlane_b32 s{sT0}, v{VFL}"), salu(f"s_add_u32 s{sCNT}, s{sCNT}, 1"), nop(2),
              raw(f"s_cmp_eq_u32 s{sT0}, s{sTOK}", "salu"), raw("s_cbranch_scc1 L_owd", "branch"),
              raw(f"s_cmp_ge_u32 s{sCNT}, {AWLIM}", "salu"), raw("s_cbranch_scc1 L_owd", "branch"), raw(f"s_sleep {AWS}"), raw("s_branch L_owl", "branch"),
              label("L_owd")]
    o += [wait(vm=[("OW", 0)]), barrier()]
    return o
def b_poll(ph):
    o = []
    if WT in (1, 2):
        o = [raw(f"s_cmp_eq_u32 s{sPH}, 0", "salu"), raw("s_cbranch_scc1 L_nowt", "branch")] + wtouch() + [label("L_nowt")]
    o += [raw(f"s_cmp_lg_u32 s{sW}, 0", "salu"), raw("s_cbranch_scc1 L_bpd", "branch"),
         salu(f"s_lshr_b32 s{sT0}, s{sMG}, 1"), salu(f"s_lshl_b32 s{sT1}, s{sPH}, 4"), salu(f"s_add_u32 s{sT0}, s{sT0}, s{sT1}"), salu(f"s_lshl_b32 s{sT0}, s{sT0}, 8"),
         salu(f"s_add_u32 s{sT0}, s{sT0}, {FLGO}"),
         V(f"v_and_b32 v{VFA}, 15, v{VLANE}"), V(f"v_lshlrev_b32 v{VFA}, 2, v{VFA}"), salu(f"s_mov_b32 s{sCNT}, 0"), label("L_bpl"),
         raw(f"buffer_load_dword v{VFL}, v{VFA}, s[{SO}:{SO+3}], s{sT0} offen sc1"), raw("s_waitcnt vmcnt(0)"),
         raw(f"v_cmp_ne_u32 vcc, s{sTOK}, v{VFL}"), nop(3), raw("s_cbranch_vccz L_bpd", "branch"),
         salu(f"s_add_u32 s{sCNT}, s{sCNT}, 1"), raw(f"s_cmp_ge_u32 s{sCNT}, {1 << 17}"), raw("s_cbranch_scc1 L_bpd", "branch"),
         *[raw(f"s_sleep {PSLEEP}")] * PSN, raw("s_branch L_bpl", "branch"),
         label("L_bpd"), barrier()]
    post = []
    for k in range(3):
        post += [o_xl(16 * ph + k, h, j) for h in range(2) for j in range(3)] + [salu(f"s_add_u32 s{sXO}, s{sXO}, 2048")]
    return o, post
def b_epi(kh):
    keep = [2 * kh, 2 * kh + 1]; send = [2 - 2 * kh, 3 - 2 * kh]
    o = []; idx = 0
    for j in range(3):
        for u in send:
            for T in range(2):
                o.append(ds_write("ds_write_b128", TMP, acc(j, 2 * u + T), 4, idx * 1024, tag="w")); idx += 1
    o += [wait(lgkm="all"), barrier()]
    idx = 0; RB = SP
    for j in range(3):
        for u in keep:
            for T in range(2):
                o.append(ds_read("ds_read_b128", RB + idx * 4, 4, TMP2, idx * 1024, tag=("r", idx))); idx += 1
    idx = 0; QB = QR
    for j in range(3):
        for ui, u in enumerate(keep):
            o.append(wait(lgkm=[("r", idx), ("r", idx + 1)]))
            a = acc(j, 2 * u)
            for r in range(8): o.append(V(f"v_add_f32 v{a+r}, v{a+r}, v{RB+idx*4+r}"))
            q = QB + (j * 2 + ui) * 4
            for r in range(4): o.append(V(f"v_cvt_pk_bf16_f32 v{q+r}, v{a+2*r}, v{a+2*r+1}"))
            idx += 2
    o += [salu("s_mov_b32 exec_lo, 0"), nop(0)]
    for k in range(6):
        q = QB + k * 4
        o += [V(f"v_swap_b32 v{q}, v{q+2}"), V(f"v_swap_b32 v{q+1}, v{q+3}")]
    o += [salu("s_mov_b32 exec_lo, -1"), nop(1)]
    for j in range(3):
        for ui, u in enumerate(keep):
            o.append(buf_store(QB + (j * 2 + ui) * 4, 4, TMP3, SOUT, f"s{sT0}", u * 64, tag="st", flags=OUTF))
        if j < 2: o.append(salu(f"s_add_u32 s{sT0}, s{sT0}, 0x8000"))
    return o

def flat(l): return [x for s in l for x in s]
def check(full, what):
    errs, _, _ = resolve_waits(full)
    errs += check_hazards(full)
    if errs:
        print("\n".join(errs[:40]), file=sys.stderr); raise SystemExit(f"{what}: generation errors: {len(errs)}")

def gen():
    hd = head(); pro = prologue()
    steps = [p_step(ps) for ps in range(16)] + [init_step()] + [a_step(kt) for kt in range(32)]
    lin, _ = link(steps)
    qfin = q_finalize() + [wait(vm=["tok"]), label("L_tok"), V(f"v_readfirstlane_b32 s{sTOK}, v{VFL}"), nop(3), raw(f"s_cmp_eq_u32 s{sTOK}, 0", "salu"),
                           raw("s_cbranch_scc1 L_tokslow", "branch")]
    epi = [a_epilogue(0), a_epilogue(1)]
    P = flat(lin[:16])
    I0, A0 = lin[16], lin[17:49]
    import copy
    front = hd + pro + P + qfin + I0 + flat(A0)
    check(front + epi[1], "round 1")
    osteps = [o_step(ps) for ps in range(33)]
    olin, early = link(osteps, early_first=False); olin = olin[:-1]
    bs = b_setup()
    polls = [b_poll(0), b_poll(1)]
    phsw = [salu(f"s_add_u32 s{sXO}, s{sXO}, 0x8000")]
    bmid = [wait(vm="all", lgkm="all"), nop(7), nop(1), barrier(),
            salu(f"s_mul_i32 s{sT0}, s{sW}, 12288"), V(f"v_lshlrev_b32 v{TMP2}, 4, v{VLANE}"), V(f"v_add_u32 v{TMP}, s{sT0}, v{TMP2}"),
            salu(f"s_xor_b32 s{sT1}, s{sW}, 2"), salu(f"s_mul_i32 s{sT1}, s{sT1}, 12288"), V(f"v_add_u32 v{TMP2}, s{sT1}, v{TMP2}"),
            V(f"v_and_b32 v{TMP3}, 15, v{VLANE}"), V(f"v_lshlrev_b32 v{TMP3}, 11, v{TMP3}"), V(f"v_lshrrev_b32 v2, 4, v{VLANE}"),
            V(f"v_lshl_add_u32 v{TMP3}, v2, 4, v{TMP3}"),
            salu(f"s_mul_i32 s{sT0}, s{sMG}, 96"), salu(f"s_mul_i32 s{sT1}, s{sMH}, 48"), salu(f"s_add_u32 s{sT0}, s{sT0}, s{sT1}"),
            salu(f"s_lshl_b32 s{sT0}, s{sT0}, 11"), salu(f"s_lshl_b32 s{sT1}, s{sNB}, 8"), salu(f"s_add_u32 s{sT0}, s{sT0}, s{sT1}"),
            salu(f"s_cmp_lg_u32 s{sKH}, 0"), raw("s_cbranch_scc1 L_bepi1", "branch")]
    be = [b_epi(0), b_epi(1)]
    for e in be:
        pre = [copy.copy(x) for x in front]
        fullb = pre + epi[0] + bs + early + polls[0][0] + polls[0][1] + flat(olin[:16]) + phsw + polls[1][0] + polls[1][1] + flat(olin[16:]) + bmid + e
        check(fullb, "role B")
    subs = []
    for s in range(8): subs += slow_stub(s)
    for par in range(2):
        rb = rebase(par)
        errs = check_hazards(rb); assert not errs, errs
        subs += rb
    out = hd[:2] + stamp(0) + hd[2:] + pro + P + stamp(1) + qfin
    if PRB2 >= 0: out += [raw(f"s_cmp_eq_u32 s{sCLS}, 0", "salu"), raw("s_cbranch_scc1 L_pr1", "branch"), raw(f"s_setprio {PRB2}"), label("L_pr1")]
    assert S2 < 0 or S2 % 4 == AFS % 4
    out += [salu(f"s_cmp_eq_u32 s{sCLS}, 1"), salu(f"s_cselect_b32 s{sSIG}, {7 - S2 // 4 if S2 >= 0 else -1}, {7 - AFS // 4}")]
    if AW: out += [raw(f"s_cmp_eq_u32 s{sCLS}, 1", "salu"), raw("s_cbranch_scc1 L_aw", "branch"), label("L_awback")]
    out += I0
    out += [salu(f"s_mov_b32 s{sCNT}, 7"), label("L_aloop")]
    out += fold([flat(A0[4 * i:4 * i + 4]) for i in range(7)])
    out += [salu(f"s_sub_u32 s{sCNT}, s{sCNT}, 1"), salu(f"s_cmp_lg_u32 s{sCNT}, 0"), raw("s_cbranch_scc1 L_aloop", "branch")]
    out += flat(A0[28:])
    out += [raw(f"s_cmp_eq_u32 s{sCLS}, 0", "salu"), raw("s_cbranch_scc1 L_B", "branch")]
    out += stamp(5) + epi[1] + [raw("s_waitcnt vmcnt(0)"), barrier()] + publish_cnt("L_finpub", None) + stamp(6) + dbg_out() + [raw("s_endpgm")]
    if AW:
        for sf in ("", "t"):
            out += [label(f"L_sig{sf}"), raw(f"s_cmp_lg_u32 s{sW}, 0", "salu"), raw(f"s_cbranch_scc1 L_sigback{sf}", "branch"),
                    salu(f"s_xor_b32 s{sT0}, s2, 256"), salu(f"s_lshl_b32 s{sT0}, s{sT0}, 7"), salu(f"s_add_u32 s{sT0}, s{sT0}, {FLGA}"),
                    V(f"v_mov_b32 v{VFA}, 0"), V(f"v_mov_b32 v{VFL}, s{sTOK}"), salu("s_mov_b64 exec, 1"), nop(0),
                    raw(f"buffer_store_dword v{VFL}, v{VFA}, s[{SO}:{SO+3}], s{sT0} offen sc1"), salu("s_mov_b64 exec, -1"), raw(f"s_branch L_sigback{sf}", "branch")]
        if PA >= 0:
            out += [label("L_sigp"), salu(f"s_or_b32 s{sT0}, s{sCLS}, s{sW}"), raw(f"s_cmp_lg_u32 s{sT0}, 0", "salu"), raw("s_cbranch_scc1 L_sigpback", "branch"),
                    salu(f"s_and_b32 s{sT0}, s2, 255"), salu(f"s_lshl_b32 s{sT0}, s{sT0}, 7"), salu(f"s_add_u32 s{sT0}, s{sT0}, {FLGP}"),
                    V(f"v_mov_b32 v{VFA}, 0"), V(f"v_mov_b32 v{VFL}, s{sTOK}"), salu("s_mov_b64 exec, 1"), nop(0),
                    raw(f"buffer_store_dword v{VFL}, v{VFA}, s[{SO}:{SO+3}], s{sT0} offen sc1"), salu("s_mov_b64 exec, -1"), raw("s_branch L_sigpback", "branch")]
        def kvl(names):
            r = []
            for it in names.split():
                for m0i, d in (dma_k if it[0] == "K" else dma_v)(int(it[1])): r += [m0i, nop(0), raw(d.text)]
                r += adv_simple(sKO if it[0] == "K" else sVO)
            return r
        seq = "K0 V0 K1 V1 K2 V2 K3 V3".split()[:7 if DL else 8]
        out += [label("L_aw"), raw("s_waitcnt vmcnt(0) lgkmcnt(0)"), barrier(),
                salu(f"s_mov_b32 s{SK+2}, 0x40000"), salu(f"s_mov_b32 s{SV+2}, 0x40000"), salu(f"s_mov_b32 s{sKO}, s{sR}"), salu(f"s_mov_b32 s{sVO}, s{sR}")]
        out += kvl(" ".join(seq[:APRE]))
        out += [raw(f"s_cmp_lg_u32 s{sW}, 0", "salu"), raw("s_cbranch_scc1 L_awd", "branch"),
                V(f"v_mov_b32 v{VFA}, 0"), salu(f"s_mov_b32 s{sCNT}, 0"), salu(f"s_lshl_b32 s{sT1}, s2, 7"), salu(f"s_add_u32 s{sT1}, s{sT1}, {FLGA}"),
                label("L_awl"), raw(f"buffer_load_dword v{VFL}, v{VFA}, s[{SO}:{SO+3}], s{sT1} offen sc1"), raw("s_waitcnt vmcnt(0)"),
                raw(f"v_readfirstlane_b32 s{sT0}, v{VFL}"), salu(f"s_add_u32 s{sCNT}, s{sCNT}, 1"), nop(2),
                raw(f"s_cmp_eq_u32 s{sT0}, s{sTOK}", "salu"), raw("s_cbranch_scc1 L_awd", "branch"),
                raw(f"s_cmp_ge_u32 s{sCNT}, {AWLIM}", "salu"), raw("s_cbranch_scc1 L_awd", "branch"), raw(f"s_sleep {AWS}"), raw("s_branch L_awl", "branch"),
                label("L_awd"), barrier()]
        out += kvl(" ".join(seq[APRE:]))
        out += [raw(f"s_waitcnt vmcnt({2 * len(seq) - 2})"), barrier()]
        out += [raw(x.text) for n in range(8) if POS[n] < 0 for x in rd_k(0, n, n, "aw")] + [raw("s_branch L_awback", "branch")]
    out += [label("L_tokslow"), raw("s_sleep 8"), raw(f"buffer_load_dword v{VFL}, v{VFA}, s[{SD2}:{SD2+3}], 0 offen sc1"), raw("s_waitcnt vmcnt(0)"),
            raw("s_branch L_tok", "branch")]
    out += [label("L_B")] + ([raw(f"s_setprio {PRE}")] if PRE >= 0 else []) + epi[0] + bs + early + [label("L_phase")]
    out += fold([polls[0][0], polls[1][0]])
    if STAMP:
        out += [raw(f"s_cmp_lg_u32 s{sPH}, 0", "salu"), raw("s_cbranch_scc1 L_sb5", "branch")] + stamp(3) + [label("L_sb5")] + stamp(5)
    out += fold([polls[0][1], polls[1][1]])
    out += [salu(f"s_mov_b32 s{sCNT}, 3"), label("L_oloop")]
    out += fold([flat(olin[16 * ph + 4 * i: 16 * ph + 4 * i + 4]) for ph in range(2) for i in range(3)])
    out += [salu(f"s_sub_u32 s{sCNT}, s{sCNT}, 1"), salu(f"s_cmp_lg_u32 s{sCNT}, 0"), raw("s_cbranch_scc1 L_oloop", "branch")]
    out += fold([flat(olin[12:16]), flat(olin[28:32])])
    out += [raw(f"s_cmp_lg_u32 s{sPH}, 0", "salu"), raw("s_cbranch_scc1 L_bfin", "branch")] + stamp(4) + phsw
    out += [salu(f"s_mov_b32 s{sPH}, 1"), raw("s_branch L_phase", "branch"), label("L_bfin")]
    fin = stamp(6) + dbg_out() + [raw("s_endpgm")]
    out += bmid + be[0] + fin + [label("L_bepi1")] + be[1] + fin
    out += [label("L_end"), raw("s_endpgm")]
    out += subs
    return out

HDR = open("standalone__mha_block_cached__near_ridge.s.ref").read().split("; Override")[0]
def main(path):
    name = "standalone__mha_block_cached__near_ridge_kernel"
    s = HDR + f"; @launch kernel={name} grid=(512,1,1) block=(256,1,1) lds={LDS_BYTES}\n"
    s += f"; RBS={RBS}\n"
    s += '.amdgcn_target "amdgcn-amd-amdhsa--gfx950"\n.text\n'
    s += f".globl {name}\n.p2align 8\n.type {name},@function\n{name}:\n{emit(gen())}\n"
    s += f""".section .rodata,"a"
.p2align 6
.amdhsa_kernel {name}
  .amdhsa_next_free_vgpr 256
  .amdhsa_next_free_sgpr 102
  .amdhsa_accum_offset 256
  .amdhsa_group_segment_fixed_size 0
  .amdhsa_kernarg_size 64
  .amdhsa_user_sgpr_count 2
  .amdhsa_user_sgpr_kernarg_segment_ptr 1
  .amdhsa_system_sgpr_workgroup_id_x 1
.end_amdhsa_kernel
"""
    open(path, "w").write(s)
if __name__ == "__main__":
    STAMP = "--stamp" in sys.argv
    main([a for a in sys.argv[1:] if not a.startswith("--")][0])
```
